```python
import torch

def _softmax(x, axis=-1):
    return torch.softmax(x, dim=axis)
def _gelu(x):
    return torch.nn.functional.gelu(x, approximate="tanh")
def _silu(x):
    return torch.nn.functional.silu(x)
def _sigmoid(x):
    return torch.sigmoid(x)
def _layernorm(x, axis=-1, eps=1e-5):
    m = x.mean(dim=axis, keepdim=True)
    v = x.var(dim=axis, keepdim=True, unbiased=False)
    return (x - m) / torch.sqrt(v + eps)
def _scatter_add(tgt, idx, src, axis=0):
    return tgt.clone().index_add_(axis, idx, src)
def _segment_sum(src, seg, n):
    out = torch.zeros((n,) + src.shape[1:], dtype=src.dtype)
    return out.index_add_(0, seg, src)
def _pad(x, pw):
    flat = tuple(v for pair in reversed(pw) for v in pair)
    return torch.nn.functional.pad(x, flat)

kernel_name = 'parallel_sum__linear_attn_block__dense_activation_relu__prompt'

def setup_inputs():

    _w = (lambda a: (lambda t: t.to(torch.bfloat16) if t.is_floating_point() else t)(torch.as_tensor(a)))
    def _A_setup():
        B, S, D = 1, 2048, 640
        return {
            "x": _w((lambda *s: torch.randn(*s, dtype=torch.bfloat16) * 0.05)(B, S, D)),
            "wqkv": _w((lambda *s: torch.randn(*s, dtype=torch.bfloat16) * 0.2)(D, 3 * D)),
            "wo": _w((lambda *s: torch.randn(*s, dtype=torch.bfloat16) * 0.2)(D, D)),
        }
    _A_in = _A_setup()

    def _B_setup():
        B, S, D, Dff = 1, 2048, 640, 1728
        return {
            "x": _w((lambda *s: torch.randn(*s, dtype=torch.bfloat16) * 0.05)(B, S, D)),
            "w1": _w((lambda *s: torch.randn(*s, dtype=torch.bfloat16) * 0.05)(D, Dff)),
            "w2": _w((lambda *s: torch.randn(*s, dtype=torch.bfloat16) * 0.05)(Dff, D)),
        }
    _B_in = _B_setup()

    return {
        "A_x": _A_in["x"],
        "A_wqkv": _A_in["wqkv"],
        "A_wo": _A_in["wo"],
        "B_x": _B_in["x"],
        "B_w1": _B_in["w1"],
        "B_w2": _B_in["w2"],
    }

def reference(A_x, A_wqkv, A_wo, B_x, B_w1, B_w2):
    def _A_ref(x, wqkv, wo):
        B, S, D = x.shape
        H = 32; Dh = D // H
        qkv = (lambda x, *d: x.permute(*d))((x @ wqkv).reshape(B, S, 3, H, Dh), 2, 0, 3, 1, 4)
        q, k, v = qkv[0], qkv[1], qkv[2]
        phi = lambda t: torch.where(t > 0, t + 1, torch.exp(t)) + 1e-6
        pq, pk = phi(q), phi(k)
        kv = torch.einsum("bhsd,bhse->bhde", pk, v)
        z = torch.einsum("bhsd->bhd", pk)
        num = torch.einsum("bhqd,bhde->bhqe", pq, kv)
        den = torch.einsum("bhqd,bhd->bhq", pq, z)[..., None] + 1e-6
        o = num / den
        return (lambda x, *d: x.permute(*d))(o, 0, 2, 1, 3).reshape(B, S, D) @ wo

    def _B_ref(x, w1, w2):
        h = torch.einsum("bsd,df->bsf", x, w1)
        zero = torch.zeros_like(h)
        h = torch.maximum(h, zero)
        return torch.einsum("bsf,fd->bsd", h, w2)

    x = A_x
    xn = _layernorm(x, axis=-1)
    return x + _A_ref(xn, A_wqkv, A_wo) + _B_ref(xn, B_w1, B_w2)
```

```python
import re

TRANS = ("v_exp_f32", "v_log_f32", "v_rcp_f32", "v_rsq_f32", "v_sqrt_f32", "v_sin_f32", "v_cos_f32")


def vr(a, n=1):
    return f"v{a}" if n == 1 else f"v[{a}:{a+n-1}]"


def sr(a, n=1):
    return f"s{a}" if n == 1 else f"s[{a}:{a+n-1}]"


_REG = re.compile(r"^(-|abs\()?\s*([vsa])(\d+)\)?$|^(-|abs\()?\s*([vsa])\[(\d+):(\d+)\]\)?$")


def regs_of(tok):
    tok = tok.strip()
    if tok in ("vcc", "vcc_lo", "vcc_hi"):
        return {("s", "vcc")}
    if tok == "m0":
        return {("s", "m0")}
    if tok in ("exec", "exec_lo", "exec_hi"):
        return {("s", "exec")}
    m = _REG.match(tok)
    if not m:
        return set()
    if m.group(2):
        return {(m.group(2), int(m.group(3)))}
    return {(m.group(5), i) for i in range(int(m.group(6)), int(m.group(7)) + 1)}


class Ins:
    __slots__ = ("text", "op", "ops", "kind", "w", "r", "states", "passes", "cread", "sdata")

    def __init__(self, text):
        self.text = text
        t = text.split(";")[0].strip()
        self.op, _, rest = t.partition(" ")
        op = self.op
        raw = [x.strip() for x in rest.split(",")] if rest.strip() else []
        ops = []
        for x in raw:
            ops.append(x.split(" ")[0] if not x.startswith("abs(") else x)
        self.ops = ops
        self.w, self.r = set(), set()
        self.cread, self.sdata = set(), set()
        self.states = 1
        self.passes = 0
        R = regs_of
        if op == "s_nop":
            self.kind = "nop"
            self.states = int(ops[0]) + 1
        elif op.startswith("v_mfma"):
            self.kind = "mfma"
            self.passes = 8 if "32x32" in op else 4
            self.w = R(ops[0])
            self.r = R(ops[1]) | R(ops[2]) | R(ops[3])
            self.cread = R(ops[3])
        elif op.startswith("v_cmp"):
            self.kind = "valu"
            self.w = R(ops[0])
            if op.startswith("v_cmpx"):
                self.w |= {("s", "exec")}
            for x in ops[1:]:
                self.r |= R(x)
        elif op.startswith("v_readfirstlane") or op.startswith("v_readlane"):
            self.kind = "valu"
            self.w = R(ops[0])
            for x in ops[1:]:
                self.r |= R(x)
        elif op.startswith("v_permlane") and "swap" in op:
            self.kind = "valu"
            self.w = R(ops[0]) | R(ops[1])
            self.r = set(self.w)
        elif op.startswith("v_"):
            self.kind = "valu"
            self.w = R(ops[0])
            rest_ops = ops[1:]
            if op.startswith(("v_add_co", "v_sub_co", "v_addc_co", "v_subb_co")):
                self.w |= R(ops[1])
                rest_ops = ops[2:]
            for x in rest_ops:
                self.r |= R(x)
            if op.startswith(("v_fmac", "v_dot2c", "v_mac", "v_writelane")) or "dpp" in t or "sdwa" in op:
                self.r |= R(ops[0])
            if op.startswith("v_cndmask") and len(ops) == 3:
                self.r |= {("s", "vcc")}
        elif op.startswith("ds_"):
            self.kind = "ds"
            if op.startswith(("ds_read", "ds_bpermute", "ds_permute", "ds_swizzle")) or "_rtn" in op:
                self.w = R(ops[0])
                for x in ops[1:]:
                    self.r |= R(x)
            else:
                for x in ops:
                    self.r |= R(x)
        elif op.startswith(("buffer_", "global_")):
            self.kind = "vmem"
            lds = " lds" in (" " + t)
            if op.startswith(("buffer_inv", "buffer_wbl2")):
                pass
            elif op.startswith("buffer_load") and not lds:
                self.w = R(ops[0])
                for x in ops[1:]:
                    self.r |= R(x)
            elif op.startswith("buffer_load") and lds:
                for x in ops:
                    self.r |= R(x)
                self.r |= {("s", "m0")}
            elif op.startswith("global_load") and "lds" not in op:
                self.w = R(ops[0])
                for x in ops[1:]:
                    self.r |= R(x)
            elif op.startswith("buffer_store") or op.startswith("buffer_atomic"):
                for x in ops:
                    self.r |= R(x)
                if op.startswith("buffer_atomic") and " sc0" in t:
                    self.w = R(ops[0])
                if "dwordx4" in op or "dwordx3" in op:
                    self.sdata = R(ops[0])
            else:
                for x in ops:
                    self.r |= R(x)
                if op.startswith("global_store") and ("dwordx4" in op or "dwordx3" in op):
                    self.sdata = R(ops[1])
        elif op.startswith("s_"):
            self.kind = "salu"
            if op.startswith(("s_cmp", "s_cbranch", "s_branch", "s_waitcnt", "s_barrier", "s_endpgm", "s_sleep",
                              "s_setprio", "s_bitcmp", "s_setpc")):
                for x in ops:
                    self.r |= R(x)
            else:
                self.w = R(ops[0]) if ops else set()
                for x in ops[1:]:
                    self.r |= R(x)
                if "saveexec" in op:
                    self.w |= {("s", "exec")}
        else:
            raise ValueError("unknown instruction: " + text)

    @property
    def is_trans(self):
        return self.op.replace("_e32", "").replace("_e64", "") in TRANS


def need_states(p, c):
    n = 0
    pv = {x for x in p.w if x[0] in "va"}
    ps = {x for x in p.w if x[0] == "s"}
    if p.kind == "valu":
        if pv & c.r:
            if c.kind == "mfma":
                n = max(n, 2)
            if c.op.startswith(("v_readfirstlane", "v_readlane")):
                n = max(n, 1)
            if c.op.startswith("v_permlane") or "dpp" in c.text:
                n = max(n, 2)
            if p.is_trans and c.kind == "valu" and not c.is_trans:
                n = max(n, 1)
            if p.is_trans and c.kind == "valu" and c.is_trans:
                n = max(n, 1)
            if "sdwa" in p.text or "op_sel" in p.text and not p.op.startswith("v_pk"):
                if c.kind == "valu":
                    n = max(n, 1)
        if ps & c.r:
            if c.kind == "valu":
                n = max(n, 4 if c.op.startswith(("v_readlane", "v_writelane")) else 2)
            if c.kind == "vmem":
                n = max(n, 5)
            if c.kind == "salu":
                n = max(n, 4)
            if c.kind == "mfma":
                n = max(n, 4)
        if ("s", "exec") in ps and c.kind in ("valu", "mfma"):
            n = max(n, 5 if "dpp" in c.text else 4)
    if p.kind == "mfma":
        P = p.passes
        raw_other = {4: 8, 8: 12}[P]
        if c.kind == "mfma":
            ab = regs_of(c.ops[1]) | regs_of(c.ops[2])
            if p.w & ab:
                n = max(n, raw_other)
            if p.w & c.cread and not (p.w == c.cread and p.passes == c.passes):
                n = max(n, {4: 6, 8: 10}[P])
            if p.w & c.w and not (p.w == c.cread):
                n = max(n, {4: 6, 8: 10}[P])
        else:
            if p.w & (c.r | c.w):
                n = max(n, raw_other)
            if c.kind == "valu" and p.cread & c.w:
                n = max(n, {4: 3, 8: 7}[P])
    if p.kind == "salu" and ("s", "m0") in p.w and c.kind == "vmem" and ("s", "m0") in c.r:
        n = max(n, 1)
    if p.kind == "salu" and ("s", "exec") in p.w and "dpp" in c.text:
        n = max(n, 1)
    if p.sdata and (p.sdata & c.w):
        n = max(n, 2)
    return n


class Asm:
    def __init__(self):
        self.items = []

    def __call__(self, text):
        for line in text.split("\n"):
            line = line.strip()
            if line:
                self.items.append(line)

    def label(self, name):
        self.items.append(name + ":")

    def comment(self, text):
        self.items.append("; " + text)

    def raw(self, text):
        self.items.append("#RAW#" + text)

    def padded(self):
        out = []
        hist = []
        pos = 0
        W = 14

        def pad_for(c):
            nonlocal pos
            need = 0
            for (p, ppos) in hist:
                k = need_states(p, c)
                if k:
                    have = pos - ppos - p.states
                    need = max(need, k - have)
            while need > 0:
                n = min(need, 16)
                out.append(f"s_nop {n-1}")
                i = Ins(f"s_nop {n-1}")
                hist.append((i, pos))
                pos += n
                need -= n

        for it in self.items:
            if it.startswith("#RAW#"):
                out.append(it[5:])
                continue
            if it.startswith(";") or it.endswith(":") or it.startswith("."):
                out.append(it)
                continue
            c = Ins(it)
            pad_for(c)
            out.append(it)
            hist.append((c, pos))
            pos += c.states
            while hist and pos - hist[0][1] > W + 16:
                hist.pop(0)
        return out

    def check_branches(self, lines):
        idx = {l[:-1]: i for i, l in enumerate(lines) if l.endswith(":") and not l.startswith(";")}
        isins = lambda l: not (l.startswith(";") or l.endswith(":") or l.startswith(".") or not l.strip())
        problems = []
        for i, l in enumerate(lines):
            if not isins(l):
                continue
            op = l.split()[0]
            if op.startswith(("s_cbranch", "s_branch")):
                tgt = l.split()[1]
                if tgt not in idx:
                    continue
                before = []
                j = i
                while j >= 0 and len(before) < 16:
                    if isins(lines[j]):
                        before.append(Ins(lines[j]))
                    j -= 1
                before.reverse()
                after = []
                j = idx[tgt]
                while j < len(lines) and len(after) < 14:
                    if isins(lines[j]):
                        after.append(Ins(lines[j]))
                        if after[-1].op in ("s_branch", "s_endpgm"):
                            break
                    j += 1
                seq = before + after
                posn = []
                p = 0
                for x in seq:
                    posn.append(p)
                    p += x.states
                for a in range(len(before)):
                    for b in range(len(before), len(seq)):
                        k = need_states(seq[a], seq[b])
                        if k and posn[b] - posn[a] - seq[a].states < k:
                            problems.append((seq[a].text, seq[b].text, k))
        return problems

    def text(self):
        lines = self.padded()
        probs = self.check_branches(lines)
        if probs:
            for p in probs:
                print("HAZARD across branch:", p)
            raise SystemExit("hazards across branches")
        out = []
        for l in lines:
            if l.endswith(":") or l.startswith(".") or l.startswith(";"):
                out.append(l)
            else:
                out.append("  " + l)
        return "\n".join(out) + "\n"


def kernel_header(name):
    return (f".globl {name}\n.p2align 8\n.type {name},@function\n{name}:\n")


def kernel_desc(name, vgpr=256, sgpr=96, accum=256):
    return (f".amdhsa_kernel {name}\n  .amdhsa_next_free_vgpr {vgpr}\n  .amdhsa_next_free_sgpr {sgpr}\n"
            f"  .amdhsa_accum_offset {accum}\n  .amdhsa_group_segment_fixed_size 0\n  .amdhsa_kernarg_size 72\n"
            f"  .amdhsa_user_sgpr_count 2\n  .amdhsa_user_sgpr_kernarg_segment_ptr 1\n"
            f"  .amdhsa_system_sgpr_workgroup_id_x 1\n.end_amdhsa_kernel\n")
```

```python
import sys
sys.path.insert(0, "gen")
from asmlib import *

HEAD = """; Kernarg layout (72 bytes, pointers only, base s[0:1]):
"""


def build(kernels):
    t = HEAD
    for (name, a, grid, block, lds, vg, sg) in kernels:
        t += f"; @launch kernel={name} grid=({grid},1,1) block=({block},1,1) lds={lds}\n"
    t += '.amdgcn_target "amdgcn-amd-amdhsa--gfx950"\n.text\n'
    seen = set()
    for (name, a, grid, block, lds, vg, sg) in kernels:
        if name in seen:
            continue
        seen.add(name)
        t += kernel_header(name) + a.text()
    t += '.section .rodata,"a"\n'
    seen = set()
    for (name, a, grid, block, lds, vg, sg) in kernels:
        if name in seen:
            continue
        seen.add(name)
        t += ".p2align 6\n" + kernel_desc(name, vg, sg, 256 if vg > 252 else (vg + 3) // 4 * 4)
    return t
```

```python
from asmlib import *
from layout import *
from k2 import srd, SPIN_MAX

K1 = "plab_in_kernel"
SLOT = 16384
XB = 65536
ST = 16384
CS = ST + 1024
K1_LDS = 98304
VB = 5120 + 16
HB = 10496
JB = 0
KVR = 32768
NZERO = ZERO_BYTES // 4096

S_WAVE, S_T, S_IDX, S_A, S_B = 44, 45, 46, 47, 48
S_IT, S_XO, S_WO, S_WSTEP, S_LW0, S_LW1, S_LX, S_XE = 49, 50, 51, 52, 53, 54, 55, 56
S_LINE, S_ISQ, S_DUMMY, S_JOB = 57, 58, 59, 60
S_T64 = 61

V_LANE, V_X0, V_X1, V_W0, V_W1 = 1, 2, 3, 4, 5
V_S1A, V_S1B, V_S2A, V_S2B = 6, 7, 8, 9
V_T0, V_T1 = 10, 11
ONES = 12
V_ADR = 16
ACC = 32

LOG2E = 0x3fb8aa3b
EPS6 = 0x358637bd
EPS5 = 0x3727c5ac

HQ_TABLE = [["Q0", "Q1", "H8", "H9"], ["Q2", "Q3", "H10", "H11"], ["Q4", "H12", "H13", "H14"],
            ["Q5", "H15", "H16", "H17"], ["Q6", "H18", "H19", "H20"], ["Q7", "H21", "H22", "D22"],
            ["Q8", "H23", "H24", "D24"], ["Q9", "H25", "H26", "D26"]]


def hq_word(row):
    w = 0
    for i, c in enumerate(row):
        b = int(c[1:]) | (0x80 if c[0] == "Q" else 0) | (0x40 if c[0] == "D" else 0)
        w |= b << (8 * i)
    return w


def mfma(a, d, x, y, c=None):
    a(f"v_mfma_f32_16x16x32_bf16 {vr(d, 4)}, {vr(x, 4)}, {vr(y, 4)}, {c if c is not None else vr(d, 4)}")


def interleave(a, mf, fillers, per=2):
    fillers = list(fillers)
    n = len(mf)
    for i, m in enumerate(mf):
        a(m)
        left = n - i
        k = max(per if fillers else 0, -(-len(fillers) // left) if left else 0)
        for _ in range(min(k, len(fillers))):
            for ins in fillers.pop(0):
                a(ins)
    for f in fillers:
        for ins in f:
            a(ins)


def dma_fillers(p):
    f = []
    if p % 2 == 0:
        xs = (p >> 1) & 1
        f.append([f"s_cmp_lt_u32 s{S_XO}, 1280", f"s_cselect_b32 s{S_XE}, s{S_XO}, {OOB}",
                  f"s_add_u32 m0, s{S_LX}, {xs*SLOT}",
                  f"buffer_load_dwordx4 v{V_X0}, s[20:23], s{S_XE} offen lds"])
        f.append([f"s_add_u32 m0, s{S_LX}, {xs*SLOT + 1024}",
                  f"buffer_load_dwordx4 v{V_X1}, s[20:23], s{S_XE} offen lds",
                  f"s_add_u32 s{S_XO}, s{S_XO}, 128"])
    f.append([f"s_add_u32 m0, s{S_LW0}, {p*SLOT}",
              f"buffer_load_dwordx4 v{V_W0}, s[24:27], s{S_WO} offen lds"])
    f.append([f"s_add_u32 m0, s{S_LW1}, {p*SLOT}",
              f"buffer_load_dwordx4 v{V_W1}, s[24:27], s{S_WO} offen lds",
              f"s_add_u32 s{S_WO}, s{S_WO}, s{S_WSTEP}"])
    return f


def stats_fillers(xreg):
    f = []
    for i in range(4):
        r = xreg + i
        f.append([f"v_lshlrev_b32 v{V_T0}, 16, v{r}", f"v_and_b32 v{V_T1}, 0xffff0000, v{r}"])
        f.append([f"v_add_f32 v{V_S1A}, v{V_S1A}, v{V_T0}", f"v_fmac_f32 v{V_S2A}, v{V_T0}, v{V_T0}"])
        f.append([f"v_add_f32 v{V_S1B}, v{V_S1B}, v{V_T1}", f"v_fmac_f32 v{V_S2B}, v{V_T1}, v{V_T1}"])
    return f


def prologue_dma(a):
    def wload(slot):
        a(f"s_add_u32 m0, s{S_LW0}, {slot*SLOT}")
        a(f"buffer_load_dwordx4 v{V_W0}, s[24:27], s{S_WO} offen lds")
        a(f"s_add_u32 m0, s{S_LW1}, {slot*SLOT}")
        a(f"buffer_load_dwordx4 v{V_W1}, s[24:27], s{S_WO} offen lds")
        a(f"s_add_u32 s{S_WO}, s{S_WO}, s{S_WSTEP}")

    def xload(slot):
        a(f"s_add_u32 m0, s{S_LX}, {slot*SLOT}")
        a(f"buffer_load_dwordx4 v{V_X0}, s[20:23], s{S_XO} offen lds")
        a(f"s_add_u32 m0, s{S_LX}, {slot*SLOT + 1024}")
        a(f"buffer_load_dwordx4 v{V_X1}, s[20:23], s{S_XO} offen lds")
        a(f"s_add_u32 s{S_XO}, s{S_XO}, 128")
    a(f"s_mov_b32 s{S_WO}, 0")
    a(f"s_mov_b32 s{S_XO}, 0")
    wload(0); xload(0); wload(1); xload(1); wload(2); wload(3)


def line_dma_voffsets(a, qpar_expr_rows, stride_s, coloff_s):
    a(f"v_lshrrev_b32 v20, 3, v{V_LANE}")
    a(f"v_and_b32 v21, 7, v{V_LANE}")
    a(f"v_bfe_u32 v22, v{V_LANE}, 4, 1")
    for q, dst in ((0, V_W0), (1, V_W1)):
        a(f"v_or_b32 v23, {2*q}, v22")
        a("v_lshlrev_b32 v23, 1, v23")
        a("v_xor_b32 v23, v23, v21")
        a(f"s_lshl_b32 s{S_B}, s{S_A}, 3")
        a(f"s_add_u32 s{S_B}, s{S_B}, {8*q}")
        a(f"v_add_u32 v24, s{S_B}, v20")
        a(f"v_mul_lo_u32 v24, v24, s{stride_s}")
        a("v_lshl_add_u32 v24, v23, 4, v24")
        a(f"v_add_u32 v{dst}, s{coloff_s}, v24")


def x_dma_voffsets(a):
    a(f"v_lshrrev_b32 v20, 3, v{V_LANE}")
    a(f"v_and_b32 v21, 7, v{V_LANE}")
    a(f"v_lshrrev_b32 v22, 4, v{V_LANE}")
    a(f"s_lshl_b32 s{S_A}, s{S_T}, 7")
    a(f"s_lshl_b32 s{S_B}, s{S_WAVE}, 4")
    a(f"s_add_u32 s{S_A}, s{S_A}, s{S_B}")
    for q, dst in ((0, V_X0), (1, V_X1)):
        a(f"v_add_u32 v23, {4*q}, v22")
        a("v_xor_b32 v23, v23, v21")
        a(f"v_add_u32 v24, s{S_A}, v20")
        if q:
            a("v_add_u32 v24, 8, v24")
        a("v_mul_u32_u24 v24, 1280, v24")
        a(f"v_lshl_add_u32 v{dst}, v23, 4, v24")
    a(f"s_lshl_b32 s{S_LX}, s{S_WAVE}, 11")
    a(f"s_add_u32 s{S_LX}, s{S_LX}, {XB}")


def line_read_addr(a, dst, u_s, u_add, base_s, base_add):
    a(f"v_lshrrev_b32 v56, 4, v{V_LANE}")
    a(f"v_bfe_u32 v57, v{V_LANE}, 2, 2")
    a(f"v_bfe_u32 v58, v{V_LANE}, 1, 1")
    a("v_lshrrev_b32 v59, 1, v57")
    a("v_and_b32 v60, 1, v56")
    a("v_lshl_or_b32 v59, v60, 1, v59")
    a("v_lshlrev_b32 v59, 1, v59")
    if u_s is None:
        a(f"v_or_b32 v60, {2*u_add}, v58")
    else:
        a(f"s_xor_b32 s{S_B}, s{u_s}, {u_add}")
        a(f"s_lshl_b32 s{S_B}, s{S_B}, 1")
        a(f"v_or_b32 v60, s{S_B}, v58")
    a("v_xor_b32 v60, v60, v59")
    a("v_lshl_add_u32 v61, v56, 3, v57")
    a("v_lshlrev_b32 v61, 7, v61")
    a("v_lshl_add_u32 v61, v60, 4, v61")
    a(f"v_and_b32 v60, 1, v{V_LANE}")
    a("v_lshl_add_u32 v61, v60, 3, v61")
    a(f"v_add_u32 v61, s{base_s}, v61")
    if base_add:
        a(f"v_add_u32 v{dst}, {base_add}, v61")
    else:
        a(f"v_mov_b32 v{dst}, v61")


def stats_finalize(a, tok_s):
    a(f"v_add_f32 v{V_S1A}, v{V_S1A}, v{V_S1B}")
    a(f"v_add_f32 v{V_S2A}, v{V_S2A}, v{V_S2B}")
    for op in ("v_permlane16_swap_b32", "v_permlane32_swap_b32"):
        a(f"v_mov_b32 v{V_S1B}, v{V_S1A}")
        a(f"v_mov_b32 v{V_S2B}, v{V_S2A}")
        a(f"{op} v{V_S1A}, v{V_S1B}")
        a(f"{op} v{V_S2A}, v{V_S2B}")
        a(f"v_add_f32 v{V_S1A}, v{V_S1A}, v{V_S1B}")
        a(f"v_add_f32 v{V_S2A}, v{V_S2A}, v{V_S2B}")
    a(f"v_mul_f32 v{V_S1A}, 0x3acccccd, v{V_S1A}")
    a(f"v_mul_f32 v{V_S2A}, 0x3acccccd, v{V_S2A}")
    a(f"v_fma_f32 v{V_S2A}, -v{V_S1A}, v{V_S1A}, v{V_S2A}")
    a(f"v_max_f32 v{V_S2A}, 0, v{V_S2A}")
    a(f"v_cvt_pk_bf16_f32 v{V_T0}, v{V_S1A}, v{V_S2A}")
    a(f"v_lshlrev_b32 v{V_S1A}, 16, v{V_T0}")
    a(f"v_and_b32 v{V_S2A}, 0xffff0000, v{V_T0}")
    a(f"v_add_f32 v{V_S2A}, 0x{EPS5:x}, v{V_S2A}")
    a(f"v_cvt_pk_bf16_f32 v{V_T0}, v{V_S2A}, v{V_S2A}")
    a(f"v_lshlrev_b32 v{V_S2A}, 16, v{V_T0}")
    a(f"v_sqrt_f32 v{V_S2A}, v{V_S2A}")
    a(f"v_cvt_pk_bf16_f32 v{V_T0}, v{V_S2A}, v{V_S2A}")
    a(f"v_lshlrev_b32 v{V_S2A}, 16, v{V_T0}")
    a(f"v_rcp_f32 v{V_S2A}, v{V_S2A}")
    a(f"v_sub_f32 v{V_S1A}, 0, v{V_S1A}")
    a(f"v_and_b32 v{V_T0}, 15, v{V_LANE}")
    a(f"v_add_u32 v{V_T0}, s{tok_s}, v{V_T0}")
    a(f"v_lshlrev_b32 v{V_T0}, 2, v{V_T0}")
    a(f"ds_write_b32 v{V_T0}, v{V_S1A} offset:{ST}")
    a(f"ds_write_b32 v{V_T0}, v{V_S2A} offset:{ST + 512}")


def job_issue(a):
    a(f"s_mul_i32 s{S_JOB}, s2, 3")
    a(f"s_add_u32 s{S_JOB}, s{S_JOB}, s{S_WAVE}")
    a(f"s_cmp_lt_u32 s{S_WAVE}, 3")
    a(f"s_cselect_b32 s{S_JOB}, s{S_JOB}, 1000")
    a(f"s_cmp_lt_u32 s{S_JOB}, 740")
    a("s_cbranch_scc0 {L}_NOJOB".replace("{L}", job_issue.L))
    a(f"s_mul_hi_u32 s62, s{S_JOB}, 0x1999999a")
    a("s_mul_i32 s63, s62, 10")
    a(f"s_sub_u32 s63, s{S_JOB}, s63")
    a("s_cmp_lt_u32 s62, 54")
    a("s_cselect_b32 s36, s16, s14")
    a("s_cselect_b32 s37, s17, s15")
    a(f"s_mov_b32 s38, {DFF*D*2}")
    a(f"s_cselect_b32 s38, s38, {D*D*2}")
    a("s_mov_b32 s39, 0x20000")
    a("s_cselect_b32 s64, 0, 54")
    a("s_sub_u32 s64, s62, s64")
    a("s_mul_i32 s65, s64, 40960")
    a("s_lshl_b32 s66, s63, 7")
    a("s_add_u32 s65, s65, s66")
    a(f"v_lshrrev_b32 v{V_T0}, 3, v{V_LANE}")
    a(f"v_mul_u32_u24 v{V_T0}, 1280, v{V_T0}")
    a(f"v_and_b32 v{V_T1}, 7, v{V_LANE}")
    a(f"v_lshl_add_u32 v{V_T0}, v{V_T1}, 4, v{V_T0}")
    a(f"s_lshl_b32 s66, s{S_WAVE}, 12")
    for q in range(4):
        a(f"s_add_u32 m0, s66, {JB + 1024*q}")
        a(f"buffer_load_dwordx4 v{V_T0}, s[36:39], s65 offen lds")
        if q < 3:
            a("s_add_u32 s65, s65, 10240")
    a.label(job_issue.L + "_NOJOB")


def job_finish(a, L, younger):
    a(f"s_cmp_lt_u32 s{S_JOB}, 740")
    a(f"s_cbranch_scc0 {L}_JOBDONE")
    a(f"s_waitcnt vmcnt({younger})")
    R = 200
    a(f"v_lshrrev_b32 v{R+16}, 4, v{V_LANE}")
    a(f"v_bfe_u32 v{R+17}, v{V_LANE}, 2, 2")
    a(f"v_lshl_add_u32 v{R+16}, v{R+16}, 2, v{R+17}")
    a(f"v_lshlrev_b32 v{R+16}, 7, v{R+16}")
    a(f"v_and_b32 v{R+17}, 3, v{V_LANE}")
    a(f"v_lshl_add_u32 v{R+16}, v{R+17}, 3, v{R+16}")
    a(f"s_lshl_b32 s66, s{S_WAVE}, 12")
    a(f"v_add_u32 v{R+16}, s66, v{R+16}")
    for jl in range(4):
        for b in range(2):
            a(f"ds_read_b64_tr_b16 {vr(R + 4*jl + 2*b, 2)}, v{R+16} offset:{JB + 2048*b + 32*jl}")
    a("s_cmp_lt_u32 s62, 54")
    a(f"s_cbranch_scc0 {L}_JO")
    a("s_mov_b32 s66, s62")
    for th in (14, 28, 41):
        a(f"s_cmp_ge_u32 s62, {th}")
        a("s_cselect_b32 s67, 5, 0")
        a("s_add_u32 s66, s66, s67")
    a(f"s_branch {L}_JS")
    a.label(f"{L}_JO")
    a("s_add_u32 s66, s64, 14")
    for th, inc in ((5, 14), (10, 13), (15, 13)):
        a(f"s_cmp_ge_u32 s64, {th}")
        a(f"s_cselect_b32 s67, {inc}, 0")
        a("s_add_u32 s66, s66, s67")
    a.label(f"{L}_JS")
    a("s_mul_i32 s66, s66, 40")
    a("s_lshl_b32 s67, s63, 2")
    a("s_add_u32 s66, s66, s67")
    a("s_lshl_b32 s66, s66, 10")
    a(f"s_add_u32 s66, s66, {WF}")
    a(f"v_lshlrev_b32 v{R+17}, 4, v{V_LANE}")
    a("s_waitcnt lgkmcnt(0)")
    for jl in range(4):
        a(f"buffer_store_dwordx4 {vr(R + 4*jl, 4)}, v{R+17}, s[28:31], s66 offen offset:{1024*jl}")
    a.label(f"{L}_JOBDONE")


def sigma_h_scalar(a, dst, src):
    a(f"s_mov_b32 s{dst}, s{src}")
    for th in (14, 28, 41):
        a(f"s_cmp_ge_u32 s{src}, {th}")
        a("s_cselect_b32 s67, 5, 0")
        a(f"s_add_u32 s{dst}, s{dst}, s67")


def relu_pair(a, acc, cs, st, dst):
    a(f"v_pk_fma_f32 {vr(acc,2)}, {vr(cs,2)}, {vr(st,2)}, {vr(acc,2)} op_sel:[0,0,0] op_sel_hi:[1,0,1]")
    a(f"v_pk_mul_f32 {vr(acc,2)}, {vr(acc,2)}, {vr(st,2)} op_sel:[0,1] op_sel_hi:[1,1]")
    a(f"v_cvt_pk_bf16_f32 v{dst}, v{acc}, v{acc+1}")
    a(f"v_pk_max_i16 v{dst}, v{dst}, 0")


HQ_ACC = ACC
HQ_CS = ACC + 64
HQ_W = ACC + 72
HQ_X = HQ_W + 32
V_AW, V_AX = V_ADR, V_ADR + 4


def hq_acc(u, tt):
    return HQ_ACC + (u * 4 + tt) * 4


def hq_w(st, u):
    return HQ_W + 16 * st + 4 * u


def hq_x(st, kh, tt):
    return HQ_X + 32 * st + 16 * kh + 4 * tt


def hq_reads_w(slot, st):
    return [[f"ds_read_b64_tr_b16 {vr(hq_w(st, u) + 2*s, 2)}, v{V_AW + u} offset:{slot*SLOT + 512*s}"]
            for u in range(4) for s in range(2)]


def hq_reads_x(xs, st):
    return [[f"ds_read_b128 {vr(hq_x(st, kh, tt), 4)}, v{V_AX + kh} offset:{xs*SLOT + 2048*tt}"]
            for kh in range(2) for tt in range(4)]


def hq_loop(a, L):
    lab = f"K1_HQ{L}"
    a.label(lab)
    a(f"s_mov_b32 s{S_IT}, 0")
    a.label(lab + "_L")
    for p in range(4):
        a("s_barrier")
        ws, xs, kh = p & 1, (p >> 1) & 1, p & 1
        mf = []
        for u in range(4):
            for tt in range(4):
                mf.append(f"v_mfma_f32_16x16x32_bf16 {vr(hq_acc(u,tt),4)}, {vr(hq_w(ws,u),4)}, {vr(hq_x(xs,kh,tt),4)}, {vr(hq_acc(u,tt),4)}")
            if u < 2:
                mf.append(f"v_mfma_f32_16x16x32_bf16 {vr(HQ_CS+4*u,4)}, {vr(hq_w(ws,u),4)}, {vr(ONES,4)}, {vr(HQ_CS+4*u,4)}")
        f = dma_fillers(p) + hq_reads_w((p + 1) % 4, (p + 1) & 1)
        if p & 1:
            nx = ((p + 1) >> 1) & 1
            f += hq_reads_x(nx, nx)
        f += stats_fillers(hq_x(xs, kh, L))
        interleave(a, mf, f)
        a("s_waitcnt vmcnt(6) lgkmcnt(0)")
    a(f"s_add_u32 s{S_IT}, s{S_IT}, 1")
    a(f"s_cmp_lt_u32 s{S_IT}, 5")
    a(f"s_cbranch_scc1 {lab}_L")
    a("s_branch K1_HQ_EPI")


def gen_hq(a):
    a.label("K1_HQ")
    a(f"s_and_b32 s62, s{S_WAVE}, 1")
    a(f"s_lshr_b32 s63, s{S_WAVE}, 1")
    a(f"s_mov_b32 s64, 0x{hq_word(HQ_TABLE[0]):x}")
    for hq in range(1, 8):
        a(f"s_cmp_eq_u32 s{S_IDX}, {hq}")
        a(f"s_cselect_b32 s64, 0x{hq_word(HQ_TABLE[hq]):x}, s64")
    a("s_lshl_b32 s65, s63, 3")
    a("s_lshr_b32 s64, s64, s65")
    a(f"s_and_b32 s{S_LINE}, s64, 63")
    a(f"s_bfe_u32 s{S_ISQ}, s64, 0x10007")
    a(f"s_bfe_u32 s{S_DUMMY}, s64, 0x10006")
    a(f"s_cmp_eq_u32 s{S_ISQ}, 1")
    a("s_cselect_b32 s24, s6, s8")
    a("s_cselect_b32 s25, s7, s9")
    a(f"s_mov_b32 s26, {D*3*D*2}")
    a(f"s_cselect_b32 s26, s26, {D*DFF*2}")
    a("s_mov_b32 s27, 0x20000")
    a("s_mov_b32 s65, 3840")
    a("s_cselect_b32 s65, s65, 3456")
    a(f"s_lshl_b32 s{S_WSTEP}, s65, 5")
    a(f"s_lshl_b32 s66, s{S_LINE}, 7")
    a(f"s_lshl_b32 s{S_A}, s62, 1")
    line_dma_voffsets(a, None, 65, 66)
    a("s_lshl_b32 s66, s63, 12")
    a("s_lshl_b32 s67, s62, 11")
    a(f"s_add_u32 s{S_LW0}, s66, s67")
    a(f"s_add_u32 s{S_LW1}, s{S_LW0}, 1024")
    x_dma_voffsets(a)
    a(f"s_cmp_ge_u32 s{S_IDX}, 5")
    a("s_cselect_b32 s68, 1, 0")
    a(f"s_cmp_lt_u32 s{S_T}, 5")
    a("s_cselect_b32 s68, s68, 0")
    a(f"s_cmp_eq_u32 s{S_WAVE}, 6")
    a("s_cselect_b32 s68, s68, 0")
    a("s_cmp_eq_u32 s68, 1")
    a("s_cbranch_scc0 K1_NOZERO")
    a(f"s_sub_u32 s69, s{S_IDX}, 5")
    a("s_mul_i32 s69, s69, 5")
    a(f"s_add_u32 s69, s69, s{S_T}")
    a("s_lshl_b32 s69, s69, 12")
    a(f"s_add_u32 s69, s69, {KVA}")
    for r in range(4):
        a(f"v_mov_b32 v{32+r}, 0")
    a(f"v_lshlrev_b32 v36, 4, v{V_LANE}")
    for q in range(4):
        a(f"buffer_store_dwordx4 v[32:35], v36, s[28:31], s69 offen offset:{1024*q} sc1")
    a.label("K1_NOZERO")
    prologue_dma(a)
    a(f"s_lshl_b32 s64, s62, 1")
    a("s_lshl_b32 s66, s63, 12")
    for u in range(4):
        line_read_addr(a, V_AW + u, 64, u, 66, 0)
    a(f"v_and_b32 v56, 15, v{V_LANE}")
    a(f"v_lshrrev_b32 v57, 4, v{V_LANE}")
    a("v_lshrrev_b32 v58, 1, v56")
    a("s_lshl_b32 s66, s62, 6")
    a("v_add_u32 v56, s66, v56")
    a("v_lshlrev_b32 v56, 7, v56")
    for kh in range(2):
        a(f"v_or_b32 v59, {4*kh}, v57")
        a("v_xor_b32 v59, v59, v58")
        a("v_lshl_add_u32 v59, v59, 4, v56")
        a(f"v_add_u32 v{V_AX + kh}, {XB}, v59")
    init_common(a)
    for r in range(HQ_ACC, HQ_ACC + 72):
        a(f"v_mov_b32 v{r}, 0")
    a("s_waitcnt vmcnt(8)")
    a("s_barrier")
    for f in hq_reads_w(0, 0) + hq_reads_x(0, 0):
        a(f[0])
    a("s_waitcnt vmcnt(6) lgkmcnt(0)")
    a("s_cmp_eq_u32 s68, 1")
    a("s_cbranch_scc0 K1_NOZSIG")
    a("s_waitcnt vmcnt(6)")
    a("v_mov_b32 v10, 1")
    a("v_mov_b32 v11, 0")
    a("s_mov_b64 exec, 1")
    a("buffer_atomic_add v10, v11, s[32:35], 0 offen")
    a("s_mov_b64 exec, -1")
    a.label("K1_NOZSIG")
    for L in range(1, 4):
        a(f"s_cmp_eq_u32 s63, {L}")
        a(f"s_cbranch_scc1 K1_HQ{L}")
    for L in range(4):
        hq_loop(a, L)

    a.label("K1_HQ_EPI")
    a("s_waitcnt vmcnt(0)")
    a("s_barrier")
    job_issue.L = "K1_HQ"
    job_issue(a)
    a(f"s_and_b32 s70, s{S_WAVE}, 1")
    a(f"s_lshr_b32 s71, s{S_WAVE}, 1")
    a("s_lshl_b32 s72, s70, 6")
    a("s_lshl_b32 s73, s71, 4")
    a("s_add_u32 s73, s73, s72")
    stats_finalize(a, 73)
    a(f"v_lshrrev_b32 v16, 4, v{V_LANE}")
    a("v_lshlrev_b32 v17, 4, v16")
    a("s_lshl_b32 s73, s71, 8")
    a("s_lshl_b32 s74, s70, 1")
    for u in range(4):
        a(f"s_xor_b32 s75, s74, {u}")
        a("s_lshl_b32 s75, s75, 6")
        a("s_add_u32 s75, s75, s73")
        a(f"v_add_u32 v{18+u}, s75, v17")
    for u in range(2):
        a(f"ds_write_b128 v{18+u}, {vr(HQ_CS + 4*u, 4)} offset:{CS}")
    a("s_waitcnt lgkmcnt(0)")
    a("s_barrier")
    CSR, STR = HQ_W, HQ_W + 16
    for u in range(4):
        a(f"ds_read_b128 {vr(CSR + 4*u, 4)}, v{18+u} offset:{CS}")
    a(f"v_and_b32 v16, 15, v{V_LANE}")
    a("v_add_u32 v16, s72, v16")
    a("v_lshlrev_b32 v16, 2, v16")
    for tt in range(4):
        a(f"v_add_u32 v17, {ST + 64*tt}, v16")
        a(f"ds_read2_b32 {vr(STR + 2*tt, 2)}, v17 offset1:128")
    a(f"s_lshl_b32 s{S_T64}, s{S_T}, 1")
    a(f"s_add_u32 s{S_T64}, s{S_T64}, s70")
    a(f"v_lshlrev_b32 v16, 4, v{V_LANE}")
    a("s_waitcnt lgkmcnt(0)")
    a(f"s_cmp_eq_u32 s{S_DUMMY}, 1")
    a("s_cbranch_scc1 K1_HQ_END")
    PK = HQ_X
    a(f"s_cmp_eq_u32 s{S_ISQ}, 1")
    a("s_cbranch_scc1 K1_HQ_Q")
    for pr in range(2):
        a(f"s_xor_b32 s72, s70, {pr}")
        a(f"s_lshl_b32 s73, s{S_LINE}, 1")
        a("s_add_u32 s72, s72, s73")
        sigma_h_scalar(a, 73, 72)
        a(f"s_mul_i32 s74, s{S_T64}, {NSIG}")
        a("s_add_u32 s73, s73, s74")
        a("s_lshl_b32 s73, s73, 12")
        for tt in range(4):
            f = PK + 4 * (pr * 4 + tt)
            for uu in range(2):
                u = 2 * pr + uu
                for hh in range(2):
                    relu_pair(a, hq_acc(u, tt) + 2 * hh, CSR + 4 * u + 2 * hh, STR + 2 * tt, f + 2 * uu + hh)
            a(f"buffer_store_dwordx4 {vr(f, 4)}, v16, s[28:31], s73 offen offset:{1024*tt}")
    a("s_branch K1_HQ_FIN")
    a.label("K1_HQ_Q")
    RL = HQ_W + 24
    for tt in range(4):
        a(f"v_mul_f32 v{RL + 2*tt}, 0x{LOG2E:x}, v{STR + 2*tt + 1}")
    a(f"s_mov_b32 s76, 0x{EPS6:x}")
    a(f"s_mov_b32 s77, 0x{EPS6:x}")
    TP = V_ADR + 8
    for pr in range(2):
        a(f"s_xor_b32 s72, s70, {pr}")
        a(f"s_lshl_b32 s73, s{S_LINE}, 1")
        a("s_add_u32 s72, s72, s73")
        a(f"s_mul_i32 s73, s{S_T64}, 40")
        a("s_add_u32 s73, s73, s72")
        a("s_lshl_b32 s73, s73, 11")
        a(f"s_add_u32 s73, s73, {PQ}")
        a("s_add_u32 s74, s73, 40960")
        for tt in range(4):
            f = PK + 4 * (pr * 4 + tt)
            st = STR + 2 * tt
            for uu in range(2):
                u = 2 * pr + uu
                for hh in range(2):
                    ac, cs = hq_acc(u, tt) + 2 * hh, CSR + 4 * u + 2 * hh
                    phi_pair(a, ac, f + 2 * uu + hh, TP,
                             f"{vr(cs,2)}, {vr(st,2)}, {vr(ac,2)} op_sel:[0,0,0] op_sel_hi:[1,0,1]",
                             f"{vr(st,2)}, s[76:77] op_sel:[0,1,0] op_sel_hi:[1,1,1]",
                             f"{vr(RL + 2*tt,2)} op_sel:[0,0] op_sel_hi:[1,0]")
            so = 73 if tt < 2 else 74
            a(f"buffer_store_dwordx4 {vr(f, 4)}, v16, s[28:31], s{so} offen offset:{1024*(tt & 1)}")
    a.label("K1_HQ_FIN")
    job_finish(a, "K1_HQ", 8)
    a.label("K1_HQ_END")
    a("s_branch K1_EXIT")


def phi_pair(a, ac, dst, TP, t_ops, p_ops, l_ops, keep=None):
    a(f"v_pk_fma_f32 {vr(ac,2)}, {t_ops}")
    a(f"v_pk_mul_f32 {vr(TP,2)}, {vr(ac,2)}, {l_ops}")
    if keep:
        a(f"v_pk_mul_f32 {vr(TP+2,2)}, {vr(ac,2)}, {keep[1]}")
    a(f"v_pk_fma_f32 {vr(ac,2)}, {vr(ac,2)}, {p_ops}")
    a(f"v_exp_f32_e64 v{TP}, v{TP} clamp")
    a(f"v_exp_f32_e64 v{TP+1}, v{TP+1} clamp")
    a(f"v_max_f32 v{ac}, s76, v{ac}")
    a(f"v_max_f32 v{ac+1}, s76, v{ac+1}")
    a(f"v_pk_add_f32 {vr(ac,2)}, {vr(ac,2)}, {vr(TP,2)}")
    if keep:
        a(f"v_cndmask_b32 v{ac}, v{TP+2}, v{ac}, {keep[0]}")
        a(f"v_cndmask_b32 v{ac+1}, v{TP+3}, v{ac+1}, {keep[0]}")
    a(f"v_cvt_pk_bf16_f32 v{dst}, v{ac}, v{ac+1}")


def init_common(a):
    for r in (V_S1A, V_S1B, V_S2A, V_S2B):
        a(f"v_mov_b32 v{r}, 0")
    for r in range(4):
        a(f"v_mov_b32 v{ONES + r}, 0x3f803f80")


KV_ACC = ACC
KV_CS = ACC + 56
KV_W = ACC + 64
KV_X = KV_W + 56
V_A01, V_A2, V_A34, V_AH = V_ADR, V_ADR + 1, V_ADR + 2, V_ADR + 3
V_AXK = V_ADR + 5
V_KVW = V_ADR + 9
ONES_UNITS = [(0, 1), (2, 3), (4, 5), (6,)]


def kv_acc(u, tt):
    return KV_ACC + (u * 2 + tt) * 4


def kv_w(st, u):
    return KV_W + 28 * st + 4 * u


def kv_x(st, kh, tt):
    return KV_X + 16 * st + 8 * kh + 4 * tt


def kv_reads_w(slot, st):
    f = []
    for u in range(7):
        for s in range(2):
            if u < 2:
                adr, off = V_A01, 32 * u + 1280 * s
            elif u == 2:
                adr, off = V_A2, 1280 * s
            elif u < 5:
                adr, off = V_A34, 32 * (u - 3) + 1280 * s
            else:
                adr, off = V_AH + (u - 5), 512 * s
            f.append([f"ds_read_b64_tr_b16 {vr(kv_w(st, u) + 2*s, 2)}, v{adr} offset:{slot*SLOT + off}"])
    return f


def kv_reads_x(xs, st):
    return [[f"ds_read_b128 {vr(kv_x(st, kh, tt), 4)}, v{V_AXK + 2*kh + tt} offset:{xs*SLOT}"]
            for kh in range(2) for tt in range(2)]


def kv_loop(a, tq):
    lab = f"K1_KV{tq}"
    a.label(lab)
    a(f"s_mov_b32 s{S_IT}, 0")
    a.label(lab + "_L")
    for p in range(4):
        a("s_barrier")
        ws, xs, kh = p & 1, (p >> 1) & 1, p & 1
        mf = []
        for u in range(7):
            for tt in range(2):
                w, x, d = vr(kv_w(ws, u), 4), vr(kv_x(xs, kh, tt), 4), vr(kv_acc(u, tt), 4)
                mf.append(f"v_mfma_f32_16x16x32_bf16 {d}, {x}, {w}, {d}" if u < 5 else
                          f"v_mfma_f32_16x16x32_bf16 {d}, {w}, {x}, {d}")
            if u in ONES_UNITS[tq]:
                c = vr(KV_CS + 4 * ONES_UNITS[tq].index(u), 4)
                w = vr(kv_w(ws, u), 4)
                mf.append(f"v_mfma_f32_16x16x32_bf16 {c}, {vr(ONES,4)}, {w}, {c}" if u < 5 else
                          f"v_mfma_f32_16x16x32_bf16 {c}, {w}, {vr(ONES,4)}, {c}")
        f = dma_fillers(p) + kv_reads_w((p + 1) % 4, (p + 1) & 1)
        if p & 1:
            nx = ((p + 1) >> 1) & 1
            f += kv_reads_x(nx, nx)
        f += stats_fillers(kv_x(xs, kh, 0))
        interleave(a, mf, f)
        a("s_waitcnt vmcnt(6) lgkmcnt(0)")
    a(f"s_add_u32 s{S_IT}, s{S_IT}, 1")
    a(f"s_cmp_lt_u32 s{S_IT}, 5")
    a(f"s_cbranch_scc1 {lab}_L")
    a("s_waitcnt vmcnt(0)")
    a("s_barrier")
    a(f"s_and_b32 s70, s{S_WAVE}, 1")
    a("s_lshl_b32 s72, s70, 9")
    a(f"v_and_b32 v{V_T0}, 15, v{V_LANE}")
    a(f"v_lshlrev_b32 v{V_T0}, 2, v{V_T0}")
    a(f"v_add_u32 v{V_T0}, s72, v{V_T0}")
    a(f"v_lshrrev_b32 v{V_T1}, 4, v{V_LANE}")
    a(f"v_lshlrev_b32 v{V_T1}, 4, v{V_T1}")
    a(f"v_add_u32 v{V_T1}, s72, v{V_T1}")
    for ci, u in enumerate(ONES_UNITS[tq]):
        if u < 5:
            a(f"ds_write_b32 v{V_T0}, v{KV_CS + 4*ci} offset:{CS + 64*u}")
        else:
            a(f"ds_write_b128 v{V_T1}, {vr(KV_CS + 4*ci, 4)} offset:{CS + 320 + 64*(u-5)}")
    a("s_branch K1_KV_EPI")


def kv_tile_mask(ua, ub):
    m = 0
    for l in range(64):
        e16, g = l & 15, l >> 4
        d0 = 16 * ua + 4 * g
        e = {2: e16 - 8, 3: 8 + e16, 4: 24 + e16}[ub]
        if d0 < 40 and e >= 0 and (d0 >= 20) == (e >= 20):
            m |= 1 << l
    return m


def set_exec(a, m):
    a(f"s_mov_b32 exec_lo, 0x{m & 0xffffffff:x}")
    a(f"s_mov_b32 exec_hi, 0x{m >> 32:x}")


def gen_kv(a):
    a.label("K1_KV")
    a(f"s_and_b32 s62, s{S_WAVE}, 1")
    a(f"s_lshr_b32 s63, s{S_WAVE}, 1")
    a(f"s_cmp_lt_u32 s{S_WAVE}, 5")
    a("s_cbranch_scc0 K1_KV_HD")
    a("s_mov_b32 s24, s6")
    a("s_mov_b32 s25, s7")
    a(f"s_mov_b32 s26, {D*3*D*2}")
    a("s_mov_b32 s27, 0x20000")
    a(f"s_mov_b32 s{S_WSTEP}, {3840*32}")
    a(f"s_lshl_b32 s64, s{S_WAVE}, 6")
    a(f"v_add_u32 v20, s64, v{V_LANE}")
    a("v_mul_u32_u24 v21, 6554, v20")
    a("v_lshrrev_b32 v21, 16, v21")
    a("v_mul_u32_u24 v22, 10, v21")
    a("v_sub_u32 v22, v20, v22")
    a("v_and_b32 v23, 0x13, v21")
    a("v_bfe_u32 v24, v21, 2, 1")
    a("v_lshl_or_b32 v23, v24, 3, v23")
    a("v_bfe_u32 v24, v21, 3, 1")
    a("v_lshl_or_b32 v23, v24, 2, v23")
    a("v_mul_u32_u24 v23, 3840, v23")
    a("v_lshl_add_u32 v23, v22, 4, v23")
    a(f"s_mul_i32 s64, s{S_IDX}, 160")
    a("s_add_u32 s65, s64, 1280")
    a(f"v_add_u32 v{V_W0}, s65, v23")
    a("s_add_u32 s65, s64, 2560")
    a(f"v_add_u32 v{V_W1}, s65, v23")
    a(f"s_lshl_b32 s{S_LW0}, s{S_WAVE}, 10")
    a(f"s_add_u32 s{S_LW1}, s{S_LW0}, {VB}")
    a("s_branch K1_KV_D1")
    a.label("K1_KV_HD")
    a("s_mov_b32 s24, s8")
    a("s_mov_b32 s25, s9")
    a(f"s_cmp_lt_u32 s{S_WAVE}, 7")
    a(f"s_cselect_b32 s26, {D*DFF*2}, 0")
    a("s_mov_b32 s27, 0x20000")
    a(f"s_mov_b32 s{S_WSTEP}, {3456*32}")
    a(f"s_sub_u32 s{S_A}, s{S_WAVE}, 5")
    a(f"s_lshl_b32 s{S_A}, s{S_A}, 1")
    a("s_mov_b32 s65, 3456")
    a(f"s_lshl_b32 s66, s{S_IDX}, 7")
    a(f"s_lshl_b32 s{S_LW0}, s{S_A}, 10")
    a(f"s_add_u32 s{S_LW0}, s{S_LW0}, {HB}")
    a(f"s_add_u32 s{S_LW1}, s{S_LW0}, 1024")
    a(f"s_cmp_lt_u32 s{S_WAVE}, 7")
    a(f"s_cselect_b32 s{S_LW0}, s{S_LW0}, {HB + 4096}")
    a(f"s_cselect_b32 s{S_LW1}, s{S_LW1}, {SLOT - 1024}")
    line_dma_voffsets(a, None, 65, 66)
    a.label("K1_KV_D1")
    x_dma_voffsets(a)
    prologue_dma(a)
    a(f"v_lshrrev_b32 v56, 4, v{V_LANE}")
    a(f"v_bfe_u32 v57, v{V_LANE}, 2, 2")
    a(f"v_and_b32 v58, 3, v{V_LANE}")
    a("v_lshrrev_b32 v59, 1, v56")
    a("v_lshlrev_b32 v59, 4, v59")
    a("v_and_b32 v60, 1, v56")
    a("v_lshl_add_u32 v59, v60, 2, v59")
    a("v_add_u32 v59, v59, v57")
    a("v_mul_u32_u24 v59, 160, v59")
    a("s_mul_i32 s64, s62, 80")
    a("v_add_u32 v59, s64, v59")
    a(f"v_lshl_add_u32 v{V_A01}, v58, 3, v59")
    a(f"v_add_u32 v{V_A34}, {VB + 16}, v{V_A01}")
    a(f"v_add_u32 v60, 64, v{V_A01}")
    a(f"v_add_u32 v61, {VB - 16}, v{V_A01}")
    a("v_cmp_gt_u32 vcc, 2, v58")
    a(f"v_cndmask_b32 v{V_A2}, v61, v60, vcc")
    a("s_lshl_b32 s64, s62, 1")
    a(f"s_mov_b32 s66, {HB}")
    for uu in range(2):
        line_read_addr(a, V_AH + uu, 64, uu, 66, 0)
    a(f"v_and_b32 v56, 15, v{V_LANE}")
    a(f"v_lshrrev_b32 v57, 4, v{V_LANE}")
    a("v_lshrrev_b32 v58, 1, v56")
    for tt in range(2):
        a(f"s_xor_b32 s64, s62, {tt}")
        a("s_lshl_b32 s64, s64, 4")
        a("s_lshl_b32 s65, s63, 5")
        a("s_add_u32 s64, s64, s65")
        a("v_add_u32 v60, s64, v56")
        a("v_lshlrev_b32 v60, 7, v60")
        for kh in range(2):
            a(f"v_or_b32 v59, {4*kh}, v57")
            a("v_xor_b32 v59, v59, v58")
            a("v_lshl_add_u32 v59, v59, 4, v60")
            a(f"v_add_u32 v{V_AXK + 2*kh + tt}, {XB}, v59")
    a("v_mul_u32_u24 v59, 80, v56")
    a("v_lshl_add_u32 v59, v57, 4, v59")
    a("s_mul_i32 s64, s63, 6720")
    a("s_mul_i32 s65, s62, 3360")
    a("s_add_u32 s64, s64, s65")
    a(f"s_add_u32 s64, s64, {KVR - 640}")
    a(f"v_add_u32 v{V_KVW}, s64, v59")
    init_common(a)
    for r in range(KV_ACC, KV_ACC + 64):
        a(f"v_mov_b32 v{r}, 0")
    a("s_waitcnt vmcnt(8)")
    a("s_barrier")
    for f in kv_reads_w(0, 0) + kv_reads_x(0, 0):
        a(f[0])
    a("s_waitcnt vmcnt(6) lgkmcnt(0)")
    for tq in range(1, 4):
        a(f"s_cmp_eq_u32 s63, {tq}")
        a(f"s_cbranch_scc1 K1_KV{tq}")
    for tq in range(4):
        kv_loop(a, tq)

    a.label("K1_KV_EPI")
    job_issue.L = "K1_KV"
    job_issue(a)
    a("v_mov_b32 v30, 0")
    a("buffer_load_dword v31, v30, s[32:35], 0 offen sc1")
    a(f"s_and_b32 s70, s{S_WAVE}, 1")
    a(f"s_lshr_b32 s71, s{S_WAVE}, 1")
    a("s_lshl_b32 s72, s71, 5")
    a("s_lshl_b32 s73, s70, 4")
    a("s_add_u32 s73, s73, s72")
    stats_finalize(a, 73)
    a("s_waitcnt lgkmcnt(0)")
    a("s_barrier")
    NM, RSV, RL = KV_W, KV_W + 8, KV_W + 16
    CSK = KV_W + 24
    CSH = KV_W + 32
    STH = KV_W + 40
    TP = KV_W + 44
    FR = KV_X
    a(f"v_lshrrev_b32 v16, 4, v{V_LANE}")
    a(f"v_and_b32 v17, 15, v{V_LANE}")
    for tt in range(2):
        a(f"s_xor_b32 s73, s70, {tt}")
        a("s_lshl_b32 s73, s73, 4")
        a("s_add_u32 s73, s73, s72")
        a("s_lshl_b32 s73, s73, 2")
        a("v_lshl_add_u32 v18, v16, 4, s73")
        a(f"ds_read_b128 {vr(NM + 4*tt, 4)}, v18 offset:{ST}")
        a(f"ds_read_b128 {vr(RSV + 4*tt, 4)}, v18 offset:{ST + 512}")
        a("v_lshl_add_u32 v19, v17, 2, s73")
        a(f"v_add_u32 v19, {ST}, v19")
        a(f"ds_read2_b32 {vr(STH + 2*tt, 2)}, v19 offset1:128")
    a("s_lshl_b32 s73, s70, 9")
    a("v_lshl_add_u32 v18, v17, 2, s73")
    for u in range(5):
        a(f"ds_read_b32 v{CSK + u}, v18 offset:{CS + 64*u}")
    a("v_lshl_add_u32 v18, v16, 4, s73")
    for uu in range(2):
        a(f"ds_read_b128 {vr(CSH + 4*uu, 4)}, v18 offset:{CS + 320 + 64*uu}")
    a(f"s_mov_b32 s76, 0x{EPS6:x}")
    a(f"s_mov_b32 s77, 0x{EPS6:x}")
    a("s_mov_b32 s78, 0x00ff00ff")
    a("s_mov_b32 s79, 0x00ff00ff")
    a("s_waitcnt lgkmcnt(0)")
    for i in range(8):
        a(f"v_mul_f32 v{RL + i}, 0x{LOG2E:x}, v{RSV + i}")
    a(f"s_lshl_b32 s72, s{S_IDX}, 1")
    a("s_add_u32 s72, s72, s70")
    sigma_h_scalar(a, 73, 72)
    a(f"s_lshl_b32 s{S_T64}, s{S_T}, 1")
    a("s_lshr_b32 s74, s71, 1")
    a(f"s_add_u32 s{S_T64}, s{S_T64}, s74")
    a(f"s_mul_i32 s74, s{S_T64}, {NSIG}")
    a("s_add_u32 s73, s73, s74")
    a("s_lshl_b32 s73, s73, 2")
    a("s_and_b32 s74, s71, 1")
    a("s_lshl_b32 s74, s74, 1")
    a("s_add_u32 s73, s73, s74")
    a(f"v_lshlrev_b32 v16, 4, v{V_LANE}")
    for tt in range(2):
        f = FR + 20 + 4 * tt
        for uu in range(2):
            for hh in range(2):
                relu_pair(a, kv_acc(5 + uu, tt) + 2 * hh, CSH + 4 * uu + 2 * hh, STH + 2 * tt, f + 2 * uu + hh)
        a(f"s_xor_b32 s74, s70, {tt}")
        a("s_add_u32 s74, s74, s73")
        a("s_lshl_b32 s74, s74, 10")
        a(f"buffer_store_dwordx4 {vr(f, 4)}, v16, s[28:31], s74 offen")
    for u in range(5):
        cs = CSK + u
        csp = cs & ~1
        sel = cs & 1
        for tt in range(2):
            for hh in range(2):
                ac = kv_acc(u, tt) + 2 * hh
                nm, rs, rl = NM + 4 * tt + 2 * hh, RSV + 4 * tt + 2 * hh, RL + 4 * tt + 2 * hh
                dst = FR + 4 * u + 2 * tt + hh
                t_ops = f"{vr(nm,2)}, {vr(csp,2)}, {vr(ac,2)} op_sel:[0,{sel},0] op_sel_hi:[1,{sel},1]"
                if u < 3:
                    phi_pair(a, ac, dst, TP, t_ops, f"{vr(rs,2)}, s[76:77]", f"{vr(rl,2)}",
                             keep=("s[78:79]", f"{vr(rs,2)}") if u == 2 else None)
                else:
                    a(f"v_pk_fma_f32 {vr(ac,2)}, {t_ops}")
                    a(f"v_pk_mul_f32 {vr(ac,2)}, {vr(ac,2)}, {vr(rs,2)}")
                    a(f"v_cvt_pk_bf16_f32 v{dst}, v{ac}, v{ac+1}")
    tiles = [(0, 2), (0, 3), (1, 2), (1, 3), (1, 4), (2, 3), (2, 4)]
    KT = KV_ACC
    for i, (ua, ub) in enumerate(tiles):
        mfma(a, KT + 4 * i, FR + 4 * ua, FR + 4 * ub, "0")
    for ua in range(3):
        mfma(a, KT + 28 + 4 * ua, FR + 4 * ua, ONES, "0")
    for i, (ua, ub) in enumerate(tiles):
        eoff = {2: -8, 3: 8, 4: 24}[ub]
        set_exec(a, kv_tile_mask(ua, ub))
        a(f"ds_write_b128 v{V_KVW}, {vr(KT + 4*i, 4)} offset:{80*(eoff + 8) + 64*ua}")
    for ua in range(3):
        for hd in range(2):
            m = 0
            for g in range(4):
                d0 = 16 * ua + 4 * g
                if d0 < 40 and (d0 >= 20) == (hd == 1):
                    m |= 1 << (16 * g)
            if m:
                set_exec(a, m)
                a(f"ds_write_b128 v{V_KVW}, {vr(KT + 28 + 4*ua, 4)} offset:{640 + 1600*(hd+1) + 64*ua}")
    a("s_mov_b64 exec, -1")
    a("s_waitcnt lgkmcnt(0)")
    a("s_barrier")
    a("v_lshlrev_b32 v17, 2, v0")
    a(f"v_add_u32 v18, {KVR}, v17")
    SM = KV_ACC
    for n in range(4):
        for r in range(4):
            a(f"ds_read_b32 v{SM + 4*n + r}, v18 offset:{2048*n + 6720*r}")
    a(f"s_mul_i32 s72, s{S_IDX}, 6720")
    a(f"s_add_u32 s72, s72, {KVA}")
    a("s_add_u32 s40, s10, s72")
    a("s_addc_u32 s41, s11, 0")
    a("s_mov_b32 s42, 6720")
    a("s_mov_b32 s43, 0x20000")
    a("s_waitcnt lgkmcnt(0)")
    for n in range(4):
        a(f"v_add_f32 v{SM + 4*n}, v{SM + 4*n}, v{SM + 4*n + 1}")
        a(f"v_add_f32 v{SM + 4*n + 2}, v{SM + 4*n + 2}, v{SM + 4*n + 3}")
        a(f"v_add_f32 v{SM + 4*n}, v{SM + 4*n}, v{SM + 4*n + 2}")
    a("s_waitcnt vmcnt(2)")
    a(f"s_mov_b32 s74, {SPIN_MAX}")
    a.label("K1_KV_ZW")
    a("v_readfirstlane_b32 s73, v31")
    a("s_sub_u32 s74, s74, 1")
    a("s_cmp_eq_u32 s74, 0")
    a("s_cbranch_scc1 K1_KV_ZOK")
    a(f"s_cmp_ge_u32 s73, {NZERO}")
    a("s_cbranch_scc1 K1_KV_ZOK")
    a("s_sleep 1")
    a("buffer_load_dword v31, v30, s[32:35], 0 offen sc1")
    a("s_waitcnt vmcnt(0)")
    a("s_branch K1_KV_ZW")
    a.label("K1_KV_ZOK")
    for n in range(4):
        if n < 2:
            a(f"buffer_atomic_add_f32 v{SM + 4*n}, v17, s[40:43], 0 offen offset:{2048*n}")
        else:
            if n == 2:
                a("v_add_u32 v18, 4096, v17")
            a(f"buffer_atomic_add_f32 v{SM + 4*n}, v18, s[40:43], 0 offen offset:{2048*(n-2)}")
    job_finish(a, "K1_KV", 6)
    a("s_branch K1_EXIT")


def gen_k1():
    a = Asm()
    a("s_cmp_ge_u32 s2, 256")
    a("s_cbranch_scc1 K1_END")
    a("s_load_dwordx4 s[4:7], s[0:1], 0")
    a("s_load_dwordx2 s[14:15], s[0:1], 16")
    a("s_load_dwordx2 s[8:9], s[0:1], 32")
    a("s_load_dwordx2 s[16:17], s[0:1], 40")
    a("s_load_dwordx2 s[12:13], s[0:1], 56")
    a("s_load_dwordx2 s[10:11], s[0:1], 64")
    a(f"v_and_b32 v{V_LANE}, 63, v0")
    a("v_lshrrev_b32 v2, 6, v0")
    a("s_and_b32 s62, s2, 7")
    a(f"v_readfirstlane_b32 s{S_WAVE}, v2")
    a("s_lshr_b32 s63, s2, 3")
    a("s_and_b32 s64, s62, 1")
    a("s_lshl_b32 s64, s64, 3")
    a("s_and_b32 s65, s63, 7")
    a(f"s_add_u32 s{S_T}, s64, s65")
    a("s_lshr_b32 s64, s62, 1")
    a("s_lshr_b32 s65, s63, 3")
    a("s_lshl_b32 s64, s64, 1")
    a("s_and_b32 s66, s65, 1")
    a(f"s_add_u32 s{S_IDX}, s64, s66")
    a("s_waitcnt lgkmcnt(0)")
    srd(a, 20, 4, S * D * 2)
    srd(a, 28, 10, WS_USED)
    srd(a, 32, 12, 256)
    a("s_cmp_ge_u32 s65, 2")
    a("s_cbranch_scc1 K1_HQ")
    gen_kv(a)
    gen_hq(a)
    a.label("K1_EXIT")
    a("s_waitcnt vmcnt(0)")
    a.label("K1_END")
    a("s_endpgm")
    return a


if __name__ == "__main__":
    print(gen_k1().text())
```

```python
from asmlib import *
from layout import *

K2 = "plab_out_kernel"
RS = 336
REG = 64 * RS
KV0 = 4 * REG
LW = KV0 + 16384
K2_LDS = LW + 64
SPIN_MAX = 1 << 20

ACC = 16
SET0 = 96
V_XR0, V_XR1 = 240, 244
V_G0, V_G1, V_L0, V_L1 = 248, 249, 250, 251


def acc(j, tt):
    return ACC + (j * 4 + tt) * 4


def wfr(d, j):
    return SET0 + 36 * d + 4 * j


def afr(d, tt):
    return SET0 + 36 * d + 20 + 4 * tt


def srd(a, r, lo, size):
    a(f"s_mov_b32 s{r}, s{lo}")
    a(f"s_mov_b32 s{r+1}, s{lo+1}")
    a(f"s_mov_b32 s{r+2}, {size}")
    a(f"s_mov_b32 s{r+3}, 0x20000")


def head_num_mask(j, s, b):
    m = 0
    for l in range(64):
        e, g = 16 * j + (l & 15), l >> 4
        if e // 20 == (32 * s + 16 * b + 4 * g) // 20:
            m |= 1 << l
    return m


def head_den_mask(jb, jmax, s, b):
    m = 0
    for l in range(64):
        row, g = l & 15, l >> 4
        gp, rp = row >> 2, row & 3
        j = jb + rp
        if j <= jmax and (16 * j + 4 * gp) // 20 == (32 * s + 16 * b + 4 * g) // 20:
            m |= 1 << l
    return m


def load_group(a, d, which, first=False):
    kind, i = which
    if kind == "w":
        if i < 4:
            a(f"buffer_load_dwordx4 {vr(wfr(d, i), 4)}, v1, s[12:15], s31 offen offset:{1024*i}")
        else:
            a(f"buffer_load_dwordx4 {vr(wfr(d, i), 4)}, v2, s[12:15], s31 offen")
    else:
        a(f"buffer_load_dwordx4 {vr(afr(d, i), 4)}, v1, s[12:15], s30 offen offset:{1024*i} sc1")


def slot(a, d, wait, loads, check=None):
    a(f"s_waitcnt vmcnt({wait})")
    for j in range(5):
        for tt in range(4):
            a(f"v_mfma_f32_16x16x32_bf16 {vr(acc(j, tt), 4)}, {vr(wfr(d, j), 4)}, {vr(afr(d, tt), 4)}, {vr(acc(j, tt), 4)}")
            if loads and j == 4:
                if tt == 0 and check:
                    check()
                if tt >= 1:
                    load_group(a, d, ("a", tt - 1))
        if loads and j < 4:
            load_group(a, d, ("w", j))
    if loads:
        load_group(a, d, ("w", 4))
        load_group(a, d, ("a", 3))
        a("s_add_u32 s30, s30, 4096")
        a("s_add_u32 s31, s31, 40960")


def gen_main(a):
    a.comment("main waves: stream the K quarter of this wave")
    a("s_mul_i32 s27, s24, 19")
    a("s_cmp_eq_u32 s24, 3")
    a("s_cselect_b32 s27, 56, s27")
    a("s_lshr_b32 s28, s24, 1")
    a("s_add_u32 s28, s28, 1")
    a(f"s_mul_i32 s30, s25, {NSIG}")
    a("s_add_u32 s30, s30, s27")
    a("s_lshl_b32 s30, s30, 12")
    a("s_mul_i32 s31, s27, 40")
    a("s_mul_i32 s33, s26, 5")
    a("s_add_u32 s31, s31, s33")
    a("s_lshl_b32 s31, s31, 10")
    a(f"s_add_u32 s31, s31, {WF}")
    a("s_mov_b32 s34, s30")
    a("s_mov_b32 s35, s31")
    for d in range(4):
        if d < 2:
            a(f"s_cmp_gt_u32 s28, {d}")
            a(f"s_cselect_b32 s30, {OOB}, s34")
            a(f"s_cselect_b32 s31, {OOB}, s35")
            a("s_cselect_b32 s36, 0, 4096")
            a("s_cselect_b32 s37, 0, 40960")
        for j in range(5):
            load_group(a, d, ("w", j))
        for tt in range(4):
            load_group(a, d, ("a", tt))
        if d < 2:
            a("s_add_u32 s34, s34, s36")
            a("s_add_u32 s35, s35, s37")
            if d == 1:
                a("s_mov_b32 s30, s34")
                a("s_mov_b32 s31, s35")
        else:
            a("s_add_u32 s30, s30, 4096")
            a("s_add_u32 s31, s31, 40960")
    for r in range(ACC, ACC + 80):
        a(f"v_mov_b32 v{r}, 0")
    a("s_barrier")
    a("s_mov_b32 s38, 0")
    a.label("K2_LOOP")

    def check():
        a("s_cmp_eq_u32 s38, 2")
        a("s_cbranch_scc1 K2_OWAIT")
        a.label("K2_OBACK")

    for d in range(4):
        slot(a, d, 27, True, check if d == 3 else None)
    a("s_add_u32 s38, s38, 1")
    a("s_cmp_lt_u32 s38, 4")
    a("s_cbranch_scc1 K2_LOOP")
    for d in range(4):
        slot(a, d, 27 - 9 * d, False)
    a("v_and_b32 v4, 15, v3")
    a("v_lshrrev_b32 v5, 4, v3")
    a(f"v_mul_u32_u24 v4, {RS}, v4")
    a("v_lshl_add_u32 v4, v5, 4, v4")
    a(f"s_mul_i32 s27, s24, {REG}")
    a("v_add_u32 v4, s27, v4")
    for tt in range(4):
        for j in range(5):
            a(f"ds_write_b128 v4, {vr(acc(j, tt), 4)} offset:{tt*16*RS + j*64}")
    a("s_branch K2_FINAL")
    a.label("K2_OWAIT")
    a(f"v_mov_b32 v4, {LW}")
    a(f"s_mov_b32 s39, {SPIN_MAX}")
    a.label("K2_OWAIT_L")
    a("ds_read_b32 v5, v4 offset:4")
    a("s_waitcnt lgkmcnt(0)")
    a("v_readfirstlane_b32 s40, v5")
    a("s_sub_u32 s39, s39, 1")
    a("s_cmp_eq_u32 s39, 0")
    a("s_cbranch_scc1 K2_OBACK")
    a("s_cmp_eq_u32 s40, 0")
    a("s_cbranch_scc0 K2_OBACK")
    a("s_sleep 1")
    a("s_branch K2_OWAIT_L")


def gen_ojob(a, half):
    L = f"K2_O{half}"
    a.label(L)
    if half == 0:
        tiles, s_list, s_lo = list(range(0, 6)), [0, 1, 2, 3], 0
        dens = [(0, 5, [0, 1, 2]), (4, 5, [1, 2, 3])]
    else:
        tiles, s_list, s_lo = list(range(6, 10)), [2, 3, 4], 2
        dens = [(6, 9, [2, 3, 4])]
    PQR = 8
    NUM = 24
    DEN = 48
    TMP = 64
    AF = 128
    pq = lambda s: PQR + 4 * (s - s_lo)
    a("s_mul_i32 s36, s29, 20")
    a("s_mul_i32 s37, s33, 5")
    a("s_add_u32 s36, s36, s37")
    a(f"s_add_u32 s36, s36, {s_lo}")
    a("s_lshl_b32 s36, s36, 1")
    a("s_add_u32 s36, s36, s32")
    a("s_lshl_b32 s36, s36, 10")
    a(f"s_add_u32 s36, s36, {PQ}")
    for s in s_list:
        k = s - s_lo
        if k < 2:
            a(f"buffer_load_dwordx4 {vr(pq(s), 4)}, v1, s[12:15], s36 offen offset:{2048*k}")
        else:
            a(f"buffer_load_dwordx4 {vr(pq(s), 4)}, v2, s[12:15], s36 offen offset:{2048*(k-2)}")
    a("s_waitcnt vmcnt(0)")
    a(f"v_mov_b32 v4, {LW}")
    a("v_mov_b32 v5, 1")
    a("ds_add_u32 v4, v5")
    a(f"s_mov_b32 s39, {SPIN_MAX}")
    a.label(L + "_W")
    a("ds_read_b32 v5, v4")
    a("s_waitcnt lgkmcnt(0)")
    a("v_readfirstlane_b32 s40, v5")
    a("s_sub_u32 s39, s39, 1")
    a("s_cmp_eq_u32 s39, 0")
    a(f"s_cbranch_scc1 {L}_G")
    a("s_cmp_ge_u32 s40, 256")
    a(f"s_cbranch_scc0 {L}_W")
    a.label(L + "_G")
    a("v_and_b32 v4, 15, v3")
    a("v_lshrrev_b32 v5, 4, v3")
    a("v_mul_u32_u24 v4, 80, v4")
    a("v_lshl_add_u32 v4, v5, 4, v4")
    a(f"v_add_u32 v4, {KV0}, v4")
    ZA = 56
    for s in s_list:
        for b in range(2):
            z = ZA + 2 * (s - s_lo) + b
            a(f"v_lshlrev_b32 v6, 2, v5")
            a(f"v_add_u32 v6, {32*s + 16*b}, v6")
            a(f"v_mul_u32_u24 v7, 3277, v6")
            a("v_lshrrev_b32 v7, 16, v7")
            a("v_mul_u32_u24 v7, 1600, v7")
            a(f"v_lshl_add_u32 v7, v6, 2, v7")
            a(f"v_add_u32 v{z}, {KV0 + 1600}, v7")
    frags = []
    from_s = {}
    for j in tiles:
        h_lo, h_hi = (16 * j) // 20, (16 * j + 15) // 20
        for s in range((20 * h_lo) // 32, (20 * h_hi + 19) // 32 + 1):
            frags.append(("n", j, s))
    for di, (jb, jmax, sl) in enumerate(dens):
        for s in sl:
            frags.append(("d", di, s))
    started = set()
    batches = [frags[i:i + 4] for i in range(0, len(frags), 4)]

    def issue(bi):
        for fi, (kind, x, s) in enumerate(batches[bi]):
            t = TMP + 32 * (bi & 1) + 8 * fi
            for b in range(2):
                if kind == "n":
                    a(f"ds_read_b128 {vr(t + 4*b, 4)}, v4 offset:{1280*x + 128*s + 64*b}")
                else:
                    a(f"ds_read_b128 {vr(t + 4*b, 4)}, v{ZA + 2*(s - s_lo) + b}")

    issue(0)
    for bi, batch in enumerate(batches):
        if bi + 1 < len(batches):
            issue(bi + 1)
            a(f"s_waitcnt lgkmcnt({2*len(batches[bi+1])})")
        else:
            a("s_waitcnt lgkmcnt(0)")
        for fi, (kind, x, s) in enumerate(batch):
            t = TMP + 32 * (bi & 1) + 8 * fi
            f = AF + 4 * fi
            for b in range(2):
                if kind == "n":
                    m = head_num_mask(x, s, b)
                else:
                    m = head_den_mask(dens[x][0], dens[x][1], s, b)
                if m == 0:
                    a(f"v_mov_b32 v{f + 2*b}, 0")
                    a(f"v_mov_b32 v{f + 2*b + 1}, 0")
                    continue
                a(f"v_cvt_pk_bf16_f32 v{f + 2*b}, v{t + 4*b}, v{t + 4*b + 1}")
                a(f"v_cvt_pk_bf16_f32 v{f + 2*b + 1}, v{t + 4*b + 2}, v{t + 4*b + 3}")
                if m != (1 << 64) - 1:
                    a(f"s_mov_b32 s40, 0x{m & 0xffffffff:x}")
                    a(f"s_mov_b32 s41, 0x{m >> 32:x}")
                    a(f"v_cndmask_b32 v{f + 2*b}, 0, v{f + 2*b}, s[40:41]")
                    a(f"v_cndmask_b32 v{f + 2*b + 1}, 0, v{f + 2*b + 1}, s[40:41]")
        for fi, (kind, x, s) in enumerate(batch):
            f = AF + 4 * fi
            dst = NUM + 4 * tiles.index(x) if kind == "n" else DEN + 4 * x
            c = vr(dst, 4) if (kind, x) in started else "0"
            started.add((kind, x))
            a(f"v_mfma_f32_16x16x32_bf16 {vr(dst, 4)}, {vr(f, 4)}, {vr(pq(s), 4)}, {c}")
    a("s_mov_b32 s40, 0x358637bd")
    for ti, j in enumerate(tiles):
        di = 0 if (half == 1 or j < 4) else 1
        dn = DEN + 4 * di + (j - dens[di][0])
        a(f"v_add_f32 v{TMP + ti}, s40, v{dn}")
    for ti, j in enumerate(tiles):
        a(f"v_rcp_f32 v{TMP + ti}, v{TMP + ti}")
    for ti, j in enumerate(tiles):
        for r in range(4):
            a(f"v_mul_f32 v{NUM + 4*ti + r}, v{NUM + 4*ti + r}, v{TMP + ti}")
    npair = len(tiles) // 2
    for p in range(npair):
        for hh in range(2):
            n = NUM + 4 * (2 * p + hh)
            a(f"v_cvt_pk_bf16_f32 v{AF + 4*p + 2*hh}, v{n}, v{n+1}")
            a(f"v_cvt_pk_bf16_f32 v{AF + 4*p + 2*hh + 1}, v{n+2}, v{n+3}")
    a("s_mul_i32 s36, s33, 5")
    a("s_mul_i32 s37, s33, 14")
    a("s_cmp_ge_u32 s33, 2")
    a("s_cselect_b32 s40, 1, 0")
    a("s_sub_u32 s37, s37, s40")
    a("s_cmp_ge_u32 s33, 3")
    a("s_cselect_b32 s40, 1, 0")
    a("s_sub_u32 s37, s37, s40")
    a("s_add_u32 s37, s37, 14")
    a("s_add_u32 s36, s36, s37")
    a(f"s_add_u32 s36, s36, {tiles[0] // 2}")
    a(f"s_mul_i32 s37, s25, {NSIG}")
    a("s_add_u32 s36, s36, s37")
    a("s_lshl_b32 s36, s36, 2")
    a("s_and_b32 s37, s26, 1")
    a("s_lshl_b32 s37, s37, 1")
    a("s_add_u32 s37, s37, s32")
    a("s_add_u32 s36, s36, s37")
    a("s_lshl_b32 s36, s36, 10")
    for p in range(npair):
        a(f"buffer_store_dwordx4 {vr(AF + 4*p, 4)}, v1, s[12:15], s36 offen sc1")
        if p + 1 < npair:
            a("s_add_u32 s36, s36, 4096")
    a("s_waitcnt vmcnt(0)")
    a("s_lshl_b32 s36, s25, 7")
    a(f"s_add_u32 s36, s36, {FLG}")
    a("s_lshl_b32 s37, s26, 2")
    a("s_add_u32 s37, s37, s24")
    a("s_sub_u32 s37, s37, 4")
    a("s_lshl_b32 s37, s37, 2")
    a("s_add_u32 s37, s37, s36")
    a("v_mov_b32 v6, 1")
    a("v_mov_b32 v7, 0")
    a("buffer_store_dword v6, v7, s[12:15], s37 offen sc1")
    if half == 0:
        a("s_cmp_eq_u32 s24, 4")
        a("s_cbranch_scc0 K2_FINAL")
        a("v_and_b32 v6, 31, v3")
        a("v_lshlrev_b32 v6, 2, v6")
        a(f"s_mov_b32 s39, {SPIN_MAX}")
        a.label("K2_POLL")
        a("buffer_load_dword v7, v6, s[12:15], s36 offen sc1")
        a("s_waitcnt vmcnt(0)")
        a("v_cmp_eq_u32 vcc, 1, v7")
        a("s_sub_u32 s39, s39, 1")
        a("s_cmp_eq_u32 s39, 0")
        a("s_cbranch_scc1 K2_POLL_D")
        a("s_cmp_eq_u64 vcc, -1")
        a("s_cbranch_scc1 K2_POLL_D")
        a("s_sleep 2")
        a("s_branch K2_POLL")
        a.label("K2_POLL_D")
        a(f"v_mov_b32 v4, {LW}")
        a("v_mov_b32 v5, 1")
        a("ds_write_b32 v4, v5 offset:4")
    a("s_branch K2_FINAL")


def gen_k2():
    a = Asm()
    a("s_cmp_ge_u32 s2, 256")
    a("s_cbranch_scc1 K2_END")
    a("s_load_dwordx2 s[4:5], s[0:1], 0")
    a("s_load_dwordx2 s[6:7], s[0:1], 48")
    a("s_load_dwordx2 s[8:9], s[0:1], 64")
    a("v_and_b32 v3, 63, v0")
    a("v_lshrrev_b32 v4, 6, v0")
    a("v_lshlrev_b32 v1, 4, v3")
    a("v_readfirstlane_b32 s24, v4")
    a("v_add_u32 v2, 4096, v1")
    a("s_and_b32 s27, s2, 7")
    a("s_lshr_b32 s28, s2, 3")
    a("s_lshr_b32 s25, s27, 1")
    a("s_lshl_b32 s25, s25, 3")
    a("s_and_b32 s29, s28, 7")
    a("s_add_u32 s25, s25, s29")
    a("s_and_b32 s26, s27, 1")
    a("s_lshl_b32 s26, s26, 2")
    a("s_lshr_b32 s28, s28, 3")
    a("s_add_u32 s26, s26, s28")
    a("v_mul_u32_u24 v5, 6554, v0")
    a("v_lshrrev_b32 v5, 16, v5")
    a("v_mul_u32_u24 v6, 10, v5")
    a("v_sub_u32 v6, v0, v6")
    a("v_add_u32 v7, 512, v0")
    a("v_mul_u32_u24 v8, 6554, v7")
    a("v_lshrrev_b32 v8, 16, v8")
    a("v_mul_u32_u24 v9, 10, v8")
    a("v_sub_u32 v9, v7, v9")
    a("s_mul_i32 s27, s25, 81920")
    a("s_mul_i32 s28, s26, 160")
    a("s_add_u32 s27, s27, s28")
    a(f"v_mul_u32_u24 v{V_G0}, 1280, v5")
    a(f"v_lshl_add_u32 v{V_G0}, v6, 4, v{V_G0}")
    a(f"v_add_u32 v{V_G0}, s27, v{V_G0}")
    a(f"v_mul_u32_u24 v{V_G1}, 1280, v8")
    a(f"v_lshl_add_u32 v{V_G1}, v9, 4, v{V_G1}")
    a(f"v_add_u32 v{V_G1}, s27, v{V_G1}")
    a("v_mov_b32 v10, 0x7ff00000")
    a("v_cmp_gt_u32 vcc, 128, v0")
    a(f"v_cndmask_b32 v{V_G1}, v10, v{V_G1}, vcc")
    a(f"v_mul_u32_u24 v{V_L0}, {RS}, v5")
    a(f"v_lshl_add_u32 v{V_L0}, v6, 5, v{V_L0}")
    a(f"v_mul_u32_u24 v{V_L1}, {RS}, v8")
    a(f"v_lshl_add_u32 v{V_L1}, v9, 5, v{V_L1}")
    a("v_mov_b32 v10, 0")
    a(f"v_cndmask_b32 v{V_L1}, v10, v{V_L1}, vcc")
    a("s_waitcnt lgkmcnt(0)")
    srd(a, 12, 8, WS_USED)
    srd(a, 16, 4, S * D * 2)
    srd(a, 20, 6, S * D * 2)
    a(f"buffer_load_dwordx4 {vr(V_XR0, 4)}, v{V_G0}, s[16:19], 0 offen")
    a(f"buffer_load_dwordx4 {vr(V_XR1, 4)}, v{V_G1}, s[16:19], 0 offen")
    a("s_cmp_ge_u32 s24, 4")
    a("s_cbranch_scc1 K2_SIDE")
    gen_main(a)

    a.label("K2_SIDE")
    a("s_and_b32 s32, s24, 1")
    a("s_lshr_b32 s33, s26, 1")
    a("s_and_b32 s29, s26, 1")
    a("s_lshl_b32 s27, s25, 1")
    a("s_add_u32 s29, s29, s27")
    a("s_mul_i32 s36, s33, 13440")
    a(f"s_add_u32 s36, s36, {KVA}")
    a("s_sub_u32 s37, s24, 4")
    a("s_lshl_b32 s37, s37, 10")
    a("s_add_u32 s36, s36, s37")
    a(f"s_add_u32 s37, s37, {KV0}")
    for n in range(4):
        a(f"s_add_u32 m0, s37, {4096*n}")
        a(f"buffer_load_dwordx4 v1, s[12:15], s36 offen lds")
        if n < 3:
            a("s_add_u32 s36, s36, 4096")
    a("v_mov_b32 v4, 0")
    a("v_mov_b32 v5, 0")
    a(f"v_mov_b32 v6, {LW}")
    a("ds_write_b64 v6, v[4:5]")
    a("s_waitcnt lgkmcnt(0)")
    a("s_barrier")
    a("s_cmp_ge_u32 s24, 6")
    a("s_cbranch_scc1 K2_O1")
    gen_ojob(a, 0)
    gen_ojob(a, 1)

    a.label("K2_FINAL")
    a("s_waitcnt lgkmcnt(0)")
    a("s_barrier")
    for rnd, (vl, vg, xr) in enumerate(((V_L0, V_G0, V_XR0), (V_L1, V_G1, V_XR1))):
        if rnd == 1:
            a("s_cmp_ge_u32 s24, 2")
            a("s_cbranch_scc1 K2_DONE")
        T = 16
        for w in range(4):
            for hh in range(2):
                off = w * REG + hh * 16
                if off < 65536:
                    a(f"ds_read_b128 {vr(T + 8*w + 4*hh, 4)}, v{vl} offset:{off}")
        a("s_waitcnt vmcnt(0)")
        for i in range(4):
            a(f"v_lshlrev_b32 v{64 + 2*i}, 16, v{xr + i}")
            a(f"v_and_b32 v{64 + 2*i + 1}, 0xffff0000, v{xr + i}")
        a("s_waitcnt lgkmcnt(0)")
        for i in range(8):
            a(f"v_add_f32 v{T + i}, v{T + i}, v{T + 8 + i}")
            a(f"v_add_f32 v{T + 16 + i}, v{T + 16 + i}, v{T + 24 + i}")
        for i in range(8):
            a(f"v_add_f32 v{T + i}, v{T + i}, v{T + 16 + i}")
        for i in range(8):
            a(f"v_add_f32 v{T + i}, v{T + i}, v{64 + i}")
        for i in range(4):
            a(f"v_cvt_pk_bf16_f32 v{72 + i}, v{T + 2*i}, v{T + 2*i + 1}")
        a(f"buffer_store_dwordx4 v[72:75], v{vg}, s[20:23], 0 offen")
    a.label("K2_DONE")
    a("s_waitcnt vmcnt(0)")
    a.label("K2_END")
    a("s_endpgm")
    return a


if __name__ == "__main__":
    t = gen_k2().text()
    print(t)
```

```python
S, D, DFF, H, DH = 2048, 640, 1728, 32, 20
NSIG = 74
ACT = 0
PQ = 0x0A00000
WF = 0x0D00000
KVA = 0x1000000
FLG = KVA + 0xE000
ZERO_BYTES = 0xF000
STAMPS = 0x1010000
WS_USED = 0x1010000 + 0x80000
OOB = 0x40000000

H0 = [0, 14, 28, 41, 54]
SIG0 = [0, 19, 38, 56]
OBASE = [14, 28, 41, 54]


def sigma_h(s):
    return s + 5 * ((s >= 14) + (s >= 28) + (s >= 41))


def sigma_o(s):
    return s + OBASE[s // 5]


def kappa(g, jj):
    return 16 * (jj >> 2) + 4 * g + (jj & 3)
```

```python
import sys
sys.path.insert(0, "gen")
import build, k1, k2
OUT = "parallel_sum__linear_attn_block__dense_activation_relu__prompt.s"
out = sys.argv[1] if len(sys.argv) > 1 else OUT
asm = build.build([(k1.K1, k1.gen_k1(), 256, 512, k1.K1_LDS, 256, 96),
                   (k2.K2, k2.gen_k2(), 256, 512, k2.K2_LDS, 256, 96)])
open(out, "w").write(asm)
print(out, len(asm), "bytes")
```

```python
import re

TRANS = ("v_exp_f32", "v_log_f32", "v_rcp_f32", "v_rsq_f32", "v_sqrt_f32", "v_sin_f32", "v_cos_f32")


def vr(a, n=1):
    return f"v{a}" if n == 1 else f"v[{a}:{a+n-1}]"


def sr(a, n=1):
    return f"s{a}" if n == 1 else f"s[{a}:{a+n-1}]"


_REG = re.compile(r"^(-|abs\()?\s*([vsa])(\d+)\)?$|^(-|abs\()?\s*([vsa])\[(\d+):(\d+)\]\)?$")


def regs_of(tok):
    tok = tok.strip()
    if tok in ("vcc", "vcc_lo", "vcc_hi"):
        return {("s", "vcc")}
    if tok == "m0":
        return {("s", "m0")}
    if tok in ("exec", "exec_lo", "exec_hi"):
        return {("s", "exec")}
    m = _REG.match(tok)
    if not m:
        return set()
    if m.group(2):
        return {(m.group(2), int(m.group(3)))}
    return {(m.group(5), i) for i in range(int(m.group(6)), int(m.group(7)) + 1)}


class Ins:
    __slots__ = ("text", "op", "ops", "kind", "w", "r", "states", "passes", "cread", "sdata")

    def __init__(self, text):
        self.text = text
        t = text.split(";")[0].strip()
        self.op, _, rest = t.partition(" ")
        op = self.op
        raw = [x.strip() for x in rest.split(",")] if rest.strip() else []
        ops = []
        for x in raw:
            ops.append(x.split(" ")[0] if not x.startswith("abs(") else x)
        self.ops = ops
        self.w, self.r = set(), set()
        self.cread, self.sdata = set(), set()
        self.states = 1
        self.passes = 0
        R = regs_of
        if op == "s_nop":
            self.kind = "nop"
            self.states = int(ops[0]) + 1
        elif op.startswith("v_mfma"):
            self.kind = "mfma"
            self.passes = 8 if "32x32" in op else 4
            self.w = R(ops[0])
            self.r = R(ops[1]) | R(ops[2]) | R(ops[3])
            self.cread = R(ops[3])
        elif op.startswith("v_cmp"):
            self.kind = "valu"
            self.w = R(ops[0])
            if op.startswith("v_cmpx"):
                self.w |= {("s", "exec")}
            for x in ops[1:]:
                self.r |= R(x)
        elif op.startswith("v_readfirstlane") or op.startswith("v_readlane"):
            self.kind = "valu"
            self.w = R(ops[0])
            for x in ops[1:]:
                self.r |= R(x)
        elif op.startswith("v_permlane") and "swap" in op:
            self.kind = "valu"
            self.w = R(ops[0]) | R(ops[1])
            self.r = set(self.w)
        elif op.startswith("v_"):
            self.kind = "valu"
            self.w = R(ops[0])
            rest_ops = ops[1:]
            if op.startswith(("v_add_co", "v_sub_co", "v_addc_co", "v_subb_co")):
                self.w |= R(ops[1])
                rest_ops = ops[2:]
            for x in rest_ops:
                self.r |= R(x)
            if op.startswith(("v_fmac", "v_dot2c", "v_mac", "v_writelane")) or "dpp" in t or "sdwa" in op:
                self.r |= R(ops[0])
            if op.startswith("v_cndmask") and len(ops) == 3:
                self.r |= {("s", "vcc")}
        elif op.startswith("ds_"):
            self.kind = "ds"
            if op.startswith(("ds_read", "ds_bpermute", "ds_permute", "ds_swizzle")) or "_rtn" in op:
                self.w = R(ops[0])
                for x in ops[1:]:
                    self.r |= R(x)
            else:
                for x in ops:
                    self.r |= R(x)
        elif op.startswith(("buffer_", "global_")):
            self.kind = "vmem"
            lds = " lds" in (" " + t)
            if op.startswith(("buffer_inv", "buffer_wbl2")):
                pass
            elif op.startswith("buffer_load") and not lds:
                self.w = R(ops[0])
                for x in ops[1:]:
                    self.r |= R(x)
            elif op.startswith("buffer_load") and lds:
                for x in ops:
                    self.r |= R(x)
                self.r |= {("s", "m0")}
            elif op.startswith("global_load") and "lds" not in op:
                self.w = R(ops[0])
                for x in ops[1:]:
                    self.r |= R(x)
            elif op.startswith("buffer_store") or op.startswith("buffer_atomic"):
                for x in ops:
                    self.r |= R(x)
                if op.startswith("buffer_atomic") and " sc0" in t:
                    self.w = R(ops[0])
                if "dwordx4" in op or "dwordx3" in op:
                    self.sdata = R(ops[0])
            else:
                for x in ops:
                    self.r |= R(x)
                if op.startswith("global_store") and ("dwordx4" in op or "dwordx3" in op):
                    self.sdata = R(ops[1])
        elif op.startswith("s_"):
            self.kind = "salu"
            if op.startswith(("s_cmp", "s_cbranch", "s_branch", "s_waitcnt", "s_barrier", "s_endpgm", "s_sleep",
                              "s_setprio", "s_bitcmp", "s_setpc")):
                for x in ops:
                    self.r |= R(x)
            else:
                self.w = R(ops[0]) if ops else set()
                for x in ops[1:]:
                    self.r |= R(x)
                if "saveexec" in op:
                    self.w |= {("s", "exec")}
        else:
            raise ValueError("unknown instruction: " + text)

    @property
    def is_trans(self):
        return self.op.replace("_e32", "").replace("_e64", "") in TRANS


def need_states(p, c):
    n = 0
    pv = {x for x in p.w if x[0] in "va"}
    ps = {x for x in p.w if x[0] == "s"}
    if p.kind == "valu":
        if pv & c.r:
            if c.kind == "mfma":
                n = max(n, 2)
            if c.op.startswith(("v_readfirstlane", "v_readlane")):
                n = max(n, 1)
            if c.op.startswith("v_permlane") or "dpp" in c.text:
                n = max(n, 2)
            if p.is_trans and c.kind == "valu" and not c.is_trans:
                n = max(n, 1)
            if p.is_trans and c.kind == "valu" and c.is_trans:
                n = max(n, 1)
            if "sdwa" in p.text or "op_sel" in p.text and not p.op.startswith("v_pk"):
                if c.kind == "valu":
                    n = max(n, 1)
        if ps & c.r:
            if c.kind == "valu":
                n = max(n, 4 if c.op.startswith(("v_readlane", "v_writelane")) else 2)
            if c.kind == "vmem":
                n = max(n, 5)
            if c.kind == "salu":
                n = max(n, 4)
            if c.kind == "mfma":
                n = max(n, 4)
        if ("s", "exec") in ps and c.kind in ("valu", "mfma"):
            n = max(n, 5 if "dpp" in c.text else 4)
    if p.kind == "mfma":
        P = p.passes
        raw_other = {4: 8, 8: 12}[P]
        if c.kind == "mfma":
            ab = regs_of(c.ops[1]) | regs_of(c.ops[2])
            if p.w & ab:
                n = max(n, raw_other)
            if p.w & c.cread and not (p.w == c.cread and p.passes == c.passes):
                n = max(n, {4: 6, 8: 10}[P])
            if p.w & c.w and not (p.w == c.cread):
                n = max(n, {4: 6, 8: 10}[P])
        else:
            if p.w & (c.r | c.w):
                n = max(n, raw_other)
            if c.kind == "valu" and p.cread & c.w:
                n = max(n, {4: 3, 8: 7}[P])
    if p.kind == "salu" and ("s", "m0") in p.w and c.kind == "vmem" and ("s", "m0") in c.r:
        n = max(n, 1)
    if p.kind == "salu" and ("s", "exec") in p.w and "dpp" in c.text:
        n = max(n, 1)
    if p.sdata and (p.sdata & c.w):
        n = max(n, 2)
    return n


class Asm:
    def __init__(self):
        self.items = []

    def __call__(self, text):
        for line in text.split("\n"):
            line = line.strip()
            if line:
                self.items.append(line)

    def label(self, name):
        self.items.append(name + ":")

    def comment(self, text):
        self.items.append("; " + text)

    def raw(self, text):
        self.items.append("#RAW#" + text)

    def padded(self):
        out = []
        hist = []
        pos = 0
        W = 14

        def pad_for(c):
            nonlocal pos
            need = 0
            for (p, ppos) in hist:
                k = need_states(p, c)
                if k:
                    have = pos - ppos - p.states
                    need = max(need, k - have)
            while need > 0:
                n = min(need, 16)
                out.append(f"s_nop {n-1}")
                i = Ins(f"s_nop {n-1}")
                hist.append((i, pos))
                pos += n
                need -= n

        for it in self.items:
            if it.startswith("#RAW#"):
                out.append(it[5:])
                continue
            if it.startswith(";") or it.endswith(":") or it.startswith("."):
                out.append(it)
                continue
            c = Ins(it)
            pad_for(c)
            out.append(it)
            hist.append((c, pos))
            pos += c.states
            while hist and pos - hist[0][1] > W + 16:
                hist.pop(0)
        return out

    def check_branches(self, lines):
        idx = {l[:-1]: i for i, l in enumerate(lines) if l.endswith(":") and not l.startswith(";")}
        isins = lambda l: not (l.startswith(";") or l.endswith(":") or l.startswith(".") or not l.strip())
        problems = []
        for i, l in enumerate(lines):
            if not isins(l):
                continue
            op = l.split()[0]
            if op.startswith(("s_cbranch", "s_branch")):
                tgt = l.split()[1]
                if tgt not in idx:
                    continue
                before = []
                j = i
                while j >= 0 and len(before) < 16:
                    if isins(lines[j]):
                        before.append(Ins(lines[j]))
                    j -= 1
                before.reverse()
                after = []
                j = idx[tgt]
                while j < len(lines) and len(after) < 14:
                    if isins(lines[j]):
                        after.append(Ins(lines[j]))
                        if after[-1].op in ("s_branch", "s_endpgm"):
                            break
                    j += 1
                seq = before + after
                posn = []
                p = 0
                for x in seq:
                    posn.append(p)
                    p += x.states
                for a in range(len(before)):
                    for b in range(len(before), len(seq)):
                        k = need_states(seq[a], seq[b])
                        if k and posn[b] - posn[a] - seq[a].states < k:
                            problems.append((seq[a].text, seq[b].text, k))
        return problems

    def text(self):
        lines = self.padded()
        probs = self.check_branches(lines)
        if probs:
            for p in probs:
                print("HAZARD across branch:", p)
            raise SystemExit("hazards across branches")
        out = []
        for l in lines:
            if l.endswith(":") or l.startswith(".") or l.startswith(";"):
                out.append(l)
            else:
                out.append("  " + l)
        return "\n".join(out) + "\n"


def kernel_header(name):
    return (f".globl {name}\n.p2align 8\n.type {name},@function\n{name}:\n")


def kernel_desc(name, vgpr=256, sgpr=96, accum=256):
    return (f".amdhsa_kernel {name}\n  .amdhsa_next_free_vgpr {vgpr}\n  .amdhsa_next_free_sgpr {sgpr}\n"
            f"  .amdhsa_accum_offset {accum}\n  .amdhsa_group_segment_fixed_size 0\n  .amdhsa_kernarg_size 72\n"
            f"  .amdhsa_user_sgpr_count 2\n  .amdhsa_user_sgpr_kernarg_segment_ptr 1\n"
            f"  .amdhsa_system_sgpr_workgroup_id_x 1\n.end_amdhsa_kernel\n")


DIAG = False
EXP = set()


def stamp(a, i):
    if DIAG:
        a(f"{'s_memtime' if 'cyc' in EXP else 's_memrealtime'} s[{80+2*i}:{81+2*i}]")


def stamp_flush(a, launch, wave_s, srd, stamps_off):
    if not DIAG:
        return
    a("s_waitcnt vmcnt(0) lgkmcnt(0)")
    a(f"s_lshl_b32 s78, s2, 3")
    a(f"s_add_u32 s78, s78, s{wave_s}")
    a(f"s_add_u32 s78, s78, {launch*2048}")
    a(f"s_lshl_b32 s78, s78, 6")
    a(f"s_add_u32 s78, s78, {stamps_off}")
    a("v_mov_b32 v0, 0")
    for i in range(8):
        a(f"v_mov_b32 v2, s{80+2*i}")
        a(f"v_mov_b32 v3, s{81+2*i}")
        a(f"buffer_store_dwordx2 v[2:3], v0, {srd}, s78 offen offset:{8*i}")
        a("s_waitcnt vmcnt(0)")
```

```python
import asmlib
from asmlib import *
from layout import *
from k2 import srd, SPIN_MAX

K1 = "plab_in_kernel"
SLOT = 16384
XB = 65536
ST = 16384
CS = ST + 1024
K1_LDS = 98304
VB = 5120 + 16
HB = 10496
JB = 0
KVR = 32768
NZERO = ZERO_BYTES // 4096

S_WAVE, S_T, S_IDX, S_A, S_B = 44, 45, 46, 47, 48
S_IT, S_XO, S_WO, S_WSTEP, S_LW0, S_LW1, S_LX, S_XE = 49, 50, 51, 52, 53, 54, 55, 56
S_LINE, S_ISQ, S_DUMMY, S_JOB = 57, 58, 59, 60
S_T64 = 61

V_LANE, V_X0, V_X1, V_W0, V_W1 = 1, 2, 3, 4, 5
V_S1A, V_S1B, V_S2A, V_S2B = 6, 7, 8, 9
V_T0, V_T1 = 10, 11
ONES = 12
V_ADR = 16
ACC = 32

LOG2E = 0x3fb8aa3b
EPS6 = 0x358637bd
EPS5 = 0x3727c5ac

HQ_TABLE = [["Q0", "Q1", "H8", "H9"], ["Q2", "Q3", "H10", "H11"], ["Q4", "H12", "H13", "H14"],
            ["Q5", "H15", "H16", "H17"], ["Q6", "H18", "H19", "H20"], ["Q7", "H21", "H22", "D22"],
            ["Q8", "H23", "H24", "D24"], ["Q9", "H25", "H26", "D26"]]


def hq_word(row):
    w = 0
    for i, c in enumerate(row):
        b = int(c[1:]) | (0x80 if c[0] == "Q" else 0) | (0x40 if c[0] == "D" else 0)
        w |= b << (8 * i)
    return w


def mfma(a, d, x, y, c=None):
    a(f"v_mfma_f32_16x16x32_bf16 {vr(d, 4)}, {vr(x, 4)}, {vr(y, 4)}, {c if c is not None else vr(d, 4)}")


def interleave(a, mf, fillers, per=2):
    fillers = list(fillers)
    E = asmlib.EXP
    if "nomfma" in E:
        mf = ["s_nop 0"] * len(mf)
    keep = lambda f: not (("nodma" in E and any(" lds" in i for i in f)) or ("noread" in E and f[0].startswith("ds_read"))
                          or ("nostats" in E and f[0].startswith("v_")))
    fillers = [f for f in fillers if keep(f)]
    n = len(mf)
    for i, m in enumerate(mf):
        a(m)
        left = n - i
        k = max(per if fillers else 0, -(-len(fillers) // left) if left else 0)
        for _ in range(min(k, len(fillers))):
            for ins in fillers.pop(0):
                a(ins)
    for f in fillers:
        for ins in f:
            a(ins)


def dma_fillers(p):
    f = []
    if p % 2 == 0:
        xs = (p >> 1) & 1
        f.append([f"s_cmp_lt_u32 s{S_XO}, 1280", f"s_cselect_b32 s{S_XE}, s{S_XO}, {OOB}",
                  f"s_add_u32 m0, s{S_LX}, {xs*SLOT}",
                  f"buffer_load_dwordx4 v{V_X0}, s[20:23], s{S_XE} offen lds"])
        f.append([f"s_add_u32 m0, s{S_LX}, {xs*SLOT + 1024}",
                  f"buffer_load_dwordx4 v{V_X1}, s[20:23], s{S_XE} offen lds",
                  f"s_add_u32 s{S_XO}, s{S_XO}, 128"])
    f.append([f"s_add_u32 m0, s{S_LW0}, {p*SLOT}",
              f"buffer_load_dwordx4 v{V_W0}, s[24:27], s{S_WO} offen lds"])
    f.append([f"s_add_u32 m0, s{S_LW1}, {p*SLOT}",
              f"buffer_load_dwordx4 v{V_W1}, s[24:27], s{S_WO} offen lds",
              f"s_add_u32 s{S_WO}, s{S_WO}, s{S_WSTEP}"])
    return f


def stats_fillers(xreg):
    f = []
    for i in range(4):
        r = xreg + i
        f.append([f"v_lshlrev_b32 v{V_T0}, 16, v{r}", f"v_and_b32 v{V_T1}, 0xffff0000, v{r}"])
        f.append([f"v_add_f32 v{V_S1A}, v{V_S1A}, v{V_T0}", f"v_fmac_f32 v{V_S2A}, v{V_T0}, v{V_T0}"])
        f.append([f"v_add_f32 v{V_S1B}, v{V_S1B}, v{V_T1}", f"v_fmac_f32 v{V_S2B}, v{V_T1}, v{V_T1}"])
    return f


def prologue_dma(a):
    def wload(slot):
        a(f"s_add_u32 m0, s{S_LW0}, {slot*SLOT}")
        a(f"buffer_load_dwordx4 v{V_W0}, s[24:27], s{S_WO} offen lds")
        a(f"s_add_u32 m0, s{S_LW1}, {slot*SLOT}")
        a(f"buffer_load_dwordx4 v{V_W1}, s[24:27], s{S_WO} offen lds")
        a(f"s_add_u32 s{S_WO}, s{S_WO}, s{S_WSTEP}")

    def xload(slot):
        a(f"s_add_u32 m0, s{S_LX}, {slot*SLOT}")
        a(f"buffer_load_dwordx4 v{V_X0}, s[20:23], s{S_XO} offen lds")
        a(f"s_add_u32 m0, s{S_LX}, {slot*SLOT + 1024}")
        a(f"buffer_load_dwordx4 v{V_X1}, s[20:23], s{S_XO} offen lds")
        a(f"s_add_u32 s{S_XO}, s{S_XO}, 128")
    a(f"s_mov_b32 s{S_WO}, 0")
    a(f"s_mov_b32 s{S_XO}, 0")
    wload(0); xload(0); wload(1); xload(1); wload(2); wload(3)


def line_dma_voffsets(a, qpar_expr_rows, stride_s, coloff_s):
    a(f"v_lshrrev_b32 v20, 3, v{V_LANE}")
    a(f"v_and_b32 v21, 7, v{V_LANE}")
    a(f"v_bfe_u32 v22, v{V_LANE}, 4, 1")
    for q, dst in ((0, V_W0), (1, V_W1)):
        a(f"v_or_b32 v23, {2*q}, v22")
        a("v_lshlrev_b32 v23, 1, v23")
        a("v_xor_b32 v23, v23, v21")
        a(f"s_lshl_b32 s{S_B}, s{S_A}, 3")
        a(f"s_add_u32 s{S_B}, s{S_B}, {8*q}")
        a(f"v_add_u32 v24, s{S_B}, v20")
        a(f"v_mul_lo_u32 v24, v24, s{stride_s}")
        a("v_lshl_add_u32 v24, v23, 4, v24")
        a(f"v_add_u32 v{dst}, s{coloff_s}, v24")


def x_dma_voffsets(a):
    a(f"v_lshrrev_b32 v20, 3, v{V_LANE}")
    a(f"v_and_b32 v21, 7, v{V_LANE}")
    a(f"v_lshrrev_b32 v22, 4, v{V_LANE}")
    a(f"s_lshl_b32 s{S_A}, s{S_T}, 7")
    a(f"s_lshl_b32 s{S_B}, s{S_WAVE}, 4")
    a(f"s_add_u32 s{S_A}, s{S_A}, s{S_B}")
    for q, dst in ((0, V_X0), (1, V_X1)):
        a(f"v_add_u32 v23, {4*q}, v22")
        a("v_xor_b32 v23, v23, v21")
        a(f"v_add_u32 v24, s{S_A}, v20")
        if q:
            a("v_add_u32 v24, 8, v24")
        a("v_mul_u32_u24 v24, 1280, v24")
        a(f"v_lshl_add_u32 v{dst}, v23, 4, v24")
    a(f"s_lshl_b32 s{S_LX}, s{S_WAVE}, 11")
    a(f"s_add_u32 s{S_LX}, s{S_LX}, {XB}")


def line_read_addr(a, dst, u_s, u_add, base_s, base_add):
    a(f"v_lshrrev_b32 v56, 4, v{V_LANE}")
    a(f"v_bfe_u32 v57, v{V_LANE}, 2, 2")
    a(f"v_bfe_u32 v58, v{V_LANE}, 1, 1")
    a("v_lshrrev_b32 v59, 1, v57")
    a("v_and_b32 v60, 1, v56")
    a("v_lshl_or_b32 v59, v60, 1, v59")
    a("v_lshlrev_b32 v59, 1, v59")
    if u_s is None:
        a(f"v_or_b32 v60, {2*u_add}, v58")
    else:
        a(f"s_xor_b32 s{S_B}, s{u_s}, {u_add}")
        a(f"s_lshl_b32 s{S_B}, s{S_B}, 1")
        a(f"v_or_b32 v60, s{S_B}, v58")
    a("v_xor_b32 v60, v60, v59")
    a("v_lshl_add_u32 v61, v56, 3, v57")
    a("v_lshlrev_b32 v61, 7, v61")
    a("v_lshl_add_u32 v61, v60, 4, v61")
    a(f"v_and_b32 v60, 1, v{V_LANE}")
    a("v_lshl_add_u32 v61, v60, 3, v61")
    a(f"v_add_u32 v61, s{base_s}, v61")
    if base_add:
        a(f"v_add_u32 v{dst}, {base_add}, v61")
    else:
        a(f"v_mov_b32 v{dst}, v61")


def stats_finalize(a, tok_s):
    a(f"v_add_f32 v{V_S1A}, v{V_S1A}, v{V_S1B}")
    a(f"v_add_f32 v{V_S2A}, v{V_S2A}, v{V_S2B}")
    for op in ("v_permlane16_swap_b32", "v_permlane32_swap_b32"):
        a(f"v_mov_b32 v{V_S1B}, v{V_S1A}")
        a(f"v_mov_b32 v{V_S2B}, v{V_S2A}")
        a(f"{op} v{V_S1A}, v{V_S1B}")
        a(f"{op} v{V_S2A}, v{V_S2B}")
        a(f"v_add_f32 v{V_S1A}, v{V_S1A}, v{V_S1B}")
        a(f"v_add_f32 v{V_S2A}, v{V_S2A}, v{V_S2B}")
    a(f"v_mul_f32 v{V_S1A}, 0x3acccccd, v{V_S1A}")
    a(f"v_mul_f32 v{V_S2A}, 0x3acccccd, v{V_S2A}")
    a(f"v_fma_f32 v{V_S2A}, -v{V_S1A}, v{V_S1A}, v{V_S2A}")
    a(f"v_max_f32 v{V_S2A}, 0, v{V_S2A}")
    a(f"v_cvt_pk_bf16_f32 v{V_T0}, v{V_S1A}, v{V_S2A}")
    a(f"v_lshlrev_b32 v{V_S1A}, 16, v{V_T0}")
    a(f"v_and_b32 v{V_S2A}, 0xffff0000, v{V_T0}")
    a(f"v_add_f32 v{V_S2A}, 0x{EPS5:x}, v{V_S2A}")
    a(f"v_cvt_pk_bf16_f32 v{V_T0}, v{V_S2A}, v{V_S2A}")
    a(f"v_lshlrev_b32 v{V_S2A}, 16, v{V_T0}")
    a(f"v_sqrt_f32 v{V_S2A}, v{V_S2A}")
    a(f"v_cvt_pk_bf16_f32 v{V_T0}, v{V_S2A}, v{V_S2A}")
    a(f"v_lshlrev_b32 v{V_S2A}, 16, v{V_T0}")
    a(f"v_rcp_f32 v{V_S2A}, v{V_S2A}")
    a(f"v_sub_f32 v{V_S1A}, 0, v{V_S1A}")
    a(f"v_and_b32 v{V_T0}, 15, v{V_LANE}")
    a(f"v_add_u32 v{V_T0}, s{tok_s}, v{V_T0}")
    a(f"v_lshlrev_b32 v{V_T0}, 2, v{V_T0}")
    a(f"ds_write_b32 v{V_T0}, v{V_S1A} offset:{ST}")
    a(f"ds_write_b32 v{V_T0}, v{V_S2A} offset:{ST + 512}")


def job_issue(a):
    a(f"s_mul_i32 s{S_JOB}, s2, 3")
    a(f"s_add_u32 s{S_JOB}, s{S_JOB}, s{S_WAVE}")
    a(f"s_cmp_lt_u32 s{S_WAVE}, 3")
    a(f"s_cselect_b32 s{S_JOB}, s{S_JOB}, 1000")
    a(f"s_cmp_lt_u32 s{S_JOB}, 740")
    a("s_cbranch_scc0 {L}_NOJOB".replace("{L}", job_issue.L))
    a(f"s_mul_hi_u32 s62, s{S_JOB}, 0x1999999a")
    a("s_mul_i32 s63, s62, 10")
    a(f"s_sub_u32 s63, s{S_JOB}, s63")
    a("s_cmp_lt_u32 s62, 54")
    a("s_cselect_b32 s36, s16, s14")
    a("s_cselect_b32 s37, s17, s15")
    a(f"s_mov_b32 s38, {DFF*D*2}")
    a(f"s_cselect_b32 s38, s38, {D*D*2}")
    a("s_mov_b32 s39, 0x20000")
    a("s_cselect_b32 s64, 0, 54")
    a("s_sub_u32 s64, s62, s64")
    a("s_mul_i32 s65, s64, 40960")
    a("s_lshl_b32 s66, s63, 7")
    a("s_add_u32 s65, s65, s66")
    a(f"v_lshrrev_b32 v{V_T0}, 3, v{V_LANE}")
    a(f"v_mul_u32_u24 v{V_T0}, 1280, v{V_T0}")
    a(f"v_and_b32 v{V_T1}, 7, v{V_LANE}")
    a(f"v_lshl_add_u32 v{V_T0}, v{V_T1}, 4, v{V_T0}")
    a(f"s_lshl_b32 s66, s{S_WAVE}, 12")
    for q in range(4):
        a(f"s_add_u32 m0, s66, {JB + 1024*q}")
        a(f"buffer_load_dwordx4 v{V_T0}, s[36:39], s65 offen lds")
        if q < 3:
            a("s_add_u32 s65, s65, 10240")
    a.label(job_issue.L + "_NOJOB")


def job_finish(a, L, younger):
    a(f"s_cmp_lt_u32 s{S_JOB}, 740")
    a(f"s_cbranch_scc0 {L}_JOBDONE")
    a(f"s_waitcnt vmcnt({younger})")
    R = 200
    a(f"v_lshrrev_b32 v{R+16}, 4, v{V_LANE}")
    a(f"v_bfe_u32 v{R+17}, v{V_LANE}, 2, 2")
    a(f"v_lshl_add_u32 v{R+16}, v{R+16}, 2, v{R+17}")
    a(f"v_lshlrev_b32 v{R+16}, 7, v{R+16}")
    a(f"v_and_b32 v{R+17}, 3, v{V_LANE}")
    a(f"v_lshl_add_u32 v{R+16}, v{R+17}, 3, v{R+16}")
    a(f"s_lshl_b32 s66, s{S_WAVE}, 12")
    a(f"v_add_u32 v{R+16}, s66, v{R+16}")
    for jl in range(4):
        for b in range(2):
            a(f"ds_read_b64_tr_b16 {vr(R + 4*jl + 2*b, 2)}, v{R+16} offset:{JB + 2048*b + 32*jl}")
    a("s_cmp_lt_u32 s62, 54")
    a(f"s_cbranch_scc0 {L}_JO")
    a("s_mov_b32 s66, s62")
    for th in (14, 28, 41):
        a(f"s_cmp_ge_u32 s62, {th}")
        a("s_cselect_b32 s67, 5, 0")
        a("s_add_u32 s66, s66, s67")
    a(f"s_branch {L}_JS")
    a.label(f"{L}_JO")
    a("s_add_u32 s66, s64, 14")
    for th, inc in ((5, 14), (10, 13), (15, 13)):
        a(f"s_cmp_ge_u32 s64, {th}")
        a(f"s_cselect_b32 s67, {inc}, 0")
        a("s_add_u32 s66, s66, s67")
    a.label(f"{L}_JS")
    a("s_mul_i32 s66, s66, 40")
    a("s_lshl_b32 s67, s63, 2")
    a("s_add_u32 s66, s66, s67")
    a("s_lshl_b32 s66, s66, 10")
    a(f"s_add_u32 s66, s66, {WF}")
    a(f"v_lshlrev_b32 v{R+17}, 4, v{V_LANE}")
    a("s_waitcnt lgkmcnt(0)")
    for jl in range(4):
        a(f"buffer_store_dwordx4 {vr(R + 4*jl, 4)}, v{R+17}, s[28:31], s66 offen offset:{1024*jl}")
    a.label(f"{L}_JOBDONE")


def sigma_h_scalar(a, dst, src):
    a(f"s_mov_b32 s{dst}, s{src}")
    for th in (14, 28, 41):
        a(f"s_cmp_ge_u32 s{src}, {th}")
        a("s_cselect_b32 s67, 5, 0")
        a(f"s_add_u32 s{dst}, s{dst}, s67")


def relu_pair(a, acc, cs, st, dst):
    a(f"v_pk_fma_f32 {vr(acc,2)}, {vr(cs,2)}, {vr(st,2)}, {vr(acc,2)} op_sel:[0,0,0] op_sel_hi:[1,0,1]")
    a(f"v_pk_mul_f32 {vr(acc,2)}, {vr(acc,2)}, {vr(st,2)} op_sel:[0,1] op_sel_hi:[1,1]")
    a(f"v_cvt_pk_bf16_f32 v{dst}, v{acc}, v{acc+1}")
    a(f"v_pk_max_i16 v{dst}, v{dst}, 0")


HQ_ACC = ACC
HQ_CS = ACC + 64
HQ_W = ACC + 72
HQ_X = HQ_W + 32
V_AW, V_AX = V_ADR, V_ADR + 4


def hq_acc(u, tt):
    return HQ_ACC + (u * 4 + tt) * 4


def hq_w(st, u):
    return HQ_W + 16 * st + 4 * u


def hq_x(st, kh, tt):
    return HQ_X + 32 * st + 16 * kh + 4 * tt


def hq_reads_w(slot, st):
    return [[f"ds_read_b64_tr_b16 {vr(hq_w(st, u) + 2*s, 2)}, v{V_AW + u} offset:{slot*SLOT + 512*s}"]
            for u in range(4) for s in range(2)]


def hq_reads_x(xs, st):
    return [[f"ds_read_b128 {vr(hq_x(st, kh, tt), 4)}, v{V_AX + kh} offset:{xs*SLOT + 2048*tt}"]
            for kh in range(2) for tt in range(4)]


def hq_loop(a, L):
    lab = f"K1_HQ{L}"
    a.label(lab)
    a(f"s_mov_b32 s{S_IT}, 0")
    a.label(lab + "_L")
    for p in range(4):
        if "nobar" not in asmlib.EXP:
            a("s_barrier")
        ws, xs, kh = p & 1, (p >> 1) & 1, p & 1
        mf = []
        for u in range(4):
            for tt in range(4):
                mf.append(f"v_mfma_f32_16x16x32_bf16 {vr(hq_acc(u,tt),4)}, {vr(hq_w(ws,u),4)}, {vr(hq_x(xs,kh,tt),4)}, {vr(hq_acc(u,tt),4)}")
            if u < 2:
                mf.append(f"v_mfma_f32_16x16x32_bf16 {vr(HQ_CS+4*u,4)}, {vr(hq_w(ws,u),4)}, {vr(ONES,4)}, {vr(HQ_CS+4*u,4)}")
        f = dma_fillers(p) + hq_reads_w((p + 1) % 4, (p + 1) & 1)
        if p & 1:
            nx = ((p + 1) >> 1) & 1
            f += hq_reads_x(nx, nx)
        f += stats_fillers(hq_x(xs, kh, L))
        interleave(a, mf, f)
        a("s_waitcnt vmcnt(6) lgkmcnt(0)")
    a(f"s_add_u32 s{S_IT}, s{S_IT}, 1")
    a(f"s_cmp_lt_u32 s{S_IT}, 5")
    a(f"s_cbranch_scc1 {lab}_L")
    a("s_branch K1_HQ_EPI")


def gen_hq(a):
    a.label("K1_HQ")
    a(f"s_and_b32 s62, s{S_WAVE}, 1")
    a(f"s_lshr_b32 s63, s{S_WAVE}, 1")
    a(f"s_mov_b32 s64, 0x{hq_word(HQ_TABLE[0]):x}")
    for hq in range(1, 8):
        a(f"s_cmp_eq_u32 s{S_IDX}, {hq}")
        a(f"s_cselect_b32 s64, 0x{hq_word(HQ_TABLE[hq]):x}, s64")
    a("s_lshl_b32 s65, s63, 3")
    a("s_lshr_b32 s64, s64, s65")
    a(f"s_and_b32 s{S_LINE}, s64, 63")
    a(f"s_bfe_u32 s{S_ISQ}, s64, 0x10007")
    a(f"s_bfe_u32 s{S_DUMMY}, s64, 0x10006")
    a(f"s_cmp_eq_u32 s{S_ISQ}, 1")
    a("s_cselect_b32 s24, s6, s8")
    a("s_cselect_b32 s25, s7, s9")
    a(f"s_mov_b32 s26, {D*3*D*2}")
    a(f"s_cselect_b32 s26, s26, {D*DFF*2}")
    a("s_mov_b32 s27, 0x20000")
    a("s_mov_b32 s65, 3840")
    a("s_cselect_b32 s65, s65, 3456")
    a(f"s_lshl_b32 s{S_WSTEP}, s65, 5")
    a(f"s_lshl_b32 s66, s{S_LINE}, 7")
    a(f"s_lshl_b32 s{S_A}, s62, 1")
    line_dma_voffsets(a, None, 65, 66)
    a("s_lshl_b32 s66, s63, 12")
    a("s_lshl_b32 s67, s62, 11")
    a(f"s_add_u32 s{S_LW0}, s66, s67")
    a(f"s_add_u32 s{S_LW1}, s{S_LW0}, 1024")
    x_dma_voffsets(a)
    a(f"s_cmp_ge_u32 s{S_IDX}, 5")
    a("s_cselect_b32 s68, 1, 0")
    a(f"s_cmp_lt_u32 s{S_T}, 5")
    a("s_cselect_b32 s68, s68, 0")
    a(f"s_cmp_eq_u32 s{S_WAVE}, 6")
    a("s_cselect_b32 s68, s68, 0")
    a("s_cmp_eq_u32 s68, 1")
    a("s_cbranch_scc0 K1_NOZERO")
    a(f"s_sub_u32 s69, s{S_IDX}, 5")
    a("s_mul_i32 s69, s69, 5")
    a(f"s_add_u32 s69, s69, s{S_T}")
    a("s_lshl_b32 s69, s69, 12")
    a(f"s_add_u32 s69, s69, {KVA}")
    for r in range(4):
        a(f"v_mov_b32 v{32+r}, 0")
    a(f"v_lshlrev_b32 v36, 4, v{V_LANE}")
    for q in range(4):
        a(f"buffer_store_dwordx4 v[32:35], v36, s[28:31], s69 offen offset:{1024*q} sc1")
    a.label("K1_NOZERO")
    prologue_dma(a)
    a(f"s_lshl_b32 s64, s62, 1")
    a("s_lshl_b32 s66, s63, 12")
    for u in range(4):
        line_read_addr(a, V_AW + u, 64, u, 66, 0)
    a(f"v_and_b32 v56, 15, v{V_LANE}")
    a(f"v_lshrrev_b32 v57, 4, v{V_LANE}")
    a("v_lshrrev_b32 v58, 1, v56")
    a("s_lshl_b32 s66, s62, 6")
    a("v_add_u32 v56, s66, v56")
    a("v_lshlrev_b32 v56, 7, v56")
    for kh in range(2):
        a(f"v_or_b32 v59, {4*kh}, v57")
        a("v_xor_b32 v59, v59, v58")
        a("v_lshl_add_u32 v59, v59, 4, v56")
        a(f"v_add_u32 v{V_AX + kh}, {XB}, v59")
    init_common(a)
    for r in range(HQ_ACC, HQ_ACC + 72):
        a(f"v_mov_b32 v{r}, 0")
    stamp(a, 2)
    a("s_waitcnt vmcnt(8)")
    a("s_barrier")
    stamp(a, 3)
    for f in hq_reads_w(0, 0) + hq_reads_x(0, 0):
        a(f[0])
    a("s_waitcnt vmcnt(6) lgkmcnt(0)")
    a("s_cmp_eq_u32 s68, 1")
    a("s_cbranch_scc0 K1_NOZSIG")
    a("s_waitcnt vmcnt(6)")
    a("v_mov_b32 v10, 1")
    a("v_mov_b32 v11, 0")
    a("s_mov_b64 exec, 1")
    a("buffer_atomic_add v10, v11, s[32:35], 0 offen")
    a("s_mov_b64 exec, -1")
    a.label("K1_NOZSIG")
    for L in range(1, 4):
        a(f"s_cmp_eq_u32 s63, {L}")
        a(f"s_cbranch_scc1 K1_HQ{L}")
    for L in range(4):
        hq_loop(a, L)

    a.label("K1_HQ_EPI")
    stamp(a, 4)
    a("s_waitcnt vmcnt(0)")
    a("s_barrier")
    job_issue.L = "K1_HQ"
    job_issue(a)
    a(f"s_and_b32 s70, s{S_WAVE}, 1")
    a(f"s_lshr_b32 s71, s{S_WAVE}, 1")
    a("s_lshl_b32 s72, s70, 6")
    a("s_lshl_b32 s73, s71, 4")
    a("s_add_u32 s73, s73, s72")
    stats_finalize(a, 73)
    a(f"v_lshrrev_b32 v16, 4, v{V_LANE}")
    a("v_lshlrev_b32 v17, 4, v16")
    a("s_lshl_b32 s73, s71, 8")
    a("s_lshl_b32 s74, s70, 1")
    for u in range(4):
        a(f"s_xor_b32 s75, s74, {u}")
        a("s_lshl_b32 s75, s75, 6")
        a("s_add_u32 s75, s75, s73")
        a(f"v_add_u32 v{18+u}, s75, v17")
    for u in range(2):
        a(f"ds_write_b128 v{18+u}, {vr(HQ_CS + 4*u, 4)} offset:{CS}")
    a("s_waitcnt lgkmcnt(0)")
    a("s_barrier")
    stamp(a, 5)
    CSR, STR = HQ_W, HQ_W + 16
    for u in range(4):
        a(f"ds_read_b128 {vr(CSR + 4*u, 4)}, v{18+u} offset:{CS}")
    a(f"v_and_b32 v16, 15, v{V_LANE}")
    a("v_add_u32 v16, s72, v16")
    a("v_lshlrev_b32 v16, 2, v16")
    for tt in range(4):
        a(f"v_add_u32 v17, {ST + 64*tt}, v16")
        a(f"ds_read2_b32 {vr(STR + 2*tt, 2)}, v17 offset1:128")
    a(f"s_lshl_b32 s{S_T64}, s{S_T}, 1")
    a(f"s_add_u32 s{S_T64}, s{S_T64}, s70")
    a(f"v_lshlrev_b32 v16, 4, v{V_LANE}")
    a("s_waitcnt lgkmcnt(0)")
    a(f"s_cmp_eq_u32 s{S_DUMMY}, 1")
    a("s_cbranch_scc1 K1_HQ_END")
    PK = HQ_X
    a(f"s_cmp_eq_u32 s{S_ISQ}, 1")
    a("s_cbranch_scc1 K1_HQ_Q")
    for pr in range(2):
        a(f"s_xor_b32 s72, s70, {pr}")
        a(f"s_lshl_b32 s73, s{S_LINE}, 1")
        a("s_add_u32 s72, s72, s73")
        sigma_h_scalar(a, 73, 72)
        a(f"s_mul_i32 s74, s{S_T64}, {NSIG}")
        a("s_add_u32 s73, s73, s74")
        a("s_lshl_b32 s73, s73, 12")
        for tt in range(4):
            f = PK + 4 * (pr * 4 + tt)
            for uu in range(2):
                u = 2 * pr + uu
                for hh in range(2):
                    relu_pair(a, hq_acc(u, tt) + 2 * hh, CSR + 4 * u + 2 * hh, STR + 2 * tt, f + 2 * uu + hh)
            a(f"buffer_store_dwordx4 {vr(f, 4)}, v16, s[28:31], s73 offen offset:{1024*tt}")
    a("s_branch K1_HQ_FIN")
    a.label("K1_HQ_Q")
    RL = HQ_W + 24
    for tt in range(4):
        a(f"v_mul_f32 v{RL + 2*tt}, 0x{LOG2E:x}, v{STR + 2*tt + 1}")
    a(f"s_mov_b32 s76, 0x{EPS6:x}")
    a(f"s_mov_b32 s77, 0x{EPS6:x}")
    TP = V_ADR + 8
    for pr in range(2):
        a(f"s_xor_b32 s72, s70, {pr}")
        a(f"s_lshl_b32 s73, s{S_LINE}, 1")
        a("s_add_u32 s72, s72, s73")
        a(f"s_mul_i32 s73, s{S_T64}, 40")
        a("s_add_u32 s73, s73, s72")
        a("s_lshl_b32 s73, s73, 11")
        a(f"s_add_u32 s73, s73, {PQ}")
        a("s_add_u32 s74, s73, 40960")
        for tt in range(4):
            f = PK + 4 * (pr * 4 + tt)
            st = STR + 2 * tt
            for uu in range(2):
                u = 2 * pr + uu
                for hh in range(2):
                    ac, cs = hq_acc(u, tt) + 2 * hh, CSR + 4 * u + 2 * hh
                    phi_pair(a, ac, f + 2 * uu + hh, TP,
                             f"{vr(cs,2)}, {vr(st,2)}, {vr(ac,2)} op_sel:[0,0,0] op_sel_hi:[1,0,1]",
                             f"{vr(st,2)}, s[76:77] op_sel:[0,1,0] op_sel_hi:[1,1,1]",
                             f"{vr(RL + 2*tt,2)} op_sel:[0,0] op_sel_hi:[1,0]")
            so = 73 if tt < 2 else 74
            a(f"buffer_store_dwordx4 {vr(f, 4)}, v16, s[28:31], s{so} offen offset:{1024*(tt & 1)}")
    a.label("K1_HQ_FIN")
    stamp(a, 6)
    job_finish(a, "K1_HQ", 8)
    a.label("K1_HQ_END")
    a("s_branch K1_EXIT")


def phi_pair(a, ac, dst, TP, t_ops, p_ops, l_ops, keep=None):
    a(f"v_pk_fma_f32 {vr(ac,2)}, {t_ops}")
    a(f"v_pk_mul_f32 {vr(TP,2)}, {vr(ac,2)}, {l_ops}")
    if keep:
        a(f"v_pk_mul_f32 {vr(TP+2,2)}, {vr(ac,2)}, {keep[1]}")
    a(f"v_pk_fma_f32 {vr(ac,2)}, {vr(ac,2)}, {p_ops}")
    a(f"v_exp_f32_e64 v{TP}, v{TP} clamp")
    a(f"v_exp_f32_e64 v{TP+1}, v{TP+1} clamp")
    a(f"v_max_f32 v{ac}, s76, v{ac}")
    a(f"v_max_f32 v{ac+1}, s76, v{ac+1}")
    a(f"v_pk_add_f32 {vr(ac,2)}, {vr(ac,2)}, {vr(TP,2)}")
    if keep:
        a(f"v_cndmask_b32 v{ac}, v{TP+2}, v{ac}, {keep[0]}")
        a(f"v_cndmask_b32 v{ac+1}, v{TP+3}, v{ac+1}, {keep[0]}")
    a(f"v_cvt_pk_bf16_f32 v{dst}, v{ac}, v{ac+1}")


def init_common(a):
    for r in (V_S1A, V_S1B, V_S2A, V_S2B):
        a(f"v_mov_b32 v{r}, 0")
    for r in range(4):
        a(f"v_mov_b32 v{ONES + r}, 0x3f803f80")


KV_ACC = ACC
KV_CS = ACC + 56
KV_W = ACC + 64
KV_X = KV_W + 56
V_A01, V_A2, V_A34, V_AH = V_ADR, V_ADR + 1, V_ADR + 2, V_ADR + 3
V_AXK = V_ADR + 5
V_KVW = V_ADR + 9
ONES_UNITS = [(0, 1), (2, 3), (4, 5), (6,)]


def kv_acc(u, tt):
    return KV_ACC + (u * 2 + tt) * 4


def kv_w(st, u):
    return KV_W + 28 * st + 4 * u


def kv_x(st, kh, tt):
    return KV_X + 16 * st + 8 * kh + 4 * tt


def kv_reads_w(slot, st):
    f = []
    for u in range(7):
        for s in range(2):
            if u < 2:
                adr, off = V_A01, 32 * u + 1280 * s
            elif u == 2:
                adr, off = V_A2, 1280 * s
            elif u < 5:
                adr, off = V_A34, 32 * (u - 3) + 1280 * s
            else:
                adr, off = V_AH + (u - 5), 512 * s
            f.append([f"ds_read_b64_tr_b16 {vr(kv_w(st, u) + 2*s, 2)}, v{adr} offset:{slot*SLOT + off}"])
    return f


def kv_reads_x(xs, st):
    return [[f"ds_read_b128 {vr(kv_x(st, kh, tt), 4)}, v{V_AXK + 2*kh + tt} offset:{xs*SLOT}"]
            for kh in range(2) for tt in range(2)]


def kv_loop(a, tq):
    lab = f"K1_KV{tq}"
    a.label(lab)
    a(f"s_mov_b32 s{S_IT}, 0")
    a.label(lab + "_L")
    for p in range(4):
        if "nobar" not in asmlib.EXP:
            a("s_barrier")
        ws, xs, kh = p & 1, (p >> 1) & 1, p & 1
        mf = []
        for u in range(7):
            for tt in range(2):
                w, x, d = vr(kv_w(ws, u), 4), vr(kv_x(xs, kh, tt), 4), vr(kv_acc(u, tt), 4)
                mf.append(f"v_mfma_f32_16x16x32_bf16 {d}, {x}, {w}, {d}" if u < 5 else
                          f"v_mfma_f32_16x16x32_bf16 {d}, {w}, {x}, {d}")
            if u in ONES_UNITS[tq]:
                c = vr(KV_CS + 4 * ONES_UNITS[tq].index(u), 4)
                w = vr(kv_w(ws, u), 4)
                mf.append(f"v_mfma_f32_16x16x32_bf16 {c}, {vr(ONES,4)}, {w}, {c}" if u < 5 else
                          f"v_mfma_f32_16x16x32_bf16 {c}, {w}, {vr(ONES,4)}, {c}")
        f = dma_fillers(p) + kv_reads_w((p + 1) % 4, (p + 1) & 1)
        if p & 1:
            nx = ((p + 1) >> 1) & 1
            f += kv_reads_x(nx, nx)
        f += stats_fillers(kv_x(xs, kh, 0))
        interleave(a, mf, f)
        a("s_waitcnt vmcnt(6) lgkmcnt(0)")
    a(f"s_add_u32 s{S_IT}, s{S_IT}, 1")
    a(f"s_cmp_lt_u32 s{S_IT}, 5")
    a(f"s_cbranch_scc1 {lab}_L")
    a("s_waitcnt vmcnt(0)")
    a("s_barrier")
    a(f"s_and_b32 s70, s{S_WAVE}, 1")
    a("s_lshl_b32 s72, s70, 9")
    a(f"v_and_b32 v{V_T0}, 15, v{V_LANE}")
    a(f"v_lshlrev_b32 v{V_T0}, 2, v{V_T0}")
    a(f"v_add_u32 v{V_T0}, s72, v{V_T0}")
    a(f"v_lshrrev_b32 v{V_T1}, 4, v{V_LANE}")
    a(f"v_lshlrev_b32 v{V_T1}, 4, v{V_T1}")
    a(f"v_add_u32 v{V_T1}, s72, v{V_T1}")
    for ci, u in enumerate(ONES_UNITS[tq]):
        if u < 5:
            a(f"ds_write_b32 v{V_T0}, v{KV_CS + 4*ci} offset:{CS + 64*u}")
        else:
            a(f"ds_write_b128 v{V_T1}, {vr(KV_CS + 4*ci, 4)} offset:{CS + 320 + 64*(u-5)}")
    a("s_branch K1_KV_EPI")


def kv_tile_mask(ua, ub):
    m = 0
    for l in range(64):
        e16, g = l & 15, l >> 4
        d0 = 16 * ua + 4 * g
        e = {2: e16 - 8, 3: 8 + e16, 4: 24 + e16}[ub]
        if d0 < 40 and e >= 0 and (d0 >= 20) == (e >= 20):
            m |= 1 << l
    return m


def set_exec(a, m):
    a(f"s_mov_b32 exec_lo, 0x{m & 0xffffffff:x}")
    a(f"s_mov_b32 exec_hi, 0x{m >> 32:x}")


def gen_kv(a):
    a.label("K1_KV")
    a(f"s_and_b32 s62, s{S_WAVE}, 1")
    a(f"s_lshr_b32 s63, s{S_WAVE}, 1")
    a(f"s_cmp_lt_u32 s{S_WAVE}, 5")
    a("s_cbranch_scc0 K1_KV_HD")
    a("s_mov_b32 s24, s6")
    a("s_mov_b32 s25, s7")
    a(f"s_mov_b32 s26, {D*3*D*2}")
    a("s_mov_b32 s27, 0x20000")
    a(f"s_mov_b32 s{S_WSTEP}, {3840*32}")
    a(f"s_lshl_b32 s64, s{S_WAVE}, 6")
    a(f"v_add_u32 v20, s64, v{V_LANE}")
    a("v_mul_u32_u24 v21, 6554, v20")
    a("v_lshrrev_b32 v21, 16, v21")
    a("v_mul_u32_u24 v22, 10, v21")
    a("v_sub_u32 v22, v20, v22")
    a("v_and_b32 v23, 0x13, v21")
    a("v_bfe_u32 v24, v21, 2, 1")
    a("v_lshl_or_b32 v23, v24, 3, v23")
    a("v_bfe_u32 v24, v21, 3, 1")
    a("v_lshl_or_b32 v23, v24, 2, v23")
    a("v_mul_u32_u24 v23, 3840, v23")
    a("v_lshl_add_u32 v23, v22, 4, v23")
    a(f"s_mul_i32 s64, s{S_IDX}, 160")
    a("s_add_u32 s65, s64, 1280")
    a(f"v_add_u32 v{V_W0}, s65, v23")
    a("s_add_u32 s65, s64, 2560")
    a(f"v_add_u32 v{V_W1}, s65, v23")
    a(f"s_lshl_b32 s{S_LW0}, s{S_WAVE}, 10")
    a(f"s_add_u32 s{S_LW1}, s{S_LW0}, {VB}")
    a("s_branch K1_KV_D1")
    a.label("K1_KV_HD")
    a("s_mov_b32 s24, s8")
    a("s_mov_b32 s25, s9")
    a(f"s_cmp_lt_u32 s{S_WAVE}, 7")
    a(f"s_cselect_b32 s26, {D*DFF*2}, 0")
    a("s_mov_b32 s27, 0x20000")
    a(f"s_mov_b32 s{S_WSTEP}, {3456*32}")
    a(f"s_sub_u32 s{S_A}, s{S_WAVE}, 5")
    a(f"s_lshl_b32 s{S_A}, s{S_A}, 1")
    a("s_mov_b32 s65, 3456")
    a(f"s_lshl_b32 s66, s{S_IDX}, 7")
    a(f"s_lshl_b32 s{S_LW0}, s{S_A}, 10")
    a(f"s_add_u32 s{S_LW0}, s{S_LW0}, {HB}")
    a(f"s_add_u32 s{S_LW1}, s{S_LW0}, 1024")
    a(f"s_cmp_lt_u32 s{S_WAVE}, 7")
    a(f"s_cselect_b32 s{S_LW0}, s{S_LW0}, {HB + 4096}")
    a(f"s_cselect_b32 s{S_LW1}, s{S_LW1}, {SLOT - 1024}")
    line_dma_voffsets(a, None, 65, 66)
    a.label("K1_KV_D1")
    x_dma_voffsets(a)
    prologue_dma(a)
    a(f"v_lshrrev_b32 v56, 4, v{V_LANE}")
    a(f"v_bfe_u32 v57, v{V_LANE}, 2, 2")
    a(f"v_and_b32 v58, 3, v{V_LANE}")
    a("v_lshrrev_b32 v59, 1, v56")
    a("v_lshlrev_b32 v59, 4, v59")
    a("v_and_b32 v60, 1, v56")
    a("v_lshl_add_u32 v59, v60, 2, v59")
    a("v_add_u32 v59, v59, v57")
    a("v_mul_u32_u24 v59, 160, v59")
    a("s_mul_i32 s64, s62, 80")
    a("v_add_u32 v59, s64, v59")
    a(f"v_lshl_add_u32 v{V_A01}, v58, 3, v59")
    a(f"v_add_u32 v{V_A34}, {VB + 16}, v{V_A01}")
    a(f"v_add_u32 v60, 64, v{V_A01}")
    a(f"v_add_u32 v61, {VB - 16}, v{V_A01}")
    a("v_cmp_gt_u32 vcc, 2, v58")
    a(f"v_cndmask_b32 v{V_A2}, v61, v60, vcc")
    a("s_lshl_b32 s64, s62, 1")
    a(f"s_mov_b32 s66, {HB}")
    for uu in range(2):
        line_read_addr(a, V_AH + uu, 64, uu, 66, 0)
    a(f"v_and_b32 v56, 15, v{V_LANE}")
    a(f"v_lshrrev_b32 v57, 4, v{V_LANE}")
    a("v_lshrrev_b32 v58, 1, v56")
    for tt in range(2):
        a(f"s_xor_b32 s64, s62, {tt}")
        a("s_lshl_b32 s64, s64, 4")
        a("s_lshl_b32 s65, s63, 5")
        a("s_add_u32 s64, s64, s65")
        a("v_add_u32 v60, s64, v56")
        a("v_lshlrev_b32 v60, 7, v60")
        for kh in range(2):
            a(f"v_or_b32 v59, {4*kh}, v57")
            a("v_xor_b32 v59, v59, v58")
            a("v_lshl_add_u32 v59, v59, 4, v60")
            a(f"v_add_u32 v{V_AXK + 2*kh + tt}, {XB}, v59")
    a("v_mul_u32_u24 v59, 80, v56")
    a("v_lshl_add_u32 v59, v57, 4, v59")
    a("s_mul_i32 s64, s63, 6720")
    a("s_mul_i32 s65, s62, 3360")
    a("s_add_u32 s64, s64, s65")
    a(f"s_add_u32 s64, s64, {KVR - 640}")
    a(f"v_add_u32 v{V_KVW}, s64, v59")
    init_common(a)
    for r in range(KV_ACC, KV_ACC + 64):
        a(f"v_mov_b32 v{r}, 0")
    stamp(a, 2)
    a("s_waitcnt vmcnt(8)")
    a("s_barrier")
    stamp(a, 3)
    for f in kv_reads_w(0, 0) + kv_reads_x(0, 0):
        a(f[0])
    a("s_waitcnt vmcnt(6) lgkmcnt(0)")
    for tq in range(1, 4):
        a(f"s_cmp_eq_u32 s63, {tq}")
        a(f"s_cbranch_scc1 K1_KV{tq}")
    for tq in range(4):
        kv_loop(a, tq)

    a.label("K1_KV_EPI")
    stamp(a, 4)
    job_issue.L = "K1_KV"
    job_issue(a)
    a("v_mov_b32 v30, 0")
    a("buffer_load_dword v31, v30, s[32:35], 0 offen sc1")
    a(f"s_and_b32 s70, s{S_WAVE}, 1")
    a(f"s_lshr_b32 s71, s{S_WAVE}, 1")
    a("s_lshl_b32 s72, s71, 5")
    a("s_lshl_b32 s73, s70, 4")
    a("s_add_u32 s73, s73, s72")
    stats_finalize(a, 73)
    a("s_waitcnt lgkmcnt(0)")
    a("s_barrier")
    stamp(a, 5)
    NM, RSV, RL = KV_W, KV_W + 8, KV_W + 16
    CSK = KV_W + 24
    CSH = KV_W + 32
    STH = KV_W + 40
    TP = KV_W + 44
    FR = KV_X
    a(f"v_lshrrev_b32 v16, 4, v{V_LANE}")
    a(f"v_and_b32 v17, 15, v{V_LANE}")
    for tt in range(2):
        a(f"s_xor_b32 s73, s70, {tt}")
        a("s_lshl_b32 s73, s73, 4")
        a("s_add_u32 s73, s73, s72")
        a("s_lshl_b32 s73, s73, 2")
        a("v_lshl_add_u32 v18, v16, 4, s73")
        a(f"ds_read_b128 {vr(NM + 4*tt, 4)}, v18 offset:{ST}")
        a(f"ds_read_b128 {vr(RSV + 4*tt, 4)}, v18 offset:{ST + 512}")
        a("v_lshl_add_u32 v19, v17, 2, s73")
        a(f"v_add_u32 v19, {ST}, v19")
        a(f"ds_read2_b32 {vr(STH + 2*tt, 2)}, v19 offset1:128")
    a("s_lshl_b32 s73, s70, 9")
    a("v_lshl_add_u32 v18, v17, 2, s73")
    for u in range(5):
        a(f"ds_read_b32 v{CSK + u}, v18 offset:{CS + 64*u}")
    a("v_lshl_add_u32 v18, v16, 4, s73")
    for uu in range(2):
        a(f"ds_read_b128 {vr(CSH + 4*uu, 4)}, v18 offset:{CS + 320 + 64*uu}")
    a(f"s_mov_b32 s76, 0x{EPS6:x}")
    a(f"s_mov_b32 s77, 0x{EPS6:x}")
    a("s_mov_b32 s78, 0x00ff00ff")
    a("s_mov_b32 s79, 0x00ff00ff")
    a("s_waitcnt lgkmcnt(0)")
    for i in range(8):
        a(f"v_mul_f32 v{RL + i}, 0x{LOG2E:x}, v{RSV + i}")
    a(f"s_lshl_b32 s72, s{S_IDX}, 1")
    a("s_add_u32 s72, s72, s70")
    sigma_h_scalar(a, 73, 72)
    a(f"s_lshl_b32 s{S_T64}, s{S_T}, 1")
    a("s_lshr_b32 s74, s71, 1")
    a(f"s_add_u32 s{S_T64}, s{S_T64}, s74")
    a(f"s_mul_i32 s74, s{S_T64}, {NSIG}")
    a("s_add_u32 s73, s73, s74")
    a("s_lshl_b32 s73, s73, 2")
    a("s_and_b32 s74, s71, 1")
    a("s_lshl_b32 s74, s74, 1")
    a("s_add_u32 s73, s73, s74")
    a(f"v_lshlrev_b32 v16, 4, v{V_LANE}")
    for tt in range(2):
        f = FR + 20 + 4 * tt
        for uu in range(2):
            for hh in range(2):
                relu_pair(a, kv_acc(5 + uu, tt) + 2 * hh, CSH + 4 * uu + 2 * hh, STH + 2 * tt, f + 2 * uu + hh)
        a(f"s_xor_b32 s74, s70, {tt}")
        a("s_add_u32 s74, s74, s73")
        a("s_lshl_b32 s74, s74, 10")
        a(f"buffer_store_dwordx4 {vr(f, 4)}, v16, s[28:31], s74 offen")
    for u in range(5):
        cs = CSK + u
        csp = cs & ~1
        sel = cs & 1
        for tt in range(2):
            for hh in range(2):
                ac = kv_acc(u, tt) + 2 * hh
                nm, rs, rl = NM + 4 * tt + 2 * hh, RSV + 4 * tt + 2 * hh, RL + 4 * tt + 2 * hh
                dst = FR + 4 * u + 2 * tt + hh
                t_ops = f"{vr(nm,2)}, {vr(csp,2)}, {vr(ac,2)} op_sel:[0,{sel},0] op_sel_hi:[1,{sel},1]"
                if u < 3:
                    phi_pair(a, ac, dst, TP, t_ops, f"{vr(rs,2)}, s[76:77]", f"{vr(rl,2)}",
                             keep=("s[78:79]", f"{vr(rs,2)}") if u == 2 else None)
                else:
                    a(f"v_pk_fma_f32 {vr(ac,2)}, {t_ops}")
                    a(f"v_pk_mul_f32 {vr(ac,2)}, {vr(ac,2)}, {vr(rs,2)}")
                    a(f"v_cvt_pk_bf16_f32 v{dst}, v{ac}, v{ac+1}")
    tiles = [(0, 2), (0, 3), (1, 2), (1, 3), (1, 4), (2, 3), (2, 4)]
    KT = KV_ACC
    for i, (ua, ub) in enumerate(tiles):
        mfma(a, KT + 4 * i, FR + 4 * ua, FR + 4 * ub, "0")
    for ua in range(3):
        mfma(a, KT + 28 + 4 * ua, FR + 4 * ua, ONES, "0")
    for i, (ua, ub) in enumerate(tiles):
        eoff = {2: -8, 3: 8, 4: 24}[ub]
        set_exec(a, kv_tile_mask(ua, ub))
        a(f"ds_write_b128 v{V_KVW}, {vr(KT + 4*i, 4)} offset:{80*(eoff + 8) + 64*ua}")
    for ua in range(3):
        for hd in range(2):
            m = 0
            for g in range(4):
                d0 = 16 * ua + 4 * g
                if d0 < 40 and (d0 >= 20) == (hd == 1):
                    m |= 1 << (16 * g)
            if m:
                set_exec(a, m)
                a(f"ds_write_b128 v{V_KVW}, {vr(KT + 28 + 4*ua, 4)} offset:{640 + 1600*(hd+1) + 64*ua}")
    a("s_mov_b64 exec, -1")
    a("s_waitcnt lgkmcnt(0)")
    a("s_barrier")
    a("v_lshlrev_b32 v17, 2, v0")
    a(f"v_add_u32 v18, {KVR}, v17")
    SM = KV_ACC
    for n in range(4):
        for r in range(4):
            a(f"ds_read_b32 v{SM + 4*n + r}, v18 offset:{2048*n + 6720*r}")
    a(f"s_mul_i32 s72, s{S_IDX}, 6720")
    a(f"s_add_u32 s72, s72, {KVA}")
    a("s_add_u32 s40, s10, s72")
    a("s_addc_u32 s41, s11, 0")
    a("s_mov_b32 s42, 6720")
    a("s_mov_b32 s43, 0x20000")
    a("s_waitcnt lgkmcnt(0)")
    for n in range(4):
        a(f"v_add_f32 v{SM + 4*n}, v{SM + 4*n}, v{SM + 4*n + 1}")
        a(f"v_add_f32 v{SM + 4*n + 2}, v{SM + 4*n + 2}, v{SM + 4*n + 3}")
        a(f"v_add_f32 v{SM + 4*n}, v{SM + 4*n}, v{SM + 4*n + 2}")
    stamp(a, 6)
    a("s_waitcnt vmcnt(2)")
    a(f"s_mov_b32 s74, {SPIN_MAX}")
    a.label("K1_KV_ZW")
    a("v_readfirstlane_b32 s73, v31")
    a("s_sub_u32 s74, s74, 1")
    a("s_cmp_eq_u32 s74, 0")
    a("s_cbranch_scc1 K1_KV_ZOK")
    a(f"s_cmp_ge_u32 s73, {NZERO}")
    a("s_cbranch_scc1 K1_KV_ZOK")
    a("s_sleep 1")
    a("buffer_load_dword v31, v30, s[32:35], 0 offen sc1")
    a("s_waitcnt vmcnt(0)")
    a("s_branch K1_KV_ZW")
    a.label("K1_KV_ZOK")
    for n in range(4):
        if n < 2:
            a(f"buffer_atomic_add_f32 v{SM + 4*n}, v17, s[40:43], 0 offen offset:{2048*n}")
        else:
            if n == 2:
                a("v_add_u32 v18, 4096, v17")
            a(f"buffer_atomic_add_f32 v{SM + 4*n}, v18, s[40:43], 0 offen offset:{2048*(n-2)}")
    job_finish(a, "K1_KV", 6)
    a("s_branch K1_EXIT")


def gen_k1():
    a = Asm()
    a("s_cmp_ge_u32 s2, 256")
    a("s_cbranch_scc1 K1_END")
    if asmlib.DIAG:
        for i in range(80, 96):
            a(f"s_mov_b32 s{i}, 0")
    stamp(a, 0)
    a("s_load_dwordx4 s[4:7], s[0:1], 0")
    a("s_load_dwordx2 s[14:15], s[0:1], 16")
    a("s_load_dwordx2 s[8:9], s[0:1], 32")
    a("s_load_dwordx2 s[16:17], s[0:1], 40")
    a("s_load_dwordx2 s[12:13], s[0:1], 56")
    a("s_load_dwordx2 s[10:11], s[0:1], 64")
    a(f"v_and_b32 v{V_LANE}, 63, v0")
    a("v_lshrrev_b32 v2, 6, v0")
    a("s_and_b32 s62, s2, 7")
    a(f"v_readfirstlane_b32 s{S_WAVE}, v2")
    a("s_lshr_b32 s63, s2, 3")
    a("s_and_b32 s64, s62, 1")
    a("s_lshl_b32 s64, s64, 3")
    a("s_and_b32 s65, s63, 7")
    a(f"s_add_u32 s{S_T}, s64, s65")
    a("s_lshr_b32 s64, s62, 1")
    a("s_lshr_b32 s65, s63, 3")
    a("s_lshl_b32 s64, s64, 1")
    a("s_and_b32 s66, s65, 1")
    a(f"s_add_u32 s{S_IDX}, s64, s66")
    a("s_waitcnt lgkmcnt(0)")
    stamp(a, 1)
    srd(a, 20, 4, S * D * 2)
    srd(a, 28, 10, WS_USED)
    srd(a, 32, 12, 256)
    a("s_cmp_ge_u32 s65, 2")
    a("s_cbranch_scc1 K1_HQ")
    gen_kv(a)
    gen_hq(a)
    a.label("K1_EXIT")
    a("s_waitcnt vmcnt(0)")
    stamp(a, 7)
    stamp_flush(a, 0, S_WAVE, "s[28:31]", STAMPS)
    a.label("K1_END")
    a("s_endpgm")
    return a


if __name__ == "__main__":
    print(gen_k1().text())
```

```python
import asmlib
from asmlib import *
from layout import *

K2 = "plab_out_kernel"
RS = 336
REG = 64 * RS
KV0 = 4 * REG
LW = KV0 + 16384
K2_LDS = LW + 64
SPIN_MAX = 1 << 20

ACC = 16
SET0 = 96
V_XR0, V_XR1 = 240, 244
V_G0, V_G1, V_L0, V_L1 = 248, 249, 250, 251


def acc(j, tt):
    return ACC + (j * 4 + tt) * 4


def wfr(d, j):
    return SET0 + 36 * d + 4 * j


def afr(d, tt):
    return SET0 + 36 * d + 20 + 4 * tt


def srd(a, r, lo, size):
    a(f"s_mov_b32 s{r}, s{lo}")
    a(f"s_mov_b32 s{r+1}, s{lo+1}")
    a(f"s_mov_b32 s{r+2}, {size}")
    a(f"s_mov_b32 s{r+3}, 0x20000")


def head_num_mask(j, s, b):
    m = 0
    for l in range(64):
        e, g = 16 * j + (l & 15), l >> 4
        if e // 20 == (32 * s + 16 * b + 4 * g) // 20:
            m |= 1 << l
    return m


def head_den_mask(jb, jmax, s, b):
    m = 0
    for l in range(64):
        row, g = l & 15, l >> 4
        gp, rp = row >> 2, row & 3
        j = jb + rp
        if j <= jmax and (16 * j + 4 * gp) // 20 == (32 * s + 16 * b + 4 * g) // 20:
            m |= 1 << l
    return m


def load_group(a, d, which, first=False):
    kind, i = which
    if kind == "w":
        if i < 4:
            a(f"buffer_load_dwordx4 {vr(wfr(d, i), 4)}, v1, s[12:15], s31 offen offset:{1024*i}")
        else:
            a(f"buffer_load_dwordx4 {vr(wfr(d, i), 4)}, v2, s[12:15], s31 offen")
    else:
        fl = "" if "k2plain" in asmlib.EXP else " sc1"
        a(f"buffer_load_dwordx4 {vr(afr(d, i), 4)}, v1, s[12:15], s30 offen offset:{1024*i}{fl}")


def slot(a, d, wait, loads, check=None):
    a(f"s_waitcnt vmcnt({wait})")
    for j in range(5):
        for tt in range(4):
            if "k2nomfma" not in asmlib.EXP:
                a(f"v_mfma_f32_16x16x32_bf16 {vr(acc(j, tt), 4)}, {vr(wfr(d, j), 4)}, {vr(afr(d, tt), 4)}, {vr(acc(j, tt), 4)}")
            if loads and j == 4:
                if tt == 0 and check:
                    check()
                if tt >= 1:
                    load_group(a, d, ("a", tt - 1))
        if loads and j < 4:
            load_group(a, d, ("w", j))
    if loads:
        load_group(a, d, ("w", 4))
        load_group(a, d, ("a", 3))
        a("s_add_u32 s30, s30, 4096")
        a("s_add_u32 s31, s31, 40960")


def gen_main(a):
    a.comment("main waves: stream the K quarter of this wave")
    a("s_mul_i32 s27, s24, 19")
    a("s_cmp_eq_u32 s24, 3")
    a("s_cselect_b32 s27, 56, s27")
    a("s_lshr_b32 s28, s24, 1")
    a("s_add_u32 s28, s28, 1")
    a(f"s_mul_i32 s30, s25, {NSIG}")
    a("s_add_u32 s30, s30, s27")
    a("s_lshl_b32 s30, s30, 12")
    if "k2sameact" in asmlib.EXP:
        a("s_lshl_b32 s30, s27, 12")
    a("s_mul_i32 s31, s27, 40")
    a("s_mul_i32 s33, s26, 5")
    if "k2samew" in asmlib.EXP:
        a("s_mov_b32 s33, 0")
    a("s_add_u32 s31, s31, s33")
    a("s_lshl_b32 s31, s31, 10")
    a(f"s_add_u32 s31, s31, {WF}")
    a("s_mov_b32 s34, s30")
    a("s_mov_b32 s35, s31")
    for d in range(4):
        if d < 2:
            a(f"s_cmp_gt_u32 s28, {d}")
            a(f"s_cselect_b32 s30, {OOB}, s34")
            a(f"s_cselect_b32 s31, {OOB}, s35")
            a("s_cselect_b32 s36, 0, 4096")
            a("s_cselect_b32 s37, 0, 40960")
        for j in range(5):
            load_group(a, d, ("w", j))
        for tt in range(4):
            load_group(a, d, ("a", tt))
        if d < 2:
            a("s_add_u32 s34, s34, s36")
            a("s_add_u32 s35, s35, s37")
            if d == 1:
                a("s_mov_b32 s30, s34")
                a("s_mov_b32 s31, s35")
        else:
            a("s_add_u32 s30, s30, 4096")
            a("s_add_u32 s31, s31, 40960")
    for r in range(ACC, ACC + 80):
        a(f"v_mov_b32 v{r}, 0")
    a("s_barrier")
    stamp(a, 2)
    a("s_mov_b32 s38, 0")
    a.label("K2_LOOP")

    def check():
        a("s_cmp_eq_u32 s38, 2")
        a("s_cbranch_scc1 K2_OWAIT")
        a.label("K2_OBACK")

    for d in range(4):
        slot(a, d, 27, True, check if d == 3 else None)
    a("s_add_u32 s38, s38, 1")
    a("s_cmp_lt_u32 s38, 4")
    a("s_cbranch_scc1 K2_LOOP")
    stamp(a, 3)
    for d in range(4):
        slot(a, d, 27 - 9 * d, False)
    stamp(a, 4)
    a("v_and_b32 v4, 15, v3")
    a("v_lshrrev_b32 v5, 4, v3")
    a(f"v_mul_u32_u24 v4, {RS}, v4")
    a("v_lshl_add_u32 v4, v5, 4, v4")
    a(f"s_mul_i32 s27, s24, {REG}")
    a("v_add_u32 v4, s27, v4")
    for tt in range(4):
        for j in range(5):
            a(f"ds_write_b128 v4, {vr(acc(j, tt), 4)} offset:{tt*16*RS + j*64}")
    a("s_branch K2_FINAL")
    a.label("K2_OWAIT")
    stamp(a, 6)
    a(f"v_mov_b32 v4, {LW}")
    a(f"s_mov_b32 s39, {SPIN_MAX}")
    a.label("K2_OWAIT_L")
    a("ds_read_b32 v5, v4 offset:4")
    a("s_waitcnt lgkmcnt(0)")
    a("v_readfirstlane_b32 s40, v5")
    a("s_sub_u32 s39, s39, 1")
    a("s_cmp_eq_u32 s39, 0")
    a("s_cbranch_scc1 K2_OBACK")
    a("s_cmp_eq_u32 s40, 0")
    a("s_cbranch_scc0 K2_OBACK")
    a("s_sleep 1")
    a("s_branch K2_OWAIT_L")


def gen_ojob(a, half):
    L = f"K2_O{half}"
    a.label(L)
    if half == 0:
        tiles, s_list, s_lo = list(range(0, 6)), [0, 1, 2, 3], 0
        dens = [(0, 5, [0, 1, 2]), (4, 5, [1, 2, 3])]
    else:
        tiles, s_list, s_lo = list(range(6, 10)), [2, 3, 4], 2
        dens = [(6, 9, [2, 3, 4])]
    PQR = 8
    NUM = 24
    DEN = 48
    TMP = 64
    AF = 128
    pq = lambda s: PQR + 4 * (s - s_lo)
    a("s_mul_i32 s36, s29, 20")
    a("s_mul_i32 s37, s33, 5")
    a("s_add_u32 s36, s36, s37")
    a(f"s_add_u32 s36, s36, {s_lo}")
    a("s_lshl_b32 s36, s36, 1")
    a("s_add_u32 s36, s36, s32")
    a("s_lshl_b32 s36, s36, 10")
    a(f"s_add_u32 s36, s36, {PQ}")
    for s in s_list:
        k = s - s_lo
        if k < 2:
            a(f"buffer_load_dwordx4 {vr(pq(s), 4)}, v1, s[12:15], s36 offen offset:{2048*k}")
        else:
            a(f"buffer_load_dwordx4 {vr(pq(s), 4)}, v2, s[12:15], s36 offen offset:{2048*(k-2)}")
    a("s_waitcnt vmcnt(0)")
    a(f"v_mov_b32 v4, {LW}")
    a("v_mov_b32 v5, 1")
    a("ds_add_u32 v4, v5")
    a(f"s_mov_b32 s39, {SPIN_MAX}")
    a.label(L + "_W")
    a("ds_read_b32 v5, v4")
    a("s_waitcnt lgkmcnt(0)")
    a("v_readfirstlane_b32 s40, v5")
    a("s_sub_u32 s39, s39, 1")
    a("s_cmp_eq_u32 s39, 0")
    a(f"s_cbranch_scc1 {L}_G")
    a("s_cmp_ge_u32 s40, 256")
    a(f"s_cbranch_scc0 {L}_W")
    a.label(L + "_G")
    stamp(a, 2)
    a("v_and_b32 v4, 15, v3")
    a("v_lshrrev_b32 v5, 4, v3")
    a("v_mul_u32_u24 v4, 80, v4")
    a("v_lshl_add_u32 v4, v5, 4, v4")
    a(f"v_add_u32 v4, {KV0}, v4")
    ZA = 56
    for s in s_list:
        for b in range(2):
            z = ZA + 2 * (s - s_lo) + b
            a(f"v_lshlrev_b32 v6, 2, v5")
            a(f"v_add_u32 v6, {32*s + 16*b}, v6")
            a(f"v_mul_u32_u24 v7, 3277, v6")
            a("v_lshrrev_b32 v7, 16, v7")
            a("v_mul_u32_u24 v7, 1600, v7")
            a(f"v_lshl_add_u32 v7, v6, 2, v7")
            a(f"v_add_u32 v{z}, {KV0 + 1600}, v7")
    frags = []
    from_s = {}
    for j in tiles:
        h_lo, h_hi = (16 * j) // 20, (16 * j + 15) // 20
        for s in range((20 * h_lo) // 32, (20 * h_hi + 19) // 32 + 1):
            frags.append(("n", j, s))
    for di, (jb, jmax, sl) in enumerate(dens):
        for s in sl:
            frags.append(("d", di, s))
    started = set()
    batches = [frags[i:i + 4] for i in range(0, len(frags), 4)]

    def issue(bi):
        for fi, (kind, x, s) in enumerate(batches[bi]):
            t = TMP + 32 * (bi & 1) + 8 * fi
            for b in range(2):
                if kind == "n":
                    a(f"ds_read_b128 {vr(t + 4*b, 4)}, v4 offset:{1280*x + 128*s + 64*b}")
                else:
                    a(f"ds_read_b128 {vr(t + 4*b, 4)}, v{ZA + 2*(s - s_lo) + b}")

    issue(0)
    for bi, batch in enumerate(batches):
        if bi + 1 < len(batches):
            issue(bi + 1)
            a(f"s_waitcnt lgkmcnt({2*len(batches[bi+1])})")
        else:
            a("s_waitcnt lgkmcnt(0)")
        for fi, (kind, x, s) in enumerate(batch):
            t = TMP + 32 * (bi & 1) + 8 * fi
            f = AF + 4 * fi
            for b in range(2):
                if kind == "n":
                    m = head_num_mask(x, s, b)
                else:
                    m = head_den_mask(dens[x][0], dens[x][1], s, b)
                if m == 0:
                    a(f"v_mov_b32 v{f + 2*b}, 0")
                    a(f"v_mov_b32 v{f + 2*b + 1}, 0")
                    continue
                a(f"v_cvt_pk_bf16_f32 v{f + 2*b}, v{t + 4*b}, v{t + 4*b + 1}")
                a(f"v_cvt_pk_bf16_f32 v{f + 2*b + 1}, v{t + 4*b + 2}, v{t + 4*b + 3}")
                if m != (1 << 64) - 1:
                    a(f"s_mov_b32 s40, 0x{m & 0xffffffff:x}")
                    a(f"s_mov_b32 s41, 0x{m >> 32:x}")
                    a(f"v_cndmask_b32 v{f + 2*b}, 0, v{f + 2*b}, s[40:41]")
                    a(f"v_cndmask_b32 v{f + 2*b + 1}, 0, v{f + 2*b + 1}, s[40:41]")
        for fi, (kind, x, s) in enumerate(batch):
            f = AF + 4 * fi
            dst = NUM + 4 * tiles.index(x) if kind == "n" else DEN + 4 * x
            c = vr(dst, 4) if (kind, x) in started else "0"
            started.add((kind, x))
            a(f"v_mfma_f32_16x16x32_bf16 {vr(dst, 4)}, {vr(f, 4)}, {vr(pq(s), 4)}, {c}")
    a("s_mov_b32 s40, 0x358637bd")
    for ti, j in enumerate(tiles):
        di = 0 if (half == 1 or j < 4) else 1
        dn = DEN + 4 * di + (j - dens[di][0])
        a(f"v_add_f32 v{TMP + ti}, s40, v{dn}")
    for ti, j in enumerate(tiles):
        a(f"v_rcp_f32 v{TMP + ti}, v{TMP + ti}")
    for ti, j in enumerate(tiles):
        for r in range(4):
            a(f"v_mul_f32 v{NUM + 4*ti + r}, v{NUM + 4*ti + r}, v{TMP + ti}")
    npair = len(tiles) // 2
    for p in range(npair):
        for hh in range(2):
            n = NUM + 4 * (2 * p + hh)
            a(f"v_cvt_pk_bf16_f32 v{AF + 4*p + 2*hh}, v{n}, v{n+1}")
            a(f"v_cvt_pk_bf16_f32 v{AF + 4*p + 2*hh + 1}, v{n+2}, v{n+3}")
    a("s_mul_i32 s36, s33, 5")
    a("s_mul_i32 s37, s33, 14")
    a("s_cmp_ge_u32 s33, 2")
    a("s_cselect_b32 s40, 1, 0")
    a("s_sub_u32 s37, s37, s40")
    a("s_cmp_ge_u32 s33, 3")
    a("s_cselect_b32 s40, 1, 0")
    a("s_sub_u32 s37, s37, s40")
    a("s_add_u32 s37, s37, 14")
    a("s_add_u32 s36, s36, s37")
    a(f"s_add_u32 s36, s36, {tiles[0] // 2}")
    a(f"s_mul_i32 s37, s25, {NSIG}")
    a("s_add_u32 s36, s36, s37")
    a("s_lshl_b32 s36, s36, 2")
    a("s_and_b32 s37, s26, 1")
    a("s_lshl_b32 s37, s37, 1")
    a("s_add_u32 s37, s37, s32")
    a("s_add_u32 s36, s36, s37")
    a("s_lshl_b32 s36, s36, 10")
    for p in range(npair):
        a(f"buffer_store_dwordx4 {vr(AF + 4*p, 4)}, v1, s[12:15], s36 offen sc1")
        if p + 1 < npair:
            a("s_add_u32 s36, s36, 4096")
    stamp(a, 3)
    a("s_waitcnt vmcnt(0)")
    stamp(a, 4)
    a("s_lshl_b32 s36, s25, 7")
    a(f"s_add_u32 s36, s36, {FLG}")
    a("s_lshl_b32 s37, s26, 2")
    a("s_add_u32 s37, s37, s24")
    a("s_sub_u32 s37, s37, 4")
    a("s_lshl_b32 s37, s37, 2")
    a("s_add_u32 s37, s37, s36")
    a("v_mov_b32 v6, 1")
    a("v_mov_b32 v7, 0")
    a("buffer_store_dword v6, v7, s[12:15], s37 offen sc1")
    if half == 0:
        a("s_cmp_eq_u32 s24, 4")
        a("s_cbranch_scc0 K2_FINAL")
        a("v_and_b32 v6, 31, v3")
        a("v_lshlrev_b32 v6, 2, v6")
        a(f"s_mov_b32 s39, {SPIN_MAX}")
        a.label("K2_POLL")
        a("buffer_load_dword v7, v6, s[12:15], s36 offen sc1")
        a("s_waitcnt vmcnt(0)")
        a("v_cmp_eq_u32 vcc, 1, v7")
        a("s_sub_u32 s39, s39, 1")
        a("s_cmp_eq_u32 s39, 0")
        a("s_cbranch_scc1 K2_POLL_D")
        a("s_cmp_eq_u64 vcc, -1")
        a("s_cbranch_scc1 K2_POLL_D")
        a("s_sleep 2")
        a("s_branch K2_POLL")
        a.label("K2_POLL_D")
        stamp(a, 6)
        a(f"v_mov_b32 v4, {LW}")
        a("v_mov_b32 v5, 1")
        a("ds_write_b32 v4, v5 offset:4")
    a("s_branch K2_FINAL")


def gen_k2():
    a = Asm()
    a("s_cmp_ge_u32 s2, 256")
    a("s_cbranch_scc1 K2_END")
    if asmlib.DIAG:
        for i in range(80, 96):
            a(f"s_mov_b32 s{i}, 0")
    stamp(a, 0)
    a("s_load_dwordx2 s[4:5], s[0:1], 0")
    a("s_load_dwordx2 s[6:7], s[0:1], 48")
    a("s_load_dwordx2 s[8:9], s[0:1], 64")
    a("v_and_b32 v3, 63, v0")
    a("v_lshrrev_b32 v4, 6, v0")
    a("v_lshlrev_b32 v1, 4, v3")
    a("v_readfirstlane_b32 s24, v4")
    a("v_add_u32 v2, 4096, v1")
    a("s_and_b32 s27, s2, 7")
    a("s_lshr_b32 s28, s2, 3")
    a("s_lshr_b32 s25, s27, 1")
    a("s_lshl_b32 s25, s25, 3")
    a("s_and_b32 s29, s28, 7")
    a("s_add_u32 s25, s25, s29")
    a("s_and_b32 s26, s27, 1")
    a("s_lshl_b32 s26, s26, 2")
    a("s_lshr_b32 s28, s28, 3")
    a("s_add_u32 s26, s26, s28")
    a("v_mul_u32_u24 v5, 6554, v0")
    a("v_lshrrev_b32 v5, 16, v5")
    a("v_mul_u32_u24 v6, 10, v5")
    a("v_sub_u32 v6, v0, v6")
    a("v_add_u32 v7, 512, v0")
    a("v_mul_u32_u24 v8, 6554, v7")
    a("v_lshrrev_b32 v8, 16, v8")
    a("v_mul_u32_u24 v9, 10, v8")
    a("v_sub_u32 v9, v7, v9")
    a("s_mul_i32 s27, s25, 81920")
    a("s_mul_i32 s28, s26, 160")
    a("s_add_u32 s27, s27, s28")
    a(f"v_mul_u32_u24 v{V_G0}, 1280, v5")
    a(f"v_lshl_add_u32 v{V_G0}, v6, 4, v{V_G0}")
    a(f"v_add_u32 v{V_G0}, s27, v{V_G0}")
    a(f"v_mul_u32_u24 v{V_G1}, 1280, v8")
    a(f"v_lshl_add_u32 v{V_G1}, v9, 4, v{V_G1}")
    a(f"v_add_u32 v{V_G1}, s27, v{V_G1}")
    a("v_mov_b32 v10, 0x7ff00000")
    a("v_cmp_gt_u32 vcc, 128, v0")
    a(f"v_cndmask_b32 v{V_G1}, v10, v{V_G1}, vcc")
    a(f"v_mul_u32_u24 v{V_L0}, {RS}, v5")
    a(f"v_lshl_add_u32 v{V_L0}, v6, 5, v{V_L0}")
    a(f"v_mul_u32_u24 v{V_L1}, {RS}, v8")
    a(f"v_lshl_add_u32 v{V_L1}, v9, 5, v{V_L1}")
    a("v_mov_b32 v10, 0")
    a(f"v_cndmask_b32 v{V_L1}, v10, v{V_L1}, vcc")
    a("s_waitcnt lgkmcnt(0)")
    stamp(a, 1)
    srd(a, 12, 8, WS_USED)
    srd(a, 16, 4, S * D * 2)
    srd(a, 20, 6, S * D * 2)
    a(f"buffer_load_dwordx4 {vr(V_XR0, 4)}, v{V_G0}, s[16:19], 0 offen")
    a(f"buffer_load_dwordx4 {vr(V_XR1, 4)}, v{V_G1}, s[16:19], 0 offen")
    a("s_cmp_ge_u32 s24, 4")
    a("s_cbranch_scc1 K2_SIDE")
    gen_main(a)

    a.label("K2_SIDE")
    a("s_and_b32 s32, s24, 1")
    a("s_lshr_b32 s33, s26, 1")
    a("s_and_b32 s29, s26, 1")
    a("s_lshl_b32 s27, s25, 1")
    a("s_add_u32 s29, s29, s27")
    a("s_mul_i32 s36, s33, 13440")
    a(f"s_add_u32 s36, s36, {KVA}")
    a("s_sub_u32 s37, s24, 4")
    a("s_lshl_b32 s37, s37, 10")
    a("s_add_u32 s36, s36, s37")
    a(f"s_add_u32 s37, s37, {KV0}")
    for n in range(4):
        a(f"s_add_u32 m0, s37, {4096*n}")
        a(f"buffer_load_dwordx4 v1, s[12:15], s36 offen lds")
        if n < 3:
            a("s_add_u32 s36, s36, 4096")
    a("v_mov_b32 v4, 0")
    a("v_mov_b32 v5, 0")
    a(f"v_mov_b32 v6, {LW}")
    a("ds_write_b64 v6, v[4:5]")
    a("s_waitcnt lgkmcnt(0)")
    a("s_barrier")
    a("s_cmp_ge_u32 s24, 6")
    a("s_cbranch_scc1 K2_O1")
    gen_ojob(a, 0)
    gen_ojob(a, 1)

    a.label("K2_FINAL")
    a("s_waitcnt lgkmcnt(0)")
    a("s_barrier")
    stamp(a, 5)
    for rnd, (vl, vg, xr) in enumerate(((V_L0, V_G0, V_XR0), (V_L1, V_G1, V_XR1))):
        if rnd == 1:
            a("s_cmp_ge_u32 s24, 2")
            a("s_cbranch_scc1 K2_DONE")
        T = 16
        for w in range(4):
            for hh in range(2):
                off = w * REG + hh * 16
                if off < 65536:
                    a(f"ds_read_b128 {vr(T + 8*w + 4*hh, 4)}, v{vl} offset:{off}")
        a("s_waitcnt vmcnt(0)")
        for i in range(4):
            a(f"v_lshlrev_b32 v{64 + 2*i}, 16, v{xr + i}")
            a(f"v_and_b32 v{64 + 2*i + 1}, 0xffff0000, v{xr + i}")
        a("s_waitcnt lgkmcnt(0)")
        for i in range(8):
            a(f"v_add_f32 v{T + i}, v{T + i}, v{T + 8 + i}")
            a(f"v_add_f32 v{T + 16 + i}, v{T + 16 + i}, v{T + 24 + i}")
        for i in range(8):
            a(f"v_add_f32 v{T + i}, v{T + i}, v{T + 16 + i}")
        for i in range(8):
            a(f"v_add_f32 v{T + i}, v{T + i}, v{64 + i}")
        for i in range(4):
            a(f"v_cvt_pk_bf16_f32 v{72 + i}, v{T + 2*i}, v{T + 2*i + 1}")
        a(f"buffer_store_dwordx4 v[72:75], v{vg}, s[20:23], 0 offen")
    a.label("K2_DONE")
    a("s_waitcnt vmcnt(0)")
    stamp(a, 7)
    stamp_flush(a, 1, 24, "s[12:15]", STAMPS)
    a.label("K2_END")
    a("s_endpgm")
    return a


if __name__ == "__main__":
    t = gen_k2().text()
    print(t)
```

```python
import sys
sys.path.insert(0, "gen")
import build, k1, k2
from asmlib import *
def empty():
    a = Asm(); a("s_endpgm"); return a
base = [(k1.K1, k1.gen_k1(), 256, 512, k1.K1_LDS, 256, 96), (k2.K2, k2.gen_k2(), 256, 512, k2.K2_LDS, 256, 96)]
for n, nm in ((0, "a"), (1, "b"), (3, "c")):
    kl = base + [("plab_nil_kernel", empty(), 1, 64, 0, 8, 16)] * n
    open(f"exp_{nm}.s", "w").write(build.build(kl))
kl = [("plab_nil_kernel", empty(), 1, 64, 0, 8, 16)] + base
open(f"exp_d.s", "w").write(build.build(kl))
open(f"exp_e.s", "w").write(build.build([base[0], base[0], base[1]]))
open(f"exp_f.s", "w").write(build.build([base[0], base[1], base[1]]))
open(f"exp_g.s", "w").write(build.build([base[0], base[0], base[0], base[1], base[1], base[1]]))
```

```python
import asmlib
from asmlib import *
from layout import *
from k2 import srd, SPIN_MAX

K1 = "plab_in_kernel"
SLOT = 16384
XB = 65536
ST = 16384
CS = ST + 1024
K1_LDS = 98304
VB = 5120 + 16
HB = 10496
JB = 0
KVR = 32768
NZERO = ZERO_BYTES // 4096

S_WAVE, S_T, S_IDX, S_A, S_B = 44, 45, 46, 47, 48
S_IT, S_XO, S_WO, S_WSTEP, S_LW0, S_LW1, S_LX, S_WEND = 49, 50, 51, 52, 53, 54, 55, 56
S_CG, S_HK = 18, 19
S_LINE, S_ISQ, S_DUMMY, S_JOB = 57, 58, 59, 60
S_T64 = 61

V_LANE, V_X0, V_X1, V_W0, V_W1 = 1, 2, 3, 4, 5
V_T0, V_T1 = 10, 11
V_T2, V_T3 = 8, 9
ONES = 12
V_ADR = 16
ACC = 32
GRAM = 240
RSUM = 244
V_PADR, V_POLL, V_INIT, V_ZERO = 28, 29, 30, 31
V_PART = 200
CSX = 200

LOG2E = 0x3fb8aa3b
EPS6 = 0x358637bd
EPS5 = 0x3727c5ac

HQ_TABLE = [["Q0", "Q1", "H8", "H9"], ["Q2", "Q3", "H10", "H11"], ["Q4", "H12", "H13", "H14"],
            ["Q5", "H15", "H16", "H17"], ["Q6", "H18", "H19", "H20"], ["Q7", "H21", "H22", "D22"],
            ["Q8", "H23", "H24", "D24"], ["Q9", "H25", "H26", "D26"]]


def stfl():
    E = asmlib.EXP
    return "" if "stplain" in E else " sc1"


def hq_word(row):
    w = 0
    for i, c in enumerate(row):
        b = int(c[1:]) | (0x80 if c[0] == "Q" else 0) | (0x40 if c[0] == "D" else 0)
        w |= b << (8 * i)
    return w


def mfma(a, d, x, y, c=None):
    a(f"v_mfma_f32_16x16x32_bf16 {vr(d, 4)}, {vr(x, 4)}, {vr(y, 4)}, {c if c is not None else vr(d, 4)}")


def interleave(a, mf, fillers, per=2):
    fillers = list(fillers)
    E = asmlib.EXP
    if "nomfma" in E:
        mf = ["s_nop 0"] * len(mf)
    keep = lambda f: not (("nodma" in E and any(" lds" in i for i in f)) or ("noread" in E and f[0].startswith("ds_read"))
                          or ("nostats" in E and f[0].startswith("v_")))
    fillers = [f for f in fillers if keep(f)]
    n = len(mf)
    for i, m in enumerate(mf):
        a(m)
        left = n - i
        k = max(per if fillers else 0, -(-len(fillers) // left) if left else 0)
        for _ in range(min(k, len(fillers))):
            for ins in fillers.pop(0):
                a(ins)
    for f in fillers:
        for ins in f:
            a(ins)


def w_issue(slot, wrap):
    f = [[f"s_add_u32 m0, s{S_LW0}, {slot*SLOT}",
          f"buffer_load_dwordx4 v{V_W0}, s[24:27], s{S_WO} offen lds"],
         [f"s_add_u32 m0, s{S_LW1}, {slot*SLOT}",
          f"buffer_load_dwordx4 v{V_W1}, s[24:27], s{S_WO} offen lds",
          f"s_add_u32 s{S_WO}, s{S_WO}, s{S_WSTEP}"]]
    if wrap:
        f.append([f"s_cmp_eq_u32 s{S_WO}, s{S_WEND}", f"s_cselect_b32 s{S_WO}, 0, s{S_WO}"])
    return f


def x_issue(xs):
    return [[f"s_add_u32 m0, s{S_LX}, {xs*SLOT}",
             f"buffer_load_dwordx4 v{V_X0}, s[20:23], s{S_XO} offen lds"],
            [f"s_add_u32 m0, s{S_LX}, {xs*SLOT + 1024}",
             f"buffer_load_dwordx4 v{V_X1}, s[20:23], s{S_XO} offen lds",
             f"s_add_u32 s{S_XO}, s{S_XO}, 128"],
            [f"s_cmp_eq_u32 s{S_XO}, 1280", f"s_cselect_b32 s{S_XO}, 0, s{S_XO}"]]


def dma_fillers(p):
    f = x_issue((p >> 1) & 1) if p % 2 == 0 else []
    return f + w_issue(p, p & 1)


def stats_mfma(xreg, first):
    x = vr(xreg, 4)
    return [f"v_mfma_f32_16x16x32_bf16 {vr(GRAM,4)}, {x}, {x}, {'0' if first else vr(GRAM,4)}",
            f"v_mfma_f32_16x16x32_bf16 {vr(RSUM,4)}, {vr(ONES,4)}, {x}, {'0' if first else vr(RSUM,4)}"]


def prologue_dma(a):
    a(f"s_add_u32 s74, s{S_T}, s{S_CG}")
    for _ in range(3):
        a("s_cmp_ge_u32 s74, 10")
        a("s_cselect_b32 s75, 10, 0")
        a("s_sub_u32 s74, s74, s75")
    a(f"s_lshl_b32 s{S_XO}, s74, 7")
    a(f"s_mul_i32 s{S_WO}, s74, s{S_WSTEP}")
    a(f"s_lshl_b32 s{S_WO}, s{S_WO}, 1")
    a(f"s_mul_i32 s{S_WEND}, s{S_WSTEP}, 20")
    for f in w_issue(0, 0) + x_issue(0) + w_issue(1, 1) + x_issue(1) + w_issue(2, 0) + w_issue(3, 1):
        for ins in f:
            a(ins)


def publish_stats(a, tok_s):
    a("s_mov_b32 s74, 0xaaaaaaaa")
    a("s_mov_b32 s75, 0xaaaaaaaa")
    a("s_mov_b32 s76, 0xcccccccc")
    a("s_mov_b32 s77, 0xcccccccc")
    a(f"v_cndmask_b32 v{V_T2}, v{GRAM}, v{GRAM+1}, s[74:75]")
    a(f"v_cndmask_b32 v{V_T3}, v{GRAM+2}, v{GRAM+3}, s[74:75]")
    a(f"v_and_b32 v{V_T0}, 15, v{V_LANE}")
    a(f"v_cndmask_b32 v{V_T3}, v{V_T2}, v{V_T3}, s[76:77]")
    a(f"v_mov_b32 v{V_T2}, v{RSUM}")
    a(f"v_lshlrev_b32 v{V_T0}, 3, v{V_T0}")
    a(f"s_lshl_b32 s62, s{S_T}, 4")
    a(f"s_add_u32 s62, s62, s{S_CG}")
    a("s_lshl_b32 s62, s62, 10")
    a(f"s_lshl_b32 s63, s{tok_s}, 3")
    a("s_add_u32 s62, s62, s63")
    a(f"s_add_u32 s62, s62, {SP}")
    set_exec(a, 0xF0000F0000F0000F)
    a(f"buffer_store_dwordx2 {vr(V_T2,2)}, v{V_T0}, s[28:31], s62 offen sc1")
    a("s_mov_b64 exec, -1")


def cp_base(a, dst):
    a(f"s_lshl_b32 s{dst}, s{S_CG}, 4")
    a(f"s_add_u32 s{dst}, s{dst}, s{S_T}")
    a(f"s_lshl_b32 s{dst}, s{dst}, 10")
    a(f"s_add_u32 s{dst}, s{dst}, {CP}")


class Block(list):
    pass


def emit_iteration(a, role, mode):
    for p in range(4):
        if not (mode == "last" and p == 3) and "nobar" not in asmlib.EXP:
            a("s_barrier")
        if mode == "mid" and p == 1:
            a(f"s_cmp_eq_u32 s{S_HK}, 1")
            a(f"s_cbranch_scc1 {role.L}_HFLAG")
            a.label(f"{role.L}_HFLAG_B")
        if mode == "mid" and p == 3:
            a(f"s_cmp_eq_u32 s{S_HK}, 2")
            a(f"s_cbranch_scc1 {role.L}_HPOLL")
            a.label(f"{role.L}_HPOLL_B")
        first = mode == "first"
        mf = role.mfmas(p, first and p == 0, first and p < 2)
        f = []
        if mode != "last":
            f += dma_fillers(p)
        elif p == 0:
            for n in range(10):
                g = [f"buffer_load_dword v{V_PART + n}, v{V_T1}, s[28:31], s62 offen offset:{1024*(n & 3)} sc1"]
                if n & 3 == 3:
                    g.append("s_add_u32 s62, s62, 4096")
                f.append(g)
        if not (mode == "last" and p == 3):
            f += role.reads_w((p + 1) % 4, (p + 1) & 1)
        if p & 1 and not (mode == "last" and p == 3):
            nx = ((p + 1) >> 1) & 1
            f += role.reads_x(nx, nx)
        if mode == "last" and p == 0:
            a(f"v_and_b32 v{V_T1}, 255, v0")
            a(f"v_lshlrev_b32 v{V_T1}, 2, v{V_T1}")
            a(f"s_lshl_b32 s62, s{S_T}, 14")
            a(f"s_add_u32 s62, s62, {SP}")
            a(f"s_lshl_b32 s63, s{S_CG}, 14")
            a(f"s_add_u32 s63, s63, {CP}")
            a(f"s_cmp_lt_u32 s{S_WAVE}, 4")
            a("s_cselect_b32 s62, s62, s63")
        interleave(a, mf, f, per=1)
        extra = 0
        if first and p == 2:
            a(f"buffer_load_dword v{V_INIT}, v{V_ZERO}, s[32:35], 0 offen sc1")
            extra = 1 + role.publish(a)
        if first and p >= 2:
            if p == 2:
                role.extra = extra
            a(f"s_waitcnt vmcnt({6 + role.extra}) lgkmcnt(0)")
        elif mode == "last":
            a(["s_waitcnt vmcnt(12) lgkmcnt(0)", "s_waitcnt vmcnt(10) lgkmcnt(0)", "s_waitcnt lgkmcnt(0)", "s_nop 0"][p])
        else:
            a("s_waitcnt vmcnt(6) lgkmcnt(0)")


def emit_main(a, role):
    L = role.L
    emit_iteration(a, role, "first")
    a(f"s_mov_b32 s{S_IT}, 1")
    a.label(f"{L}_LOOP")
    a(f"s_cmp_eq_u32 s{S_WAVE}, 0")
    a(f"s_cselect_b32 s{S_HK}, s{S_IT}, 99")
    emit_iteration(a, role, "mid")
    a(f"s_cmp_eq_u32 s{S_HK}, 3")
    a(f"s_cbranch_scc1 {L}_HCHK")
    a.label(f"{L}_HCHK_B")
    a(f"s_add_u32 s{S_IT}, s{S_IT}, 1")
    a(f"s_cmp_lt_u32 s{S_IT}, 4")
    a(f"s_cbranch_scc1 {L}_LOOP")
    emit_iteration(a, role, "last")


def emit_hooks(a, role):
    L = role.L
    a.label(f"{L}_HFLAG")
    a(f"s_mov_b32 s63, {SPIN_MAX}")
    a.label(f"{L}_HFLAG_W")
    a(f"v_readfirstlane_b32 s62, v{V_INIT}")
    a("s_sub_u32 s63, s63, 1")
    a("s_cmp_eq_u32 s63, 0")
    a(f"s_cbranch_scc1 {L}_HFLAG_G")
    a(f"s_cmp_ge_u32 s62, {NZERO}")
    a(f"s_cbranch_scc1 {L}_HFLAG_G")
    a("s_sleep 1")
    a(f"buffer_load_dword v{V_INIT}, v{V_ZERO}, s[32:35], 0 offen sc1")
    a("s_waitcnt vmcnt(0)")
    a(f"s_branch {L}_HFLAG_W")
    a.label(f"{L}_HFLAG_G")
    a(f"s_lshl_b32 s62, s{S_T}, 4")
    a(f"s_add_u32 s62, s62, s{S_CG}")
    a("s_lshl_b32 s62, s62, 2")
    a(f"s_add_u32 s62, s62, {F1}")
    a(f"v_mov_b32 v{V_T0}, 1")
    a("s_mov_b64 exec, 1")
    a(f"buffer_store_dword v{V_T0}, v{V_ZERO}, s[28:31], s62 offen sc1")
    a("s_mov_b64 exec, -1")
    a(f"s_branch {L}_HFLAG_B")
    a.label(f"{L}_HPOLL")
    a(f"buffer_load_dword v{V_POLL}, v{V_PADR}, s[28:31], 0 offen sc1")
    a(f"s_branch {L}_HPOLL_B")
    a.label(f"{L}_HCHK")
    a(f"s_mov_b32 s63, {SPIN_MAX}")
    a.label(f"{L}_HCHK_W")
    a(f"v_cmp_eq_u32 vcc, 1, v{V_POLL}")
    a("s_sub_u32 s63, s63, 1")
    a("s_cmp_eq_u32 s63, 0")
    a(f"s_cbranch_scc1 {L}_HCHK_B")
    a("s_and_b32 s62, vcc_lo, 0x03ff03ff")
    a("s_cmp_eq_u32 s62, 0x03ff03ff")
    a(f"s_cbranch_scc1 {L}_HCHK_B")
    a("s_sleep 1")
    a(f"buffer_load_dword v{V_POLL}, v{V_PADR}, s[28:31], 0 offen sc1")
    a("s_waitcnt vmcnt(0)")
    a(f"s_branch {L}_HCHK_W")


def poll_address(a):
    a(f"v_mov_b32 v{V_ZERO}, 0")
    a(f"v_and_b32 v{V_T0}, 15, v{V_LANE}")
    a(f"s_lshl_b32 s74, s{S_T}, 4")
    a(f"v_add_u32 v{V_T1}, s74, v{V_T0}")
    a(f"v_lshl_add_u32 v{V_T2}, v{V_T0}, 4, s{S_CG}")
    a(f"v_bfe_u32 v{V_T3}, v{V_LANE}, 4, 1")
    a(f"v_cmp_eq_u32 vcc, 1, v{V_T3}")
    a(f"v_cndmask_b32 v{V_T1}, v{V_T1}, v{V_T2}, vcc")
    a(f"v_lshlrev_b32 v{V_T1}, 2, v{V_T1}")
    a(f"v_add_u32 v{V_PADR}, {F1}, v{V_T1}")


def gather_stats(a, L):
    P = V_PART
    a("s_waitcnt vmcnt(0)")
    for i in range(5):
        a(f"v_add_f32 v{P + i}, v{P + i}, v{P + 5 + i}")
    a(f"v_add_f32 v{P}, v{P}, v{P+1}")
    a(f"v_add_f32 v{P+2}, v{P+2}, v{P+3}")
    a(f"v_add_f32 v{P}, v{P}, v{P+4}")
    a(f"v_add_f32 v{P}, v{P}, v{P+2}")
    a("s_barrier")
    a(f"s_cmp_lt_u32 s{S_WAVE}, 4")
    a(f"s_cbranch_scc1 {L}_GST")
    a(f"v_and_b32 v{V_T1}, 255, v0")
    a(f"v_lshlrev_b32 v{V_T1}, 2, v{V_T1}")
    a(f"ds_write_b32 v{V_T1}, v{P} offset:{CS}")
    a(f"s_branch {L}_GDONE")
    a.label(f"{L}_GST")
    A, B = V_T2, V_T3
    a(f"v_mul_f32 v{P}, 0x3acccccd, v{P}")
    a(f"v_lshrrev_b32 v{V_T1}, 1, v0")
    a(f"v_mov_b32_dpp v{B}, v{P} quad_perm:[1,0,3,2] row_mask:0xf bank_mask:0xf")
    a(f"v_lshlrev_b32 v{V_T1}, 2, v{V_T1}")
    a(f"v_fma_f32 v{B}, -v{P}, v{P}, v{B}")
    a(f"v_max_f32 v{B}, 0, v{B}")
    a(f"v_cvt_pk_bf16_f32 v{V_T0}, v{P}, v{B}")
    a(f"v_lshlrev_b32 v{A}, 16, v{V_T0}")
    a(f"v_and_b32 v{B}, 0xffff0000, v{V_T0}")
    a(f"v_add_f32 v{B}, 0x{EPS5:x}, v{B}")
    a(f"v_sub_f32 v{A}, 0, v{A}")
    a(f"v_cvt_pk_bf16_f32 v{V_T0}, v{B}, v{B}")
    a(f"v_lshlrev_b32 v{B}, 16, v{V_T0}")
    a(f"v_sqrt_f32 v{B}, v{B}")
    a(f"v_cvt_pk_bf16_f32 v{V_T0}, v{B}, v{B}")
    a(f"v_lshlrev_b32 v{B}, 16, v{V_T0}")
    a(f"v_rcp_f32 v{B}, v{B}")
    set_exec(a, 0x5555555555555555)
    a(f"ds_write_b32 v{V_T1}, v{A} offset:{ST}")
    a(f"ds_write_b32 v{V_T1}, v{B} offset:{ST + 512}")
    a("s_mov_b64 exec, -1")
    a.label(f"{L}_GDONE")


def line_dma_voffsets(a, qpar_expr_rows, stride_s, coloff_s):
    a(f"v_lshrrev_b32 v20, 3, v{V_LANE}")
    a(f"v_and_b32 v21, 7, v{V_LANE}")
    a(f"v_bfe_u32 v22, v{V_LANE}, 4, 1")
    for q, dst in ((0, V_W0), (1, V_W1)):
        a(f"v_or_b32 v23, {2*q}, v22")
        a("v_lshlrev_b32 v23, 1, v23")
        a("v_xor_b32 v23, v23, v21")
        a(f"s_lshl_b32 s{S_B}, s{S_A}, 3")
        a(f"s_add_u32 s{S_B}, s{S_B}, {8*q}")
        a(f"v_add_u32 v24, s{S_B}, v20")
        a(f"v_mul_lo_u32 v24, v24, s{stride_s}")
        a("v_lshl_add_u32 v24, v23, 4, v24")
        a(f"v_add_u32 v{dst}, s{coloff_s}, v24")


def x_dma_voffsets(a):
    a(f"v_lshrrev_b32 v20, 3, v{V_LANE}")
    a(f"v_and_b32 v21, 7, v{V_LANE}")
    a(f"v_lshrrev_b32 v22, 4, v{V_LANE}")
    a(f"s_lshl_b32 s{S_A}, s{S_T}, 7")
    a(f"s_lshl_b32 s{S_B}, s{S_WAVE}, 4")
    a(f"s_add_u32 s{S_A}, s{S_A}, s{S_B}")
    for q, dst in ((0, V_X0), (1, V_X1)):
        a(f"v_add_u32 v23, {4*q}, v22")
        a("v_xor_b32 v23, v23, v21")
        a(f"v_add_u32 v24, s{S_A}, v20")
        if q:
            a("v_add_u32 v24, 8, v24")
        a("v_mul_u32_u24 v24, 1280, v24")
        a(f"v_lshl_add_u32 v{dst}, v23, 4, v24")
    a(f"s_lshl_b32 s{S_LX}, s{S_WAVE}, 11")
    a(f"s_add_u32 s{S_LX}, s{S_LX}, {XB}")


def line_read_addr(a, dst, u_s, u_add, base_s, base_add):
    a(f"v_lshrrev_b32 v56, 4, v{V_LANE}")
    a(f"v_bfe_u32 v57, v{V_LANE}, 2, 2")
    a(f"v_bfe_u32 v58, v{V_LANE}, 1, 1")
    a("v_lshrrev_b32 v59, 1, v57")
    a("v_and_b32 v60, 1, v56")
    a("v_lshl_or_b32 v59, v60, 1, v59")
    a("v_lshlrev_b32 v59, 1, v59")
    if u_s is None:
        a(f"v_or_b32 v60, {2*u_add}, v58")
    else:
        a(f"s_xor_b32 s{S_B}, s{u_s}, {u_add}")
        a(f"s_lshl_b32 s{S_B}, s{S_B}, 1")
        a(f"v_or_b32 v60, s{S_B}, v58")
    a("v_xor_b32 v60, v60, v59")
    a("v_lshl_add_u32 v61, v56, 3, v57")
    a("v_lshlrev_b32 v61, 7, v61")
    a("v_lshl_add_u32 v61, v60, 4, v61")
    a(f"v_and_b32 v60, 1, v{V_LANE}")
    a("v_lshl_add_u32 v61, v60, 3, v61")
    a(f"v_add_u32 v61, s{base_s}, v61")
    if base_add:
        a(f"v_add_u32 v{dst}, {base_add}, v61")
    else:
        a(f"v_mov_b32 v{dst}, v61")


def set_exec(a, m):
    a(f"s_mov_b32 exec_lo, 0x{m & 0xffffffff:x}")
    a(f"s_mov_b32 exec_hi, 0x{m >> 32:x}")


def job_issue(a):
    a(f"s_mul_i32 s{S_JOB}, s2, 3")
    a(f"s_add_u32 s{S_JOB}, s{S_JOB}, s{S_WAVE}")
    a(f"s_cmp_lt_u32 s{S_WAVE}, 3")
    a(f"s_cselect_b32 s{S_JOB}, s{S_JOB}, 1000")
    a(f"s_cmp_lt_u32 s{S_JOB}, 740")
    a("s_cbranch_scc0 {L}_NOJOB".replace("{L}", job_issue.L))
    a(f"s_mul_hi_u32 s62, s{S_JOB}, 0x1999999a")
    a("s_mul_i32 s63, s62, 10")
    a(f"s_sub_u32 s63, s{S_JOB}, s63")
    a("s_cmp_lt_u32 s62, 54")
    a("s_cselect_b32 s36, s16, s14")
    a("s_cselect_b32 s37, s17, s15")
    a(f"s_mov_b32 s38, {DFF*D*2}")
    a(f"s_cselect_b32 s38, s38, {D*D*2}")
    a("s_mov_b32 s39, 0x20000")
    a("s_cselect_b32 s64, 0, 54")
    a("s_sub_u32 s64, s62, s64")
    a("s_mul_i32 s65, s64, 40960")
    a("s_lshl_b32 s66, s63, 7")
    a("s_add_u32 s65, s65, s66")
    a(f"v_lshrrev_b32 v{V_T0}, 3, v{V_LANE}")
    a(f"v_mul_u32_u24 v{V_T0}, 1280, v{V_T0}")
    a(f"v_and_b32 v{V_T1}, 7, v{V_LANE}")
    a(f"v_lshl_add_u32 v{V_T0}, v{V_T1}, 4, v{V_T0}")
    a(f"s_lshl_b32 s66, s{S_WAVE}, 12")
    for q in range(4):
        a(f"s_add_u32 m0, s66, {JB + 1024*q}")
        a(f"buffer_load_dwordx4 v{V_T0}, s[36:39], s65 offen lds")
        if q < 3:
            a("s_add_u32 s65, s65, 10240")
    a.label(job_issue.L + "_NOJOB")


def job_finish(a, L, younger):
    a(f"s_cmp_lt_u32 s{S_JOB}, 740")
    a(f"s_cbranch_scc0 {L}_JOBDONE")
    a(f"s_waitcnt vmcnt({younger})")
    R = 200
    a(f"v_lshrrev_b32 v{R+16}, 4, v{V_LANE}")
    a(f"v_bfe_u32 v{R+17}, v{V_LANE}, 2, 2")
    a(f"v_lshl_add_u32 v{R+16}, v{R+16}, 2, v{R+17}")
    a(f"v_lshlrev_b32 v{R+16}, 7, v{R+16}")
    a(f"v_and_b32 v{R+17}, 3, v{V_LANE}")
    a(f"v_lshl_add_u32 v{R+16}, v{R+17}, 3, v{R+16}")
    a(f"s_lshl_b32 s66, s{S_WAVE}, 12")
    a(f"v_add_u32 v{R+16}, s66, v{R+16}")
    for jl in range(4):
        for b in range(2):
            a(f"ds_read_b64_tr_b16 {vr(R + 4*jl + 2*b, 2)}, v{R+16} offset:{JB + 2048*b + 32*jl}")
    a("s_cmp_lt_u32 s62, 54")
    a(f"s_cbranch_scc0 {L}_JO")
    a("s_mov_b32 s66, s62")
    for th in (14, 28, 41):
        a(f"s_cmp_ge_u32 s62, {th}")
        a("s_cselect_b32 s67, 5, 0")
        a("s_add_u32 s66, s66, s67")
    a(f"s_branch {L}_JS")
    a.label(f"{L}_JO")
    a("s_add_u32 s66, s64, 14")
    for th, inc in ((5, 14), (10, 13), (15, 13)):
        a(f"s_cmp_ge_u32 s64, {th}")
        a(f"s_cselect_b32 s67, {inc}, 0")
        a("s_add_u32 s66, s66, s67")
    a.label(f"{L}_JS")
    a("s_mul_i32 s66, s66, 40")
    a("s_lshl_b32 s67, s63, 2")
    a("s_add_u32 s66, s66, s67")
    a("s_lshl_b32 s66, s66, 10")
    a(f"s_add_u32 s66, s66, {WF}")
    a(f"v_lshlrev_b32 v{R+17}, 4, v{V_LANE}")
    a("s_waitcnt lgkmcnt(0)")
    for jl in range(4):
        a(f"buffer_store_dwordx4 {vr(R + 4*jl, 4)}, v{R+17}, s[28:31], s66 offen offset:{1024*jl}{stfl()}")
    a.label(f"{L}_JOBDONE")


def sigma_h_scalar(a, dst, src):
    a(f"s_mov_b32 s{dst}, s{src}")
    for th in (14, 28, 41):
        a(f"s_cmp_ge_u32 s{src}, {th}")
        a("s_cselect_b32 s67, 5, 0")
        a(f"s_add_u32 s{dst}, s{dst}, s67")


def relu_batch(a, items):
    for (acc, cs, st, dst) in items:
        a(f"v_pk_fma_f32 {vr(acc,2)}, {vr(cs,2)}, {vr(st,2)}, {vr(acc,2)} op_sel:[0,0,0] op_sel_hi:[1,0,1]")
    for (acc, cs, st, dst) in items:
        a(f"v_pk_mul_f32 {vr(acc,2)}, {vr(acc,2)}, {vr(st,2)} op_sel:[0,1] op_sel_hi:[1,1]")
    for (acc, cs, st, dst) in items:
        a(f"v_cvt_pk_bf16_f32 v{dst}, v{acc}, v{acc+1}")
    for (acc, cs, st, dst) in items:
        a(f"v_pk_max_i16 v{dst}, v{dst}, 0")


def phi_batch(a, items, TP, keep=None):
    n = 4 if keep else 2
    for i, (ac, dst, t_ops, p_ops, l_ops, v_ops) in enumerate(items):
        a(f"v_pk_fma_f32 {vr(ac,2)}, {t_ops}")
    for i, (ac, dst, t_ops, p_ops, l_ops, v_ops) in enumerate(items):
        a(f"v_pk_mul_f32 {vr(TP+n*i,2)}, {vr(ac,2)}, {l_ops}")
    if keep:
        for i, (ac, dst, t_ops, p_ops, l_ops, v_ops) in enumerate(items):
            a(f"v_pk_mul_f32 {vr(TP+n*i+2,2)}, {vr(ac,2)}, {v_ops}")
    for i, (ac, dst, t_ops, p_ops, l_ops, v_ops) in enumerate(items):
        a(f"v_exp_f32_e64 v{TP+n*i}, v{TP+n*i} clamp")
        a(f"v_pk_fma_f32 {vr(ac,2)}, {vr(ac,2)}, {p_ops}")
        a(f"v_exp_f32_e64 v{TP+n*i+1}, v{TP+n*i+1} clamp")
    for i, (ac, dst, t_ops, p_ops, l_ops, v_ops) in enumerate(items):
        a(f"v_max_f32 v{ac}, s76, v{ac}")
        a(f"v_max_f32 v{ac+1}, s76, v{ac+1}")
    for i, (ac, dst, t_ops, p_ops, l_ops, v_ops) in enumerate(items):
        a(f"v_pk_add_f32 {vr(ac,2)}, {vr(ac,2)}, {vr(TP+n*i,2)}")
    if keep:
        for i, (ac, dst, t_ops, p_ops, l_ops, v_ops) in enumerate(items):
            a(f"v_cndmask_b32 v{ac}, v{TP+n*i+2}, v{ac}, {keep}")
            a(f"v_cndmask_b32 v{ac+1}, v{TP+n*i+3}, v{ac+1}, {keep}")
    for i, (ac, dst, t_ops, p_ops, l_ops, v_ops) in enumerate(items):
        a(f"v_cvt_pk_bf16_f32 v{dst}, v{ac}, v{ac+1}")


HQ_ACC = ACC
HQ_CS = ACC + 64
HQ_W = ACC + 72
HQ_X = HQ_W + 32
V_AW, V_AX = V_ADR, V_ADR + 4


def hq_acc(u, tt):
    return HQ_ACC + (u * 4 + tt) * 4


def hq_w(st, u):
    return HQ_W + 16 * st + 4 * u


def hq_x(st, kh, tt):
    return HQ_X + 32 * st + 16 * kh + 4 * tt


def hq_reads_w(slot, st):
    return [[f"ds_read_b64_tr_b16 {vr(hq_w(st, u) + 2*s, 2)}, v{V_AW + u} offset:{slot*SLOT + 512*s}"]
            for u in range(4) for s in range(2)]


def hq_reads_x(xs, st):
    return [[f"ds_read_b128 {vr(hq_x(st, kh, tt), 4)}, v{V_AX + 4*kh + tt} offset:{xs*SLOT}"]
            for kh in range(2) for tt in range(4)]


class HQ:
    L = "K1_HQ"
    reads_w = staticmethod(hq_reads_w)
    reads_x = staticmethod(hq_reads_x)

    @staticmethod
    def mfmas(p, zero, extras):
        ws, xs, kh = p & 1, (p >> 1) & 1, p & 1
        mf = []
        for u in range(4):
            for tt in range(4):
                d = vr(hq_acc(u, tt), 4)
                mf.append(f"v_mfma_f32_16x16x32_bf16 {d}, {vr(hq_w(ws,u),4)}, {vr(hq_x(xs,kh,tt),4)}, {'0' if zero else d}")
            if extras:
                if u < 2:
                    c = vr(HQ_CS + 4 * u, 4)
                    mf.append(f"v_mfma_f32_16x16x32_bf16 {c}, {vr(hq_w(ws,u),4)}, {vr(ONES,4)}, {'0' if zero else c}")
                else:
                    mf.append(stats_mfma(hq_x(xs, kh, 0), zero)[u - 2])
        return mf

    @staticmethod
    def publish(a):
        a(f"s_and_b32 s70, s{S_WAVE}, 1")
        a(f"s_lshr_b32 s71, s{S_WAVE}, 1")
        a("s_lshl_b32 s72, s70, 6")
        a("s_lshl_b32 s73, s71, 4")
        a("s_add_u32 s73, s73, s72")
        publish_stats(a, 73)
        cp_base(a, 62)
        a("s_lshl_b32 s63, s71, 8")
        a("s_add_u32 s62, s62, s63")
        a(f"v_lshrrev_b32 v{V_T0}, 4, v{V_LANE}")
        a(f"v_lshlrev_b32 v{V_T0}, 4, v{V_T0}")
        a("s_lshl_b32 s74, s70, 1")
        set_exec(a, 0x0001000100010001)
        for u in range(2):
            a(f"s_xor_b32 s75, s74, {u}")
            a("s_lshl_b32 s75, s75, 6")
            a("s_add_u32 s75, s75, s62")
            a(f"buffer_store_dwordx4 {vr(HQ_CS + 4*u, 4)}, v{V_T0}, s[28:31], s75 offen sc1")
        a("s_mov_b64 exec, -1")
        return 3


def gen_hq(a):
    a.label("K1_HQ")
    a(f"s_and_b32 s62, s{S_WAVE}, 1")
    a(f"s_lshr_b32 s63, s{S_WAVE}, 1")
    a(f"s_mov_b32 s64, 0x{hq_word(HQ_TABLE[0]):x}")
    for hq in range(1, 8):
        a(f"s_cmp_eq_u32 s{S_IDX}, {hq}")
        a(f"s_cselect_b32 s64, 0x{hq_word(HQ_TABLE[hq]):x}, s64")
    a("s_lshl_b32 s65, s63, 3")
    a("s_lshr_b32 s64, s64, s65")
    a(f"s_and_b32 s{S_LINE}, s64, 63")
    a(f"s_bfe_u32 s{S_ISQ}, s64, 0x10007")
    a(f"s_bfe_u32 s{S_DUMMY}, s64, 0x10006")
    a(f"s_cmp_eq_u32 s{S_ISQ}, 1")
    a("s_cselect_b32 s24, s6, s8")
    a("s_cselect_b32 s25, s7, s9")
    a(f"s_mov_b32 s26, {D*3*D*2}")
    a(f"s_cselect_b32 s26, s26, {D*DFF*2}")
    a("s_mov_b32 s27, 0x20000")
    a("s_mov_b32 s65, 3840")
    a("s_cselect_b32 s65, s65, 3456")
    a(f"s_lshl_b32 s{S_WSTEP}, s65, 5")
    a(f"s_lshl_b32 s66, s{S_LINE}, 7")
    a(f"s_lshl_b32 s{S_A}, s62, 1")
    line_dma_voffsets(a, None, 65, 66)
    a("s_lshl_b32 s66, s63, 12")
    a("s_lshl_b32 s67, s62, 11")
    a(f"s_add_u32 s{S_LW0}, s66, s67")
    a(f"s_add_u32 s{S_LW1}, s{S_LW0}, 1024")
    x_dma_voffsets(a)
    a(f"s_cmp_ge_u32 s{S_IDX}, 5")
    a("s_cselect_b32 s68, 1, 0")
    a(f"s_cmp_lt_u32 s{S_T}, 6")
    a("s_cselect_b32 s68, s68, 0")
    a(f"s_cmp_eq_u32 s{S_WAVE}, 6")
    a("s_cselect_b32 s68, s68, 0")
    a(f"s_sub_u32 s69, s{S_IDX}, 5")
    a("s_mul_i32 s69, s69, 6")
    a(f"s_add_u32 s69, s69, s{S_T}")
    a(f"s_cmp_lt_u32 s69, {NZERO}")
    a("s_cselect_b32 s68, s68, 0")
    a("s_cmp_eq_u32 s68, 1")
    a("s_cbranch_scc0 K1_NOZERO")
    a("s_lshl_b32 s69, s69, 12")
    a(f"s_add_u32 s69, s69, {KVA}")
    for r in range(4):
        a(f"v_mov_b32 v{32+r}, 0")
    a(f"v_lshlrev_b32 v36, 4, v{V_LANE}")
    for q in range(4):
        a(f"buffer_store_dwordx4 v[32:35], v36, s[28:31], s69 offen offset:{1024*q} sc1")
    a.label("K1_NOZERO")
    prologue_dma(a)
    a(f"s_lshl_b32 s64, s62, 1")
    a("s_lshl_b32 s66, s63, 12")
    for u in range(4):
        line_read_addr(a, V_AW + u, 64, u, 66, 0)
    a(f"v_and_b32 v56, 15, v{V_LANE}")
    a(f"v_lshrrev_b32 v57, 4, v{V_LANE}")
    a("v_lshrrev_b32 v58, 1, v56")
    a("s_lshl_b32 s66, s62, 6")
    a("v_add_u32 v56, s66, v56")
    a("v_lshlrev_b32 v56, 7, v56")
    for kh in range(2):
        a(f"v_or_b32 v59, {4*kh}, v57")
        a("v_xor_b32 v59, v59, v58")
        a("v_lshl_add_u32 v59, v59, 4, v56")
        for tt in range(4):
            a(f"s_xor_b32 s66, s63, {tt}")
            a("s_lshl_b32 s66, s66, 11")
            a(f"s_add_u32 s66, s66, {XB}")
            a(f"v_add_u32 v{V_AX + 4*kh + tt}, s66, v59")
    init_common(a)
    stamp(a, 2)
    a("s_waitcnt vmcnt(8)")
    a("s_barrier")
    stamp(a, 3)
    for f in hq_reads_w(0, 0) + hq_reads_x(0, 0):
        a(f[0])
    a("s_waitcnt vmcnt(6) lgkmcnt(0)")
    a("s_cmp_eq_u32 s68, 1")
    a("s_cbranch_scc0 K1_NOZSIG")
    a("s_waitcnt vmcnt(6)")
    a("v_mov_b32 v10, 1")
    a("v_mov_b32 v11, 0")
    a("s_mov_b64 exec, 1")
    a("buffer_atomic_add v10, v11, s[32:35], 0 offen")
    a("s_mov_b64 exec, -1")
    a.label("K1_NOZSIG")
    emit_main(a, HQ)

    a.label("K1_HQ_EPI")
    stamp(a, 4)
    gather_stats(a, "K1_HQ")
    job_issue.L = "K1_HQ"
    job_issue(a)
    a(f"s_and_b32 s70, s{S_WAVE}, 1")
    a(f"s_lshr_b32 s71, s{S_WAVE}, 1")
    a("s_lshl_b32 s72, s70, 6")
    a(f"v_lshrrev_b32 v16, 4, v{V_LANE}")
    a("v_lshlrev_b32 v17, 4, v16")
    a("s_lshl_b32 s73, s71, 8")
    a("s_lshl_b32 s74, s70, 1")
    for u in range(4):
        a(f"s_xor_b32 s75, s74, {u}")
        a("s_lshl_b32 s75, s75, 6")
        a("s_add_u32 s75, s75, s73")
        a(f"v_add_u32 v{18+u}, s75, v17")
    a("s_waitcnt lgkmcnt(0)")
    a("s_barrier")
    stamp(a, 5)
    CSR, STR = HQ_W, HQ_W + 16
    for u in range(4):
        a(f"ds_read_b128 {vr(CSR + 4*u, 4)}, v{18+u} offset:{CS}")
    a(f"v_and_b32 v16, 15, v{V_LANE}")
    a("v_add_u32 v16, s72, v16")
    a("v_lshlrev_b32 v16, 2, v16")
    for tt in range(4):
        a(f"s_xor_b32 s75, s71, {tt}")
        a("s_lshl_b32 s75, s75, 6")
        a(f"s_add_u32 s75, s75, {ST}")
        a("v_add_u32 v17, s75, v16")
        a(f"ds_read2_b32 {vr(STR + 2*tt, 2)}, v17 offset1:128")
    a(f"s_lshl_b32 s{S_T64}, s{S_T}, 1")
    a(f"s_add_u32 s{S_T64}, s{S_T64}, s70")
    a(f"v_lshlrev_b32 v16, 4, v{V_LANE}")
    a("s_waitcnt lgkmcnt(0)")
    a(f"s_cmp_eq_u32 s{S_DUMMY}, 1")
    a("s_cbranch_scc1 K1_HQ_END")
    PK = HQ_X
    a(f"s_cmp_eq_u32 s{S_ISQ}, 1")
    a("s_cbranch_scc1 K1_HQ_Q")
    for pr in range(2):
        a(f"s_xor_b32 s72, s70, {pr}")
        a(f"s_lshl_b32 s73, s{S_LINE}, 1")
        a("s_add_u32 s72, s72, s73")
        sigma_h_scalar(a, 73, 72)
        a(f"s_mul_i32 s74, s{S_T64}, {NSIG}")
        a("s_add_u32 s73, s73, s74")
        a("s_lshl_b32 s73, s73, 12")
        for tt in range(4):
            f = PK + 4 * (pr * 4 + tt)
            relu_batch(a, [(hq_acc(2*pr + uu, tt) + 2*hh, CSR + 4*(2*pr + uu) + 2*hh, STR + 2*tt, f + 2*uu + hh)
                           for uu in range(2) for hh in range(2)])
            a(f"s_xor_b32 s75, s71, {tt}")
            a("s_lshl_b32 s75, s75, 10")
            a("s_add_u32 s75, s75, s73")
            a(f"buffer_store_dwordx4 {vr(f, 4)}, v16, s[28:31], s75 offen{stfl()}")
    a("s_branch K1_HQ_FIN")
    a.label("K1_HQ_Q")
    RL = HQ_W + 24
    for tt in range(4):
        a(f"v_mul_f32 v{RL + 2*tt}, 0x{LOG2E:x}, v{STR + 2*tt + 1}")
    a(f"s_mov_b32 s76, 0x{EPS6:x}")
    a(f"s_mov_b32 s77, 0x{EPS6:x}")
    TP = HQ_X + 32
    for pr in range(2):
        a(f"s_xor_b32 s72, s70, {pr}")
        a(f"s_lshl_b32 s73, s{S_LINE}, 1")
        a("s_add_u32 s72, s72, s73")
        a(f"s_mul_i32 s73, s{S_T64}, 40")
        a("s_add_u32 s73, s73, s72")
        a("s_lshl_b32 s73, s73, 11")
        a(f"s_add_u32 s73, s73, {PQ}")
        for tt in range(4):
            f = PK + 4 * (pr * 4 + tt)
            st = STR + 2 * tt
            items = []
            for uu in range(2):
                u = 2 * pr + uu
                for hh in range(2):
                    ac, cs = hq_acc(u, tt) + 2 * hh, CSR + 4 * u + 2 * hh
                    items.append((ac, f + 2 * uu + hh,
                                  f"{vr(cs,2)}, {vr(st,2)}, {vr(ac,2)} op_sel:[0,0,0] op_sel_hi:[1,0,1]",
                                  f"{vr(st,2)}, s[76:77] op_sel:[0,1,0] op_sel_hi:[1,1,1]",
                                  f"{vr(RL + 2*tt,2)} op_sel:[0,0] op_sel_hi:[1,0]", None))
            phi_batch(a, items, TP)
            a(f"s_xor_b32 s75, s71, {tt}")
            a("s_lshr_b32 s74, s75, 1")
            a("s_mul_i32 s74, s74, 40960")
            a("s_and_b32 s75, s75, 1")
            a("s_lshl_b32 s75, s75, 10")
            a("s_add_u32 s75, s75, s74")
            a("s_add_u32 s75, s75, s73")
            a(f"buffer_store_dwordx4 {vr(f, 4)}, v16, s[28:31], s75 offen{stfl()}")
    a.label("K1_HQ_FIN")
    stamp(a, 6)
    job_finish(a, "K1_HQ", 8)
    a.label("K1_HQ_END")
    a("s_branch K1_EXIT")
    emit_hooks(a, HQ)


def init_common(a):
    poll_address(a)
    for r in range(4):
        a(f"v_mov_b32 v{ONES + r}, 0x3f803f80")


KV_ACC = ACC
KV_CS = ACC + 56
KV_W = ACC + 64
KV_X = KV_W + 56
V_A01, V_A2, V_A34, V_AH = V_ADR, V_ADR + 1, V_ADR + 2, V_ADR + 3
V_AXK = V_ADR + 5
V_KVW = V_ADR + 9
ONES_UNITS = [(0, 1), (2, 3), (4, 5), (6,)]


def kv_acc(u, tt):
    return KV_ACC + (u * 2 + tt) * 4


def kv_w(st, u):
    return KV_W + 28 * st + 4 * u


def kv_x(st, kh, tt):
    return KV_X + 16 * st + 8 * kh + 4 * tt


def kv_reads_w(slot, st):
    f = []
    for u in range(7):
        for s in range(2):
            if u < 2:
                adr, off = V_A01, 32 * u + 1280 * s
            elif u == 2:
                adr, off = V_A2, 1280 * s
            elif u < 5:
                adr, off = V_A34, 32 * (u - 3) + 1280 * s
            else:
                adr, off = V_AH + (u - 5), 512 * s
            f.append([f"ds_read_b64_tr_b16 {vr(kv_w(st, u) + 2*s, 2)}, v{adr} offset:{slot*SLOT + off}"])
    return f


def kv_reads_x(xs, st):
    return [[f"ds_read_b128 {vr(kv_x(st, kh, tt), 4)}, v{V_AXK + 2*kh + tt} offset:{xs*SLOT}"]
            for kh in range(2) for tt in range(2)]


class KV:
    L = "K1_KV"
    reads_w = staticmethod(kv_reads_w)
    reads_x = staticmethod(kv_reads_x)

    @staticmethod
    def mfmas(p, zero, extras):
        ws, xs, kh = p & 1, (p >> 1) & 1, p & 1
        mf = []
        for u in range(7):
            w = vr(kv_w(ws, u), 4)
            for tt in range(2):
                x, d = vr(kv_x(xs, kh, tt), 4), vr(kv_acc(u, tt), 4)
                c = "0" if zero else d
                mf.append(f"v_mfma_f32_16x16x32_bf16 {d}, {x}, {w}, {c}" if u < 5 else
                          f"v_mfma_f32_16x16x32_bf16 {d}, {w}, {x}, {c}")
            if extras:
                d = vr(CSX + 4 * u, 4)
                c = "0" if zero else d
                mf.append(f"v_mfma_f32_16x16x32_bf16 {d}, {vr(ONES,4)}, {w}, {c}" if u < 5 else
                          f"v_mfma_f32_16x16x32_bf16 {d}, {w}, {vr(ONES,4)}, {c}")
        if extras:
            mf += stats_mfma(kv_x(xs, kh, 0), zero)
        return mf

    @staticmethod
    def publish(a):
        a(f"s_and_b32 s70, s{S_WAVE}, 1")
        a(f"s_lshr_b32 s71, s{S_WAVE}, 1")
        a("s_lshl_b32 s72, s71, 5")
        a("s_lshl_b32 s73, s70, 4")
        a("s_add_u32 s73, s73, s72")
        publish_stats(a, 73)
        cp_base(a, 62)
        a("s_lshl_b32 s63, s70, 9")
        a("s_add_u32 s62, s62, s63")
        a(f"v_and_b32 v{V_T0}, 15, v{V_LANE}")
        a(f"v_lshlrev_b32 v{V_T0}, 2, v{V_T0}")
        a(f"v_lshrrev_b32 v{V_T1}, 4, v{V_LANE}")
        a(f"v_lshlrev_b32 v{V_T1}, 4, v{V_T1}")
        set_exec(a, 0xFFFF)
        for u in range(5):
            a(f"buffer_store_dword v{CSX + 4*u}, v{V_T0}, s[28:31], s62 offen offset:{64*u} sc1")
        set_exec(a, 0x0001000100010001)
        for u in range(5, 7):
            a(f"buffer_store_dwordx4 {vr(CSX + 4*u, 4)}, v{V_T1}, s[28:31], s62 offen offset:{320 + 64*(u-5)} sc1")
        a("s_mov_b64 exec, -1")
        return 8


def kv_tile_mask(ua, ub):
    m = 0
    for l in range(64):
        e16, g = l & 15, l >> 4
        d0 = 16 * ua + 4 * g
        e = {2: e16 - 8, 3: 8 + e16, 4: 24 + e16}[ub]
        if d0 < 40 and e >= 0 and (d0 >= 20) == (e >= 20):
            m |= 1 << l
    return m


def gen_kv(a):
    a.label("K1_KV")
    a(f"s_and_b32 s62, s{S_WAVE}, 1")
    a(f"s_lshr_b32 s63, s{S_WAVE}, 1")
    a(f"s_cmp_lt_u32 s{S_WAVE}, 5")
    a("s_cbranch_scc0 K1_KV_HD")
    a("s_mov_b32 s24, s6")
    a("s_mov_b32 s25, s7")
    a(f"s_mov_b32 s26, {D*3*D*2}")
    a("s_mov_b32 s27, 0x20000")
    a(f"s_mov_b32 s{S_WSTEP}, {3840*32}")
    a(f"s_lshl_b32 s64, s{S_WAVE}, 6")
    a(f"v_add_u32 v20, s64, v{V_LANE}")
    a("v_mul_u32_u24 v21, 6554, v20")
    a("v_lshrrev_b32 v21, 16, v21")
    a("v_mul_u32_u24 v22, 10, v21")
    a("v_sub_u32 v22, v20, v22")
    a("v_and_b32 v23, 0x13, v21")
    a("v_bfe_u32 v24, v21, 2, 1")
    a("v_lshl_or_b32 v23, v24, 3, v23")
    a("v_bfe_u32 v24, v21, 3, 1")
    a("v_lshl_or_b32 v23, v24, 2, v23")
    a("v_mul_u32_u24 v23, 3840, v23")
    a("v_lshl_add_u32 v23, v22, 4, v23")
    a(f"s_mul_i32 s64, s{S_IDX}, 160")
    a("s_add_u32 s65, s64, 1280")
    a(f"v_add_u32 v{V_W0}, s65, v23")
    a("s_add_u32 s65, s64, 2560")
    a(f"v_add_u32 v{V_W1}, s65, v23")
    a(f"s_lshl_b32 s{S_LW0}, s{S_WAVE}, 10")
    a(f"s_add_u32 s{S_LW1}, s{S_LW0}, {VB}")
    a("s_branch K1_KV_D1")
    a.label("K1_KV_HD")
    a("s_mov_b32 s24, s8")
    a("s_mov_b32 s25, s9")
    a(f"s_cmp_lt_u32 s{S_WAVE}, 7")
    a(f"s_cselect_b32 s26, {D*DFF*2}, 0")
    a("s_mov_b32 s27, 0x20000")
    a(f"s_mov_b32 s{S_WSTEP}, {3456*32}")
    a(f"s_sub_u32 s{S_A}, s{S_WAVE}, 5")
    a(f"s_lshl_b32 s{S_A}, s{S_A}, 1")
    a("s_mov_b32 s65, 3456")
    a(f"s_lshl_b32 s66, s{S_IDX}, 7")
    a(f"s_lshl_b32 s{S_LW0}, s{S_A}, 10")
    a(f"s_add_u32 s{S_LW0}, s{S_LW0}, {HB}")
    a(f"s_add_u32 s{S_LW1}, s{S_LW0}, 1024")
    a(f"s_cmp_lt_u32 s{S_WAVE}, 7")
    a(f"s_cselect_b32 s{S_LW0}, s{S_LW0}, {HB + 4096}")
    a(f"s_cselect_b32 s{S_LW1}, s{S_LW1}, {SLOT - 1024}")
    line_dma_voffsets(a, None, 65, 66)
    a.label("K1_KV_D1")
    x_dma_voffsets(a)
    prologue_dma(a)
    a(f"v_lshrrev_b32 v56, 4, v{V_LANE}")
    a(f"v_bfe_u32 v57, v{V_LANE}, 2, 2")
    a(f"v_and_b32 v58, 3, v{V_LANE}")
    a("v_lshrrev_b32 v59, 1, v56")
    a("v_lshlrev_b32 v59, 4, v59")
    a("v_and_b32 v60, 1, v56")
    a("v_lshl_add_u32 v59, v60, 2, v59")
    a("v_add_u32 v59, v59, v57")
    a("v_mul_u32_u24 v59, 160, v59")
    a("s_mul_i32 s64, s62, 80")
    a("v_add_u32 v59, s64, v59")
    a(f"v_lshl_add_u32 v{V_A01}, v58, 3, v59")
    a(f"v_add_u32 v{V_A34}, {VB + 16}, v{V_A01}")
    a(f"v_add_u32 v60, 64, v{V_A01}")
    a(f"v_add_u32 v61, {VB - 16}, v{V_A01}")
    a("v_cmp_gt_u32 vcc, 2, v58")
    a(f"v_cndmask_b32 v{V_A2}, v61, v60, vcc")
    a("s_lshl_b32 s64, s62, 1")
    a(f"s_mov_b32 s66, {HB}")
    for uu in range(2):
        line_read_addr(a, V_AH + uu, 64, uu, 66, 0)
    a(f"v_and_b32 v56, 15, v{V_LANE}")
    a(f"v_lshrrev_b32 v57, 4, v{V_LANE}")
    a("v_lshrrev_b32 v58, 1, v56")
    for tt in range(2):
        a(f"s_xor_b32 s64, s62, {tt}")
        a("s_lshl_b32 s64, s64, 4")
        a("s_lshl_b32 s65, s63, 5")
        a("s_add_u32 s64, s64, s65")
        a("v_add_u32 v60, s64, v56")
        a("v_lshlrev_b32 v60, 7, v60")
        for kh in range(2):
            a(f"v_or_b32 v59, {4*kh}, v57")
            a("v_xor_b32 v59, v59, v58")
            a("v_lshl_add_u32 v59, v59, 4, v60")
            a(f"v_add_u32 v{V_AXK + 2*kh + tt}, {XB}, v59")
    a("v_mul_u32_u24 v59, 80, v56")
    a("v_lshl_add_u32 v59, v57, 4, v59")
    a("s_mul_i32 s64, s63, 6720")
    a("s_mul_i32 s65, s62, 3360")
    a("s_add_u32 s64, s64, s65")
    a(f"s_add_u32 s64, s64, {KVR - 640}")
    a(f"v_add_u32 v{V_KVW}, s64, v59")
    init_common(a)
    stamp(a, 2)
    a("s_waitcnt vmcnt(8)")
    a("s_barrier")
    stamp(a, 3)
    for f in kv_reads_w(0, 0) + kv_reads_x(0, 0):
        a(f[0])
    a("s_waitcnt vmcnt(6) lgkmcnt(0)")
    emit_main(a, KV)

    a.label("K1_KV_EPI")
    stamp(a, 4)
    gather_stats(a, "K1_KV")
    job_issue.L = "K1_KV"
    job_issue(a)
    a(f"s_and_b32 s70, s{S_WAVE}, 1")
    a(f"s_lshr_b32 s71, s{S_WAVE}, 1")
    a("s_lshl_b32 s72, s71, 5")
    a("s_waitcnt lgkmcnt(0)")
    a("s_barrier")
    stamp(a, 5)
    NM, RSV, RL = KV_W, KV_W + 8, KV_W + 16
    CSK = KV_W + 24
    CSH = KV_W + 32
    STH = KV_W + 40
    TP = KV_X + 32
    FR = KV_X
    a(f"v_lshrrev_b32 v16, 4, v{V_LANE}")
    a(f"v_and_b32 v17, 15, v{V_LANE}")
    for tt in range(2):
        a(f"s_xor_b32 s73, s70, {tt}")
        a("s_lshl_b32 s73, s73, 4")
        a("s_add_u32 s73, s73, s72")
        a("s_lshl_b32 s73, s73, 2")
        a("v_lshl_add_u32 v18, v16, 4, s73")
        a(f"ds_read_b128 {vr(NM + 4*tt, 4)}, v18 offset:{ST}")
        a(f"ds_read_b128 {vr(RSV + 4*tt, 4)}, v18 offset:{ST + 512}")
        a("v_lshl_add_u32 v19, v17, 2, s73")
        a(f"v_add_u32 v19, {ST}, v19")
        a(f"ds_read2_b32 {vr(STH + 2*tt, 2)}, v19 offset1:128")
    a("s_lshl_b32 s73, s70, 9")
    a("v_lshl_add_u32 v18, v17, 2, s73")
    for u in range(5):
        a(f"ds_read_b32 v{CSK + u}, v18 offset:{CS + 64*u}")
    a("v_lshl_add_u32 v18, v16, 4, s73")
    for uu in range(2):
        a(f"ds_read_b128 {vr(CSH + 4*uu, 4)}, v18 offset:{CS + 320 + 64*uu}")
    a(f"s_mov_b32 s76, 0x{EPS6:x}")
    a(f"s_mov_b32 s77, 0x{EPS6:x}")
    a("s_mov_b32 s78, 0x00ff00ff")
    a("s_mov_b32 s79, 0x00ff00ff")
    a("s_waitcnt lgkmcnt(0)")
    for i in range(8):
        a(f"v_mul_f32 v{RL + i}, 0x{LOG2E:x}, v{RSV + i}")
    a(f"s_lshl_b32 s72, s{S_IDX}, 1")
    a("s_add_u32 s72, s72, s70")
    sigma_h_scalar(a, 73, 72)
    a(f"s_lshl_b32 s{S_T64}, s{S_T}, 1")
    a("s_lshr_b32 s74, s71, 1")
    a(f"s_add_u32 s{S_T64}, s{S_T64}, s74")
    a(f"s_mul_i32 s74, s{S_T64}, {NSIG}")
    a("s_add_u32 s73, s73, s74")
    a("s_lshl_b32 s73, s73, 2")
    a("s_and_b32 s74, s71, 1")
    a("s_lshl_b32 s74, s74, 1")
    a("s_add_u32 s73, s73, s74")
    a(f"v_lshlrev_b32 v16, 4, v{V_LANE}")
    for tt in range(2):
        f = FR + 20 + 4 * tt
        relu_batch(a, [(kv_acc(5 + uu, tt) + 2*hh, CSH + 4*uu + 2*hh, STH + 2*tt, f + 2*uu + hh)
                       for uu in range(2) for hh in range(2)])
        a(f"s_xor_b32 s74, s70, {tt}")
        a("s_add_u32 s74, s74, s73")
        a("s_lshl_b32 s74, s74, 10")
        a(f"buffer_store_dwordx4 {vr(f, 4)}, v16, s[28:31], s74 offen{stfl()}")
    for u in range(5):
        cs = CSK + u
        csp = cs & ~1
        sel = cs & 1
        items = []
        for tt in range(2):
            for hh in range(2):
                ac = kv_acc(u, tt) + 2 * hh
                nm, rs, rl = NM + 4 * tt + 2 * hh, RSV + 4 * tt + 2 * hh, RL + 4 * tt + 2 * hh
                dst = FR + 4 * u + 2 * tt + hh
                t_ops = f"{vr(nm,2)}, {vr(csp,2)}, {vr(ac,2)} op_sel:[0,{sel},0] op_sel_hi:[1,{sel},1]"
                items.append((ac, dst, t_ops, f"{vr(rs,2)}, s[76:77]", f"{vr(rl,2)}", f"{vr(rs,2)}"))
        if u < 3:
            phi_batch(a, items, TP, keep="s[78:79]" if u == 2 else None)
        else:
            for (ac, dst, t_ops, _, _, v_ops) in items:
                a(f"v_pk_fma_f32 {vr(ac,2)}, {t_ops}")
            for (ac, dst, t_ops, _, _, v_ops) in items:
                a(f"v_pk_mul_f32 {vr(ac,2)}, {vr(ac,2)}, {v_ops}")
            for (ac, dst, t_ops, _, _, v_ops) in items:
                a(f"v_cvt_pk_bf16_f32 v{dst}, v{ac}, v{ac+1}")
    tiles = [(0, 2), (0, 3), (1, 2), (1, 3), (1, 4), (2, 3), (2, 4)]
    KT = KV_ACC
    for i, (ua, ub) in enumerate(tiles):
        mfma(a, KT + 4 * i, FR + 4 * ua, FR + 4 * ub, "0")
    for ua in range(3):
        mfma(a, KT + 28 + 4 * ua, FR + 4 * ua, ONES, "0")
    for i, (ua, ub) in enumerate(tiles):
        eoff = {2: -8, 3: 8, 4: 24}[ub]
        set_exec(a, kv_tile_mask(ua, ub))
        a(f"ds_write_b128 v{V_KVW}, {vr(KT + 4*i, 4)} offset:{80*(eoff + 8) + 64*ua}")
    for ua in range(3):
        for hd in range(2):
            m = 0
            for g in range(4):
                d0 = 16 * ua + 4 * g
                if d0 < 40 and (d0 >= 20) == (hd == 1):
                    m |= 1 << (16 * g)
            if m:
                set_exec(a, m)
                a(f"ds_write_b128 v{V_KVW}, {vr(KT + 28 + 4*ua, 4)} offset:{640 + 1600*(hd+1) + 64*ua}")
    a("s_mov_b64 exec, -1")
    a("s_waitcnt lgkmcnt(0)")
    a("s_barrier")
    a("v_lshlrev_b32 v17, 2, v0")
    a(f"v_add_u32 v18, {KVR}, v17")
    SM = KV_ACC
    for n in range(4):
        for r in range(4):
            a(f"ds_read_b32 v{SM + 4*n + r}, v18 offset:{2048*n + 6720*r}")
    a(f"s_mul_i32 s72, s{S_IDX}, 6720")
    a(f"s_add_u32 s72, s72, {KVA}")
    a("s_add_u32 s40, s10, s72")
    a("s_addc_u32 s41, s11, 0")
    a("s_mov_b32 s42, 6720")
    a("s_mov_b32 s43, 0x20000")
    a("s_waitcnt lgkmcnt(0)")
    for n in range(4):
        a(f"v_add_f32 v{SM + 4*n}, v{SM + 4*n}, v{SM + 4*n + 1}")
        a(f"v_add_f32 v{SM + 4*n + 2}, v{SM + 4*n + 2}, v{SM + 4*n + 3}")
        a(f"v_add_f32 v{SM + 4*n}, v{SM + 4*n}, v{SM + 4*n + 2}")
    stamp(a, 6)
    for n in range(4):
        if n < 2:
            a(f"buffer_atomic_add_f32 v{SM + 4*n}, v17, s[40:43], 0 offen offset:{2048*n}")
        else:
            if n == 2:
                a("v_add_u32 v18, 4096, v17")
            a(f"buffer_atomic_add_f32 v{SM + 4*n}, v18, s[40:43], 0 offen offset:{2048*(n-2)}")
    job_finish(a, "K1_KV", 6)
    a("s_branch K1_EXIT")
    emit_hooks(a, KV)


def gen_k1():
    a = Asm()
    a("s_cmp_ge_u32 s2, 256")
    a("s_cbranch_scc1 K1_END")
    if asmlib.DIAG:
        for i in range(80, 96):
            a(f"s_mov_b32 s{i}, 0")
    stamp(a, 0)
    a("s_load_dwordx4 s[4:7], s[0:1], 0")
    a("s_load_dwordx2 s[14:15], s[0:1], 16")
    a("s_load_dwordx2 s[8:9], s[0:1], 32")
    a("s_load_dwordx2 s[16:17], s[0:1], 40")
    a("s_load_dwordx2 s[12:13], s[0:1], 56")
    a("s_load_dwordx2 s[10:11], s[0:1], 64")
    a(f"v_and_b32 v{V_LANE}, 63, v0")
    a("v_lshrrev_b32 v2, 6, v0")
    a("s_and_b32 s62, s2, 7")
    a(f"v_readfirstlane_b32 s{S_WAVE}, v2")
    a("s_lshr_b32 s63, s2, 3")
    a("s_and_b32 s64, s62, 1")
    a("s_lshl_b32 s64, s64, 3")
    a("s_and_b32 s65, s63, 7")
    a(f"s_add_u32 s{S_T}, s64, s65")
    a("s_lshr_b32 s64, s62, 1")
    a("s_lshr_b32 s65, s63, 3")
    a("s_lshl_b32 s64, s64, 1")
    a("s_and_b32 s66, s65, 1")
    a(f"s_add_u32 s{S_IDX}, s64, s66")
    a("s_lshr_b32 s66, s65, 1")
    a("s_lshl_b32 s66, s66, 3")
    a(f"s_add_u32 s{S_CG}, s{S_IDX}, s66")
    a("s_waitcnt lgkmcnt(0)")
    stamp(a, 1)
    srd(a, 20, 4, S * D * 2)
    srd(a, 28, 10, WS_USED)
    srd(a, 32, 12, 256)
    a("s_cmp_ge_u32 s65, 2")
    a("s_cbranch_scc1 K1_HQ")
    gen_kv(a)
    gen_hq(a)
    a.label("K1_EXIT")
    a("s_waitcnt vmcnt(0)")
    stamp(a, 7)
    stamp_flush(a, 0, S_WAVE, "s[28:31]", STAMPS)
    a.label("K1_END")
    a("s_endpgm")
    return a


if __name__ == "__main__":
    print(gen_k1().text())
```

```python
S, D, DFF, H, DH = 2048, 640, 1728, 32, 20
NSIG = 74
ACT = 0
PQ = 0x0A00000
WF = 0x0D00000
KVA = 0x1000000
FLG = KVA + 0xE000
F1 = KVA + 0xF000
ZERO_BYTES = 0x10000
STAMPS = 0x1010000
SP = 0x1090000
CP = 0x10D0000
WS_USED = 0x1110000
OOB = 0x40000000

H0 = [0, 14, 28, 41, 54]
SIG0 = [0, 19, 38, 56]
OBASE = [14, 28, 41, 54]


def sigma_h(s):
    return s + 5 * ((s >= 14) + (s >= 28) + (s >= 41))


def sigma_o(s):
    return s + OBASE[s // 5]


def kappa(g, jj):
    return 16 * (jj >> 2) + 4 * g + (jj & 3)
```

```python
import re

TRANS = ("v_exp_f32", "v_log_f32", "v_rcp_f32", "v_rsq_f32", "v_sqrt_f32", "v_sin_f32", "v_cos_f32")


def vr(a, n=1):
    return f"v{a}" if n == 1 else f"v[{a}:{a+n-1}]"


def sr(a, n=1):
    return f"s{a}" if n == 1 else f"s[{a}:{a+n-1}]"


_REG = re.compile(r"^(-|abs\()?\s*([vsa])(\d+)\)?$|^(-|abs\()?\s*([vsa])\[(\d+):(\d+)\]\)?$")


def regs_of(tok):
    tok = tok.strip().replace("|", "")
    if tok in ("vcc", "vcc_lo", "vcc_hi"):
        return {("s", "vcc")}
    if tok == "m0":
        return {("s", "m0")}
    if tok in ("exec", "exec_lo", "exec_hi"):
        return {("s", "exec")}
    m = _REG.match(tok)
    if not m:
        return set()
    if m.group(2):
        return {(m.group(2), int(m.group(3)))}
    return {(m.group(5), i) for i in range(int(m.group(6)), int(m.group(7)) + 1)}


class Ins:
    __slots__ = ("text", "op", "ops", "kind", "w", "r", "states", "passes", "cread", "sdata")

    def __init__(self, text):
        self.text = text
        t = text.split(";")[0].strip()
        self.op, _, rest = t.partition(" ")
        op = self.op
        raw = [x.strip() for x in rest.split(",")] if rest.strip() else []
        ops = []
        for x in raw:
            ops.append(x.split(" ")[0] if not x.startswith("abs(") else x)
        self.ops = ops
        self.w, self.r = set(), set()
        self.cread, self.sdata = set(), set()
        self.states = 1
        self.passes = 0
        R = regs_of
        if op == "s_nop":
            self.kind = "nop"
            self.states = int(ops[0]) + 1
        elif op.startswith("v_mfma"):
            self.kind = "mfma"
            self.passes = 8 if "32x32" in op else 4
            self.w = R(ops[0])
            self.r = R(ops[1]) | R(ops[2]) | R(ops[3])
            self.cread = R(ops[3])
        elif op.startswith("v_cmp"):
            self.kind = "valu"
            self.w = R(ops[0])
            if op.startswith("v_cmpx"):
                self.w |= {("s", "exec")}
            for x in ops[1:]:
                self.r |= R(x)
        elif op.startswith("v_readfirstlane") or op.startswith("v_readlane"):
            self.kind = "valu"
            self.w = R(ops[0])
            for x in ops[1:]:
                self.r |= R(x)
        elif op.startswith("v_permlane") and "swap" in op:
            self.kind = "valu"
            self.w = R(ops[0]) | R(ops[1])
            self.r = set(self.w)
        elif op.startswith("v_"):
            self.kind = "valu"
            self.w = R(ops[0])
            rest_ops = ops[1:]
            if op.startswith(("v_add_co", "v_sub_co", "v_addc_co", "v_subb_co")):
                self.w |= R(ops[1])
                rest_ops = ops[2:]
            for x in rest_ops:
                self.r |= R(x)
            if op.startswith(("v_fmac", "v_dot2c", "v_mac", "v_writelane")) or "dpp" in t or "sdwa" in op:
                self.r |= R(ops[0])
            if op.startswith("v_cndmask") and len(ops) == 3:
                self.r |= {("s", "vcc")}
        elif op.startswith("ds_"):
            self.kind = "ds"
            if op.startswith(("ds_read", "ds_bpermute", "ds_permute", "ds_swizzle")) or "_rtn" in op:
                self.w = R(ops[0])
                for x in ops[1:]:
                    self.r |= R(x)
            else:
                for x in ops:
                    self.r |= R(x)
        elif op.startswith(("buffer_", "global_")):
            self.kind = "vmem"
            lds = " lds" in (" " + t)
            if op.startswith(("buffer_inv", "buffer_wbl2")):
                pass
            elif op.startswith("buffer_load") and not lds:
                self.w = R(ops[0])
                for x in ops[1:]:
                    self.r |= R(x)
            elif op.startswith("buffer_load") and lds:
                for x in ops:
                    self.r |= R(x)
                self.r |= {("s", "m0")}
            elif op.startswith("global_load") and "lds" not in op:
                self.w = R(ops[0])
                for x in ops[1:]:
                    self.r |= R(x)
            elif op.startswith("buffer_store") or op.startswith("buffer_atomic"):
                for x in ops:
                    self.r |= R(x)
                if op.startswith("buffer_atomic") and " sc0" in t:
                    self.w = R(ops[0])
                if "dwordx4" in op or "dwordx3" in op:
                    self.sdata = R(ops[0])
            else:
                for x in ops:
                    self.r |= R(x)
                if op.startswith("global_store") and ("dwordx4" in op or "dwordx3" in op):
                    self.sdata = R(ops[1])
        elif op.startswith("s_"):
            self.kind = "salu"
            if op.startswith(("s_cmp", "s_cbranch", "s_branch", "s_waitcnt", "s_barrier", "s_endpgm", "s_sleep",
                              "s_setprio", "s_bitcmp", "s_setpc")):
                for x in ops:
                    self.r |= R(x)
            else:
                self.w = R(ops[0]) if ops else set()
                for x in ops[1:]:
                    self.r |= R(x)
                if "saveexec" in op:
                    self.w |= {("s", "exec")}
        else:
            raise ValueError("unknown instruction: " + text)

    @property
    def is_trans(self):
        return self.op.replace("_e32", "").replace("_e64", "") in TRANS


def need_states(p, c):
    n = 0
    pv = {x for x in p.w if x[0] in "va"}
    ps = {x for x in p.w if x[0] == "s"}
    if p.kind == "valu":
        if pv & c.r:
            if c.kind == "mfma":
                n = max(n, 2)
            if c.op.startswith(("v_readfirstlane", "v_readlane")):
                n = max(n, 1)
            if c.op.startswith("v_permlane") or "dpp" in c.text:
                n = max(n, 2)
            if p.is_trans and c.kind == "valu" and not c.is_trans:
                n = max(n, 1)
            if p.is_trans and c.kind == "valu" and c.is_trans:
                n = max(n, 1)
            if "sdwa" in p.text or "op_sel" in p.text and not p.op.startswith("v_pk"):
                if c.kind == "valu":
                    n = max(n, 1)
        if ps & c.r:
            if c.kind == "valu":
                n = max(n, 4 if c.op.startswith(("v_readlane", "v_writelane")) else 2)
            if c.kind == "vmem":
                n = max(n, 5)
            if c.kind == "salu":
                n = max(n, 4)
            if c.kind == "mfma":
                n = max(n, 4)
        if ("s", "exec") in ps and c.kind in ("valu", "mfma"):
            n = max(n, 5 if "dpp" in c.text else 4)
    if p.kind == "mfma":
        P = p.passes
        raw_other = {4: 8, 8: 12}[P]
        if c.kind == "mfma":
            ab = regs_of(c.ops[1]) | regs_of(c.ops[2])
            if p.w & ab:
                n = max(n, raw_other)
            if p.w & c.cread and not (p.w == c.cread and p.passes == c.passes):
                n = max(n, {4: 6, 8: 10}[P])
            if p.w & c.w and not (p.w == c.cread):
                n = max(n, {4: 6, 8: 10}[P])
        else:
            if p.w & (c.r | c.w):
                n = max(n, raw_other)
            if c.kind == "valu" and p.cread & c.w:
                n = max(n, {4: 3, 8: 7}[P])
    if p.kind == "salu" and ("s", "m0") in p.w and c.kind == "vmem" and ("s", "m0") in c.r:
        n = max(n, 1)
    if p.kind == "salu" and ("s", "exec") in p.w and "dpp" in c.text:
        n = max(n, 1)
    if p.sdata and (p.sdata & c.w):
        n = max(n, 2)
    return n


class Asm:
    def __init__(self):
        self.items = []

    def __call__(self, text):
        for line in text.split("\n"):
            line = line.strip()
            if line:
                self.items.append(line)

    def label(self, name):
        self.items.append(name + ":")

    def comment(self, text):
        self.items.append("; " + text)

    def raw(self, text):
        self.items.append("#RAW#" + text)

    def padded(self):
        out = []
        hist = []
        pos = 0
        W = 14

        def pad_for(c):
            nonlocal pos
            need = 0
            for (p, ppos) in hist:
                k = need_states(p, c)
                if k:
                    have = pos - ppos - p.states
                    need = max(need, k - have)
            while need > 0:
                n = min(need, 16)
                out.append(f"s_nop {n-1}")
                i = Ins(f"s_nop {n-1}")
                hist.append((i, pos))
                pos += n
                need -= n

        for it in self.items:
            if it.startswith("#RAW#"):
                out.append(it[5:])
                continue
            if it.startswith(";") or it.endswith(":") or it.startswith("."):
                out.append(it)
                continue
            c = Ins(it)
            pad_for(c)
            out.append(it)
            hist.append((c, pos))
            pos += c.states
            while hist and pos - hist[0][1] > W + 16:
                hist.pop(0)
        return out

    def check_branches(self, lines):
        idx = {l[:-1]: i for i, l in enumerate(lines) if l.endswith(":") and not l.startswith(";")}
        isins = lambda l: not (l.startswith(";") or l.endswith(":") or l.startswith(".") or not l.strip())
        problems = []
        for i, l in enumerate(lines):
            if not isins(l):
                continue
            op = l.split()[0]
            if op.startswith(("s_cbranch", "s_branch")):
                tgt = l.split()[1]
                if tgt not in idx:
                    continue
                before = []
                j = i
                while j >= 0 and len(before) < 16:
                    if isins(lines[j]):
                        before.append(Ins(lines[j]))
                    j -= 1
                before.reverse()
                after = []
                j = idx[tgt]
                while j < len(lines) and len(after) < 14:
                    if isins(lines[j]):
                        after.append(Ins(lines[j]))
                        if after[-1].op in ("s_branch", "s_endpgm"):
                            break
                    j += 1
                seq = before + after
                posn = []
                p = 0
                for x in seq:
                    posn.append(p)
                    p += x.states
                for a in range(len(before)):
                    for b in range(len(before), len(seq)):
                        k = need_states(seq[a], seq[b])
                        if k and posn[b] - posn[a] - seq[a].states < k:
                            problems.append((seq[a].text, seq[b].text, k))
        return problems

    def text(self):
        lines = self.padded()
        probs = self.check_branches(lines)
        if probs:
            for p in probs:
                print("HAZARD across branch:", p)
            raise SystemExit("hazards across branches")
        out = []
        for l in lines:
            if l.endswith(":") or l.startswith(".") or l.startswith(";"):
                out.append(l)
            else:
                out.append("  " + l)
        return "\n".join(out) + "\n"


def kernel_header(name):
    return (f".globl {name}\n.p2align 8\n.type {name},@function\n{name}:\n")


def kernel_desc(name, vgpr=256, sgpr=96, accum=256):
    return (f".amdhsa_kernel {name}\n  .amdhsa_next_free_vgpr {vgpr}\n  .amdhsa_next_free_sgpr {sgpr}\n"
            f"  .amdhsa_accum_offset {accum}\n  .amdhsa_group_segment_fixed_size 0\n  .amdhsa_kernarg_size 72\n"
            f"  .amdhsa_user_sgpr_count 2\n  .amdhsa_user_sgpr_kernarg_segment_ptr 1\n"
            f"  .amdhsa_system_sgpr_workgroup_id_x 1\n.end_amdhsa_kernel\n")


DIAG = False
EXP = set()


STAMPSET = 1


def stamp(a, i, group=None):
    if DIAG and group in (None, STAMPSET):
        a(f"{'s_memtime' if 'cyc' in EXP else 's_memrealtime'} s[{80+2*i}:{81+2*i}]")


def stamp_flush(a, launch, wave_s, srd, stamps_off):
    if not DIAG:
        return
    a("s_waitcnt vmcnt(0) lgkmcnt(0)")
    a(f"s_lshl_b32 s78, s2, 3")
    a(f"s_add_u32 s78, s78, s{wave_s}")
    a(f"s_add_u32 s78, s78, {launch*2048}")
    a(f"s_lshl_b32 s78, s78, 6")
    a(f"s_add_u32 s78, s78, {stamps_off}")
    a("v_mov_b32 v0, 0")
    for i in range(8):
        a(f"v_mov_b32 v2, s{80+2*i}")
        a(f"v_mov_b32 v3, s{81+2*i}")
        a(f"buffer_store_dwordx2 v[2:3], v0, {srd}, s78 offen offset:{8*i}")
        a("s_waitcnt vmcnt(0)")
```

```python
import asmlib
from asmlib import *
from layout import *
from km2 import srd, SPIN_MAX, gen_phase2, LW, KM_LDS

KM = "parallel_sum__linear_attn_block__dense_activation_relu__prompt_kernel"
SLOT = 16384
XB = 65536
PUBS = 110592
PUBC = PUBS + 1024
ST, CS = PUBS, PUBC
VB = 5120 + 16
HB = 10496
JB = 98304
KVR = 32768
NZERO = ZERO_BYTES // 4096

S_WAVE, S_T, S_IDX, S_A, S_B = 44, 45, 46, 47, 48
S_XO, S_WO, S_WSTEP, S_LX, S_WEND = 50, 51, 52, 55, 56
S_CG, S_STEP = 18, 19
S_HM, S_XM, S_MYN = 49, 47, 48
S_JST, S_JLN, S_JBK = 98, 99, 100
S_OUT = 96
S_LINE, S_ISQ, S_DUMMY, S_JOB = 57, 58, 59, 60
S_T64 = 61

V_LANE = 1
V_X = [2, 3, 4, 5]
V_W = [248, 249, 250, 251]
S_LW = [53, 54, 36, 37]
V_T0, V_T1 = 10, 11
V_T2, V_T3 = 8, 9
ONES = 12
V_ADR = 16
ACC = 32
GRAM = 240
RSUM = 244
V_PADR, V_POLL, V_INIT, V_ZERO = 28, 29, 30, 31
V_ALL = 220
V_PART = 200
CSX = 200

LOG2E = 0x3fb8aa3b
EPS6 = 0x358637bd
EPS5 = 0x3727c5ac

HQ_TABLE = [["Q0", "Q1", "H8", "H9"], ["Q2", "Q3", "H10", "H11"], ["Q4", "H12", "H13", "H14"],
            ["Q5", "H15", "H16", "H17"], ["Q6", "H18", "H19", "H20"], ["Q7", "H21", "H22", "D22"],
            ["Q8", "H23", "H24", "D24"], ["Q9", "H25", "H26", "D26"]]


def stfl():
    E = asmlib.EXP
    return "" if "stplain" in E else " sc1"


def hq_word(row):
    w = 0
    for i, c in enumerate(row):
        b = int(c[1:]) | (0x80 if c[0] == "Q" else 0) | (0x40 if c[0] == "D" else 0)
        w |= b << (8 * i)
    return w


def mfma(a, d, x, y, c=None):
    a(f"v_mfma_f32_16x16x32_bf16 {vr(d, 4)}, {vr(x, 4)}, {vr(y, 4)}, {c if c is not None else vr(d, 4)}")


def interleave(a, mf, fillers, per=2):
    fillers = list(fillers)
    E = asmlib.EXP
    if "nomfma" in E:
        mf = ["s_nop 0"] * len(mf)
    keep = lambda f: not (("nodma" in E and any(" lds" in i for i in f)) or ("noread" in E and f[0].startswith("ds_read"))
                          or ("nostats" in E and f[0].startswith("v_")))
    fillers = [f for f in fillers if keep(f)]
    n = len(mf)
    for i, m in enumerate(mf):
        a(m)
        left = n - i
        k = max(per if fillers else 0, -(-len(fillers) // left) if left else 0)
        for _ in range(min(k, len(fillers))):
            for ins in fillers.pop(0):
                a(ins)
    for f in fillers:
        for ins in f:
            a(ins)


def w_issue(slot, wrap):
    f = [[f"s_add_u32 m0, s{S_LW[q]}, {slot*SLOT}",
          f"buffer_load_dwordx4 v{V_W[q]}, s[24:27], s{S_WO} offen lds"] for q in range(4)]
    f[-1].append(f"s_add_u32 s{S_WO}, s{S_WO}, s{S_WSTEP}")
    if wrap:
        f.append([f"s_cmp_eq_u32 s{S_WO}, s{S_WEND}", f"s_cselect_b32 s{S_WO}, 0, s{S_WO}"])
    return f


def x_issue(xs):
    f = [[f"s_add_u32 m0, s{S_LX}, {xs*SLOT + 1024*q}",
          f"buffer_load_dwordx4 v{V_X[q]}, s[20:23], s{S_XO} offen lds"] for q in range(4)]
    f[-1].append(f"s_add_u32 s{S_XO}, s{S_XO}, 128")
    f.append([f"s_cmp_eq_u32 s{S_XO}, 1280", f"s_cselect_b32 s{S_XO}, 0, s{S_XO}"])
    return f


def dma_fillers(p):
    f = x_issue((p >> 1) & 1) if p % 2 == 0 else []
    return f + w_issue(p, p & 1)


def stats_mfma(xreg, first):
    x = vr(xreg, 4)
    return [f"v_mfma_f32_16x16x32_bf16 {vr(GRAM,4)}, {x}, {x}, {'0' if first else vr(GRAM,4)}",
            f"v_mfma_f32_16x16x32_bf16 {vr(RSUM,4)}, {vr(ONES,4)}, {x}, {'0' if first else vr(RSUM,4)}"]


def start_class(a):
    a(f"s_add_u32 s75, s{S_T}, s{S_CG}")
    for _ in range(3):
        a("s_cmp_ge_u32 s75, 10")
        a("s_cselect_b32 s74, 10, 0")
        a("s_sub_u32 s75, s75, s74")


def prologue_dma(a):
    a(f"s_lshl_b32 s{S_XO}, s75, 7")
    a(f"s_mul_i32 s{S_WO}, s75, s{S_WSTEP}")
    a(f"s_lshl_b32 s{S_WO}, s{S_WO}, 1")
    a(f"s_mul_i32 s{S_WEND}, s{S_WSTEP}, 20")
    for f in w_issue(0, 0) + x_issue(0) + w_issue(1, 1):
        for ins in f:
            a(ins)


def prologue_dma2(a, L):
    a(f"s_cmp_ge_u32 s{S_WAVE}, 4")
    a(f"s_cbranch_scc1 {L}_NOP2")
    for f in x_issue(1) + w_issue(2, 0) + w_issue(3, 1):
        for ins in f:
            a(ins)
    a.label(f"{L}_NOP2")


def hook_masks(a):
    a(f"s_mov_b32 s{S_XM}, 6")
    a(f"s_mov_b32 s{S_HM}, 4")
    a(f"s_cmp_ge_u32 s{S_WAVE}, 4")
    a(f"s_cselect_b32 s63, {1 << 12}, 0")
    a(f"s_or_b32 s{S_HM}, s{S_HM}, s63")
    a(f"s_cmp_eq_u32 s{S_WAVE}, 7")
    a(f"s_cselect_b32 s63, {(1 << 3) | (1 << 6) | (1 << 10) | (1 << 11)}, 0")
    a(f"s_or_b32 s{S_HM}, s{S_HM}, s63")
    a(f"s_sub_u32 s64, s{S_WAVE}, 4")
    a(f"s_mul_i32 s{S_JOB}, s2, 3")
    a(f"s_add_u32 s{S_JOB}, s{S_JOB}, s64")
    a("s_cmp_lt_u32 s64, 3")
    a(f"s_cselect_b32 s{S_JOB}, s{S_JOB}, 1000")
    a(f"s_cmp_lt_u32 s{S_JOB}, 740")
    a(f"s_cselect_b32 s63, {(1 << 2) | (1 << 6) | (1 << 10)}, 0")
    a(f"s_or_b32 s{S_HM}, s{S_HM}, s63")
    a(f"s_mov_b32 s{S_STEP}, 0")


def stage_stats(a, tok_s):
    a("s_mov_b32 s74, 0xaaaaaaaa")
    a("s_mov_b32 s75, 0xaaaaaaaa")
    a("s_mov_b32 s76, 0xcccccccc")
    a("s_mov_b32 s77, 0xcccccccc")
    a(f"v_cndmask_b32 v{V_T2}, v{GRAM}, v{GRAM+1}, s[74:75]")
    a(f"v_cndmask_b32 v{V_T3}, v{GRAM+2}, v{GRAM+3}, s[74:75]")
    a(f"v_and_b32 v{V_T0}, 15, v{V_LANE}")
    a(f"v_cndmask_b32 v{V_T3}, v{V_T2}, v{V_T3}, s[76:77]")
    a(f"v_mov_b32 v{V_T2}, v{RSUM}")
    a(f"s_lshl_b32 s62, s{tok_s}, 3")
    a(f"s_add_u32 s62, s62, {PUBS}")
    a(f"v_lshl_add_u32 v{V_T0}, v{V_T0}, 3, s62")
    set_exec(a, 0xF0000F0000F0000F)
    a(f"ds_write_b64 v{V_T0}, {vr(V_T2,2)}")
    a("s_mov_b64 exec, -1")


def emit_step(a, role, p, mode, loader):
    last = mode == "last"
    L = role.L + ("L" if loader else "S")
    if "nobar" not in asmlib.EXP:
        a("s_barrier")
    if not last:
        a(f"s_cbranch_vccnz {L}_HK{p}")
        a.label(f"{L}_HK{p}_B")
    if last and p == 0 and not loader:
        finish_stats(a, L)
    if last and p == 2 and not loader:
        check_all(a, L)
    if asmlib.DIAG and asmlib.STAMPSET == 4 and not last:
        for st_, slot_ in ((0, 1), (2, 2), (4, 3), (6, 4), (8, 5), (12, 6)):
            if st_ % 4 == p:
                a(f"s_cmp_eq_u32 s{S_STEP}, {st_}")
                a(f"s_cbranch_scc0 {L}_ST{st_}")
                stamp(a, slot_, 4)
                a.label(f"{L}_ST{st_}")
    if last and p == 0:
        stamp(a, 7, 4)
    f = []
    if not last and loader:
        f += dma_fillers(p)
    if not (last and p == 3):
        f += role.reads_w((p + 1) % 4, (p + 1) & 1)
    if p & 1 and not (last and p == 3):
        nx = ((p + 1) >> 1) & 1
        f += role.reads_x(nx, nx)
    if not last:
        f.append([f"s_add_u32 s{S_STEP}, s{S_STEP}, 1", f"s_lshr_b32 s62, s{S_HM}, s{S_STEP}"])
        f.append(["s_and_b32 vcc_lo, s62, 1", f"s_bitcmp1_b32 s{S_XM}, s{S_STEP}"])
    interleave(a, role.mfmas(p), f, per=1)
    if not last:
        a(f"s_cbranch_scc1 {L}_XT{p}")
        a.label(f"{L}_XT{p}_B")
        a("s_waitcnt vmcnt(12) lgkmcnt(0)" if loader else "s_waitcnt lgkmcnt(0)")
    elif loader:
        a(["s_waitcnt vmcnt(4) lgkmcnt(0)", "s_waitcnt vmcnt(0) lgkmcnt(0)", "s_waitcnt lgkmcnt(0)", "s_nop 0"][p])
    else:
        a(["s_waitcnt lgkmcnt(0)", "s_waitcnt lgkmcnt(0)", "s_waitcnt lgkmcnt(0)", "s_nop 0"][p])


def finish_stats(a, L):
    P = V_PART
    a("s_waitcnt vmcnt(0)")
    for i in range(5):
        a(f"v_add_f32 v{P + 2*i}, v{P + 2*i}, v{P + 10 + 2*i}")
        a(f"v_add_f32 v{P + 2*i + 1}, v{P + 2*i + 1}, v{P + 11 + 2*i}")
    for (d, x) in ((0, 2), (4, 6), (0, 8), (0, 4)):
        a(f"v_add_f32 v{P + d}, v{P + d}, v{P + x}")
        a(f"v_add_f32 v{P + d + 1}, v{P + d + 1}, v{P + x + 1}")
    a(f"s_and_b32 s62, s{S_WAVE}, 1")
    a("s_lshl_b32 s62, s62, 6")
    a(f"v_add_u32 v{V_T1}, s62, v{V_LANE}")
    a(f"s_cmp_ge_u32 s{S_WAVE}, 6")
    a(f"s_cbranch_scc1 {L}_FCS")
    A, B = V_T2, V_T3
    a(f"v_mul_f32 v{P}, 0x3acccccd, v{P}")
    a(f"v_mul_f32 v{B}, 0x3acccccd, v{P+1}")
    a(f"v_lshlrev_b32 v{V_T1}, 2, v{V_T1}")
    a(f"v_fma_f32 v{B}, -v{P}, v{P}, v{B}")
    a(f"v_add_u32 v{V_T1}, {ST}, v{V_T1}")
    a(f"v_max_f32 v{B}, 0, v{B}")
    a(f"v_cvt_pk_bf16_f32 v{V_T0}, v{P}, v{B}")
    a(f"v_lshlrev_b32 v{A}, 16, v{V_T0}")
    a(f"v_and_b32 v{B}, 0xffff0000, v{V_T0}")
    a(f"v_add_f32 v{B}, 0x{EPS5:x}, v{B}")
    a(f"v_sub_f32 v{A}, 0, v{A}")
    a(f"v_cvt_pk_bf16_f32 v{V_T0}, v{B}, v{B}")
    a(f"v_lshlrev_b32 v{B}, 16, v{V_T0}")
    a(f"v_sqrt_f32 v{B}, v{B}")
    a(f"v_cvt_pk_bf16_f32 v{V_T0}, v{B}, v{B}")
    a(f"v_lshlrev_b32 v{B}, 16, v{V_T0}")
    a(f"v_rcp_f32 v{B}, v{B}")
    a(f"ds_write_b32 v{V_T1}, v{A}")
    a(f"ds_write_b32 v{V_T1}, v{B} offset:512")
    a(f"s_branch {L}_FDONE")
    a.label(f"{L}_FCS")
    a(f"v_lshlrev_b32 v{V_T1}, 3, v{V_T1}")
    a(f"v_add_u32 v{V_T1}, {CS}, v{V_T1}")
    a(f"ds_write_b64 v{V_T1}, {vr(P, 2)}")
    a.label(f"{L}_FDONE")
    a(f"s_cmp_eq_u32 s{S_WAVE}, 7")
    a(f"s_cbranch_scc0 {L}_FD2")
    a(f"v_and_b32 v{V_T0}, 15, v{V_LANE}")
    a(f"v_lshlrev_b32 v{V_T0}, 7, v{V_T0}")
    a(f"s_mov_b32 s62, {CNT_W}")
    a(f"buffer_load_dword v{V_ALL}, v{V_T0}, s[28:31], s62 offen sc1")
    a.label(f"{L}_FD2")


def check_all(a, L):
    a(f"s_cmp_eq_u32 s{S_WAVE}, 7")
    a(f"s_cbranch_scc0 {L}_GDONE")
    a("s_waitcnt vmcnt(0)")
    a(f"s_mov_b32 s63, {SPIN_MAX}")
    a.label(f"{L}_GALL_W")
    a(f"v_cmp_eq_u32 vcc, 16, v{V_ALL}")
    a("s_sub_u32 s63, s63, 1")
    a("s_cmp_eq_u32 s63, 0")
    a(f"s_cbranch_scc1 {L}_GDONE")
    a("s_cmp_eq_u64 vcc, -1")
    a(f"s_cbranch_scc1 {L}_GDONE")
    a("s_sleep 4")
    a(f"v_and_b32 v{V_T0}, 15, v{V_LANE}")
    a(f"v_lshlrev_b32 v{V_T0}, 7, v{V_T0}")
    a(f"s_mov_b32 s62, {CNT_W}")
    a(f"buffer_load_dword v{V_ALL}, v{V_T0}, s[28:31], s62 offen sc1")
    a("s_waitcnt vmcnt(0)")
    a(f"s_branch {L}_GALL_W")
    a.label(f"{L}_GDONE")


def emit_main(a, role):
    hook_masks(a)
    a("s_mov_b64 vcc, 0")
    a(f"s_cmp_ge_u32 s{S_WAVE}, 4")
    a(f"s_cbranch_scc1 {role.L}S_LOOP")
    for loader in (True, False):
        L = role.L + ("L" if loader else "S")
        a.label(f"{L}_LOOP")
        for p in range(4):
            emit_step(a, role, p, "mid", loader)
        a(f"s_cmp_lt_u32 s{S_STEP}, 16")
        a(f"s_cbranch_scc1 {L}_LOOP")
        stamp(a, 2, 3)
        for p in range(4):
            emit_step(a, role, p, "last", loader)
        if loader:
            a(f"s_branch {role.L}_EPI")


def job_issue(a):
    a(f"s_mul_hi_u32 s{S_JST}, s{S_JOB}, 0x1999999a")
    a(f"s_mul_i32 s63, s{S_JST}, 10")
    a(f"s_sub_u32 s{S_JLN}, s{S_JOB}, s63")
    a(f"s_cmp_lt_u32 s{S_JST}, 54")
    a("s_cselect_b32 s36, s16, s14")
    a("s_cselect_b32 s37, s17, s15")
    a(f"s_mov_b32 s38, {DFF*D*2}")
    a(f"s_cselect_b32 s38, s38, {D*D*2}")
    a("s_mov_b32 s39, 0x20000")
    a("s_cselect_b32 s64, 0, 54")
    a(f"s_sub_u32 s{S_JBK}, s{S_JST}, s64")
    a(f"s_mul_i32 s65, s{S_JBK}, 40960")
    a(f"s_lshl_b32 s66, s{S_JLN}, 7")
    a("s_add_u32 s65, s65, s66")
    a(f"v_lshrrev_b32 v{V_T0}, 3, v{V_LANE}")
    a(f"v_mul_u32_u24 v{V_T0}, 1280, v{V_T0}")
    a(f"v_and_b32 v{V_T1}, 7, v{V_LANE}")
    a(f"v_lshl_add_u32 v{V_T0}, v{V_T1}, 4, v{V_T0}")
    a(f"s_lshl_b32 s66, s{S_WAVE}, 12")
    for q in range(4):
        a(f"s_add_u32 m0, s66, {JB - 16384 + 1024*q}")
        a(f"buffer_load_dwordx4 v{V_T0}, s[36:39], s65 offen lds")
        if q < 3:
            a("s_add_u32 s65, s65, 10240")


def job_finish(a, L):
    a("s_waitcnt vmcnt(0)")
    R = [228, 232, 236, 248]
    A, B = 252, 253
    a(f"v_lshrrev_b32 v{A}, 4, v{V_LANE}")
    a(f"v_bfe_u32 v{B}, v{V_LANE}, 2, 2")
    a(f"v_lshl_add_u32 v{A}, v{A}, 2, v{B}")
    a(f"v_lshlrev_b32 v{A}, 7, v{A}")
    a(f"v_and_b32 v{B}, 3, v{V_LANE}")
    a(f"v_lshl_add_u32 v{A}, v{B}, 3, v{A}")
    a(f"s_lshl_b32 s66, s{S_WAVE}, 12")
    a(f"s_add_u32 s66, s66, {JB - 16384}")
    a(f"v_add_u32 v{A}, s66, v{A}")
    for jl in range(4):
        for b in range(2):
            a(f"ds_read_b64_tr_b16 {vr(R[jl] + 2*b, 2)}, v{A} offset:{2048*b + 32*jl}")
    a(f"s_cmp_lt_u32 s{S_JST}, 54")
    a(f"s_cbranch_scc0 {L}_JO")
    a(f"s_mov_b32 s66, s{S_JST}")
    for th in (14, 28, 41):
        a(f"s_cmp_ge_u32 s{S_JST}, {th}")
        a("s_cselect_b32 s67, 5, 0")
        a("s_add_u32 s66, s66, s67")
    a(f"s_branch {L}_JS")
    a.label(f"{L}_JO")
    a(f"s_add_u32 s66, s{S_JBK}, 14")
    for th, inc in ((5, 14), (10, 13), (15, 13)):
        a(f"s_cmp_ge_u32 s{S_JBK}, {th}")
        a(f"s_cselect_b32 s67, {inc}, 0")
        a("s_add_u32 s66, s66, s67")
    a.label(f"{L}_JS")
    a("s_mul_i32 s66, s66, 40")
    a(f"s_lshl_b32 s67, s{S_JLN}, 2")
    a("s_add_u32 s66, s66, s67")
    a("s_lshl_b32 s66, s66, 10")
    a(f"s_add_u32 s66, s66, {WF}")
    a(f"v_lshlrev_b32 v{B}, 4, v{V_LANE}")
    a("s_waitcnt lgkmcnt(0)")
    for jl in range(4):
        a(f"buffer_store_dwordx4 {vr(R[jl], 4)}, v{B}, s[28:31], s66 offen offset:{1024*jl} sc1")


def emit_hooks(a, role):
    for loader in (True, False):
        emit_hooks_of(a, role, loader)


def emit_hooks_of(a, role, loader):
    L = role.L + ("L" if loader else "S")
    for p in range(4):
        a.label(f"{L}_XT{p}")
        if p < 2:
            for m in role.extras(p):
                a(m)
        a(f"s_branch {L}_XT{p}_B")

    def at_step(X, n, tag, body, wave7=False):
        a(f"s_cmp_eq_u32 s{S_STEP}, {n}")
        a(f"s_cbranch_scc0 {X}_{tag}")
        body()
        a.label(f"{X}_{tag}")

    def store_partials():
        a(f"v_lshlrev_b32 v{V_T0}, 4, v{V_LANE}")
        a(f"v_add_u32 v{V_T1}, {PUBS}, v{V_T0}")
        a(f"ds_read_b128 v[228:231], v{V_T1}")
        a(f"ds_read_b128 v[232:235], v{V_T1} offset:1024")
        a(f"s_lshl_b32 s62, s{S_T}, 4")
        a(f"s_add_u32 s62, s62, s{S_CG}")
        a("s_lshl_b32 s62, s62, 10")
        a(f"s_add_u32 s62, s62, {SP}")
        a(f"s_lshl_b32 s63, s{S_CG}, 4")
        a(f"s_add_u32 s63, s63, s{S_T}")
        a("s_lshl_b32 s63, s63, 10")
        a(f"s_add_u32 s63, s63, {CP}")
        a("s_waitcnt lgkmcnt(0)")
        a(f"buffer_store_dwordx4 v[228:231], v{V_T0}, s[28:31], s62 offen sc1")
        a(f"buffer_store_dwordx4 v[232:235], v{V_T0}, s[28:31], s63 offen sc1")

    def flag(X):
        a("s_waitcnt vmcnt(0)")
        a(f"s_mov_b32 s63, {SPIN_MAX}")
        a.label(f"{X}_W")
        a(f"v_readfirstlane_b32 s62, v{V_INIT}")
        a("s_sub_u32 s63, s63, 1")
        a("s_cmp_eq_u32 s63, 0")
        a(f"s_cbranch_scc1 {X}_G")
        a(f"s_cmp_ge_u32 s62, {NZERO}")
        a(f"s_cbranch_scc1 {X}_G")
        a("s_sleep 4")
        a(f"buffer_load_dword v{V_INIT}, v{V_ZERO}, s[32:35], 0 offen sc1")
        a("s_waitcnt vmcnt(0)")
        a(f"s_branch {X}_W")
        a.label(f"{X}_G")
        stamp(a, 3, 3)
        a(f"v_mov_b32 v{V_T0}, 1")
        a("s_mov_b64 exec, 3")
        a(f"buffer_atomic_add v{V_T0}, v{V_PADR}, s[28:31], 0 offen")
        a("s_mov_b64 exec, -1")

    def check(X):
        stamp(a, 4, 3)
        a("s_waitcnt vmcnt(0)")
        a(f"s_mov_b32 s63, {SPIN_MAX}")
        a.label(f"{X}_CW")
        a(f"v_cmp_eq_u32 vcc, 16, v{V_POLL}")
        a("s_sub_u32 s63, s63, 1")
        a("s_cmp_eq_u32 s63, 0")
        a(f"s_cbranch_scc1 {X}_CG")
        a("s_cmp_eq_u64 vcc, -1")
        a(f"s_cbranch_scc1 {X}_CG")
        a("s_sleep 4")
        a(f"buffer_load_dword v{V_POLL}, v{V_PADR}, s[28:31], 0 offen sc1")
        a("s_waitcnt vmcnt(0)")
        a(f"s_branch {X}_CW")
        a.label(f"{X}_CG")
        stamp(a, 5, 3)

    def load_partials():
        a(f"s_and_b32 s62, s{S_WAVE}, 1")
        a("s_lshl_b32 s62, s62, 6")
        a(f"v_add_u32 v{V_T1}, s62, v{V_LANE}")
        a(f"v_lshlrev_b32 v{V_T1}, 3, v{V_T1}")
        a(f"s_lshl_b32 s62, s{S_T}, 14")
        a(f"s_add_u32 s62, s62, {SP}")
        a(f"s_lshl_b32 s63, s{S_CG}, 14")
        a(f"s_add_u32 s63, s63, {CP}")
        a(f"s_cmp_lt_u32 s{S_WAVE}, 6")
        a("s_cselect_b32 s62, s62, s63")
        for n in range(10):
            a(f"buffer_load_dwordx2 {vr(V_PART + 2*n, 2)}, v{V_T1}, s[28:31], s62 offen offset:{1024*(n & 3)} sc1")
            if n & 3 == 3:
                a("s_add_u32 s62, s62, 4096")

    def flag_w():
        a(f"s_lshl_b32 s62, s{S_T}, 7")
        a(f"s_add_u32 s62, s62, {CNT_W}")
        a(f"v_mov_b32 v{V_T0}, 1")
        a("s_mov_b64 exec, 1")
        a(f"buffer_atomic_add v{V_T0}, v{V_ZERO}, s[28:31], s62 offen")
        a("s_mov_b64 exec, -1")

    for p in range(4):
        X = f"{L}_HK{p}"
        a.label(X)
        if p == 2:
            at_step(X, 2, "a", lambda: role.stage(a))
        if not loader:
            if p == 0:
                at_step(X, 12, "b", load_partials)
            if p == 2:
                w7 = f"{X}_w7"
                a(f"s_cmp_eq_u32 s{S_WAVE}, 7")
                a(f"s_cbranch_scc0 {w7}")
                at_step(X, 6, "f", lambda: flag(X))
                at_step(X, 10, "g", lambda: a(f"buffer_load_dword v{V_POLL}, v{V_PADR}, s[28:31], 0 offen sc1"))
                a.label(w7)
                a(f"s_cmp_lt_u32 s{S_JOB}, 740")
                a(f"s_cbranch_scc0 {X}_B")
                at_step(X, 2, "c", lambda: job_issue(a))
                at_step(X, 6, "d", lambda: job_finish(a, X))
                at_step(X, 10, "e", lambda: a("s_waitcnt vmcnt(0)"))
            if p == 3:
                def store_and_init():
                    store_partials()
                    a(f"buffer_load_dword v{V_INIT}, v{V_ZERO}, s[32:35], 0 offen sc1")
                at_step(X, 3, "b", store_and_init)

                def flagw_and_check():
                    check(X)
                    flag_w()
                at_step(X, 11, "c", flagw_and_check)
        a(f"s_branch {X}_B")


def poll_address(a):
    a(f"v_mov_b32 v{V_ZERO}, 0")
    a(f"s_lshl_b32 s74, s{S_T}, 7")
    a(f"s_add_u32 s74, s74, {CNT_S}")
    a(f"s_lshl_b32 s75, s{S_CG}, 7")
    a(f"s_add_u32 s75, s75, {CNT_C}")
    a(f"v_mov_b32 v{V_T1}, s74")
    a(f"v_mov_b32 v{V_T2}, s75")
    a(f"v_and_b32 v{V_T3}, 1, v{V_LANE}")
    a(f"v_cmp_eq_u32 vcc, 1, v{V_T3}")
    a(f"v_cndmask_b32 v{V_PADR}, v{V_T1}, v{V_T2}, vcc")


def line_dma_voffsets(a, stride_s, coloff_s):
    a(f"v_lshrrev_b32 v20, 3, v{V_LANE}")
    a(f"v_and_b32 v21, 7, v{V_LANE}")
    a(f"v_bfe_u32 v22, v{V_LANE}, 4, 1")
    for q in range(4):
        a(f"v_or_b32 v23, {2*(q & 1)}, v22")
        a("v_lshlrev_b32 v23, 1, v23")
        a("v_xor_b32 v23, v23, v21")
        a(f"v_add_u32 v24, {8*q}, v20")
        a(f"v_mul_lo_u32 v24, v24, s{stride_s}")
        a("v_lshl_add_u32 v24, v23, 4, v24")
        a(f"v_add_u32 v{V_W[q]}, s{coloff_s}, v24")


def x_dma_voffsets(a):
    a(f"v_lshrrev_b32 v20, 3, v{V_LANE}")
    a(f"v_and_b32 v21, 7, v{V_LANE}")
    a(f"v_lshrrev_b32 v22, 4, v{V_LANE}")
    a(f"s_lshl_b32 s{S_A}, s{S_T}, 7")
    a(f"s_lshl_b32 s{S_B}, s{S_WAVE}, 5")
    a(f"s_add_u32 s{S_A}, s{S_A}, s{S_B}")
    for q in range(4):
        a(f"v_add_u32 v23, {4*(q & 1)}, v22")
        a("v_xor_b32 v23, v23, v21")
        a(f"v_add_u32 v24, s{S_A}, v20")
        if q:
            a(f"v_add_u32 v24, {8*q}, v24")
        a("v_mul_u32_u24 v24, 1280, v24")
        a(f"v_lshl_add_u32 v{V_X[q]}, v23, 4, v24")
    a(f"s_lshl_b32 s{S_LX}, s{S_WAVE}, 12")
    a(f"s_add_u32 s{S_LX}, s{S_LX}, {XB}")


def hq_line_code(a, dst, lreg):
    a(f"s_mov_b32 s{dst}, 0x{hq_word(HQ_TABLE[0]):x}")
    for hq in range(1, 8):
        a(f"s_cmp_eq_u32 s{S_IDX}, {hq}")
        a(f"s_cselect_b32 s{dst}, 0x{hq_word(HQ_TABLE[hq]):x}, s{dst}")
    a(f"s_lshl_b32 s65, s{lreg}, 3")
    a(f"s_lshr_b32 s{dst}, s{dst}, s65")


def line_read_addr(a, dst, u_s, u_add, base_s, base_add):
    a(f"v_lshrrev_b32 v56, 4, v{V_LANE}")
    a(f"v_bfe_u32 v57, v{V_LANE}, 2, 2")
    a(f"v_bfe_u32 v58, v{V_LANE}, 1, 1")
    a("v_lshrrev_b32 v59, 1, v57")
    a("v_and_b32 v60, 1, v56")
    a("v_lshl_or_b32 v59, v60, 1, v59")
    a("v_lshlrev_b32 v59, 1, v59")
    if u_s is None:
        a(f"v_or_b32 v60, {2*u_add}, v58")
    else:
        a(f"s_xor_b32 s{S_B}, s{u_s}, {u_add}")
        a(f"s_lshl_b32 s{S_B}, s{S_B}, 1")
        a(f"v_or_b32 v60, s{S_B}, v58")
    a("v_xor_b32 v60, v60, v59")
    a("v_lshl_add_u32 v61, v56, 3, v57")
    a("v_lshlrev_b32 v61, 7, v61")
    a("v_lshl_add_u32 v61, v60, 4, v61")
    a(f"v_and_b32 v60, 1, v{V_LANE}")
    a("v_lshl_add_u32 v61, v60, 3, v61")
    a(f"v_add_u32 v61, s{base_s}, v61")
    if base_add:
        a(f"v_add_u32 v{dst}, {base_add}, v61")
    else:
        a(f"v_mov_b32 v{dst}, v61")


def set_exec(a, m):
    a(f"s_mov_b32 exec_lo, 0x{m & 0xffffffff:x}")
    a(f"s_mov_b32 exec_hi, 0x{m >> 32:x}")


def sigma_h_scalar(a, dst, src):
    a(f"s_mov_b32 s{dst}, s{src}")
    for th in (14, 28, 41):
        a(f"s_cmp_ge_u32 s{src}, {th}")
        a("s_cselect_b32 s67, 5, 0")
        a(f"s_add_u32 s{dst}, s{dst}, s67")


def relu_batch(a, items):
    for (acc, cs, st, dst) in items:
        a(f"v_pk_fma_f32 {vr(acc,2)}, {vr(cs,2)}, {vr(st,2)}, {vr(acc,2)} op_sel:[0,0,0] op_sel_hi:[1,0,1]")
    for (acc, cs, st, dst) in items:
        a(f"v_pk_mul_f32 {vr(acc,2)}, {vr(acc,2)}, {vr(st,2)} op_sel:[0,1] op_sel_hi:[1,1]")
    for (acc, cs, st, dst) in items:
        a(f"v_cvt_pk_bf16_f32 v{dst}, v{acc}, v{acc+1}")
    for (acc, cs, st, dst) in items:
        a(f"v_pk_max_i16 v{dst}, v{dst}, 0")


def phi_batch(a, items, TP, keep=None):
    n = 4 if keep else 2
    for i, (ac, dst, t_ops, p_ops, l_ops, v_ops) in enumerate(items):
        a(f"v_pk_fma_f32 {vr(ac,2)}, {t_ops}")
    for i, (ac, dst, t_ops, p_ops, l_ops, v_ops) in enumerate(items):
        a(f"v_pk_mul_f32 {vr(TP+n*i,2)}, {vr(ac,2)}, {l_ops}")
    if keep:
        for i, (ac, dst, t_ops, p_ops, l_ops, v_ops) in enumerate(items):
            a(f"v_pk_mul_f32 {vr(TP+n*i+2,2)}, {vr(ac,2)}, {v_ops}")
    for i, (ac, dst, t_ops, p_ops, l_ops, v_ops) in enumerate(items):
        a(f"v_exp_f32_e64 v{TP+n*i}, v{TP+n*i} clamp")
        a(f"v_pk_fma_f32 {vr(ac,2)}, {vr(ac,2)}, {p_ops}")
        a(f"v_exp_f32_e64 v{TP+n*i+1}, v{TP+n*i+1} clamp")
    for i, (ac, dst, t_ops, p_ops, l_ops, v_ops) in enumerate(items):
        a(f"v_max_f32 v{ac}, s76, v{ac}")
        a(f"v_max_f32 v{ac+1}, s76, v{ac+1}")
    for i, (ac, dst, t_ops, p_ops, l_ops, v_ops) in enumerate(items):
        a(f"v_pk_add_f32 {vr(ac,2)}, {vr(ac,2)}, {vr(TP+n*i,2)}")
    if keep:
        for i, (ac, dst, t_ops, p_ops, l_ops, v_ops) in enumerate(items):
            a(f"v_cndmask_b32 v{ac}, v{TP+n*i+2}, v{ac}, {keep}")
            a(f"v_cndmask_b32 v{ac+1}, v{TP+n*i+3}, v{ac+1}, {keep}")
    for i, (ac, dst, t_ops, p_ops, l_ops, v_ops) in enumerate(items):
        a(f"v_cvt_pk_bf16_f32 v{dst}, v{ac}, v{ac+1}")


HQ_ACC = ACC
HQ_CS = ACC + 64
HQ_W = ACC + 72
HQ_X = HQ_W + 32
V_AW, V_AX = V_ADR, V_ADR + 4


def hq_acc(u, tt):
    return HQ_ACC + (u * 4 + tt) * 4


def hq_w(st, u):
    return HQ_W + 16 * st + 4 * u


def hq_x(st, kh, tt):
    return HQ_X + 32 * st + 16 * kh + 4 * tt


def hq_reads_w(slot, st):
    return [[f"ds_read_b64_tr_b16 {vr(hq_w(st, u) + 2*s, 2)}, v{V_AW + u} offset:{slot*SLOT + 512*s}"]
            for u in range(4) for s in range(2)]


def hq_reads_x(xs, st):
    return [[f"ds_read_b128 {vr(hq_x(st, kh, tt), 4)}, v{V_AX + 4*kh + tt} offset:{xs*SLOT}"]
            for kh in range(2) for tt in range(4)]


class HQ:
    L = "K1_HQ"
    reads_w = staticmethod(hq_reads_w)
    reads_x = staticmethod(hq_reads_x)

    @staticmethod
    def mfmas(p):
        ws, xs, kh = p & 1, (p >> 1) & 1, p & 1
        return [f"v_mfma_f32_16x16x32_bf16 {vr(hq_acc(u,tt),4)}, {vr(hq_w(ws,u),4)}, {vr(hq_x(xs,kh,tt),4)}, {vr(hq_acc(u,tt),4)}"
                for u in range(4) for tt in range(4)]

    @staticmethod
    def extras(p):
        ws, xs, kh = p & 1, (p >> 1) & 1, p & 1
        return [f"v_mfma_f32_16x16x32_bf16 {vr(HQ_CS+4*u,4)}, {vr(hq_w(ws,u),4)}, {vr(ONES,4)}, {vr(HQ_CS+4*u,4)}"
                for u in range(2)] + stats_mfma(hq_x(xs, kh, 0), False)

    @staticmethod
    def stage(a):
        a(f"s_and_b32 s70, s{S_WAVE}, 1")
        a(f"s_lshr_b32 s71, s{S_WAVE}, 1")
        a("s_lshl_b32 s72, s70, 6")
        a("s_lshl_b32 s73, s71, 4")
        a("s_add_u32 s73, s73, s72")
        stage_stats(a, 73)
        a("s_lshl_b32 s62, s71, 8")
        a(f"s_add_u32 s62, s62, {PUBC}")
        a(f"v_lshrrev_b32 v{V_T0}, 4, v{V_LANE}")
        a(f"v_lshlrev_b32 v{V_T0}, 4, v{V_T0}")
        a("s_lshl_b32 s74, s70, 1")
        for u in range(2):
            a(f"s_xor_b32 s75, s74, {u}")
            a("s_lshl_b32 s75, s75, 6")
            a("s_add_u32 s75, s75, s62")
            a(f"v_add_u32 v{V_T1}, s75, v{V_T0}")
            set_exec(a, 0x0001000100010001)
            a(f"ds_write_b128 v{V_T1}, {vr(HQ_CS + 4*u, 4)}")
            a("s_mov_b64 exec, -1")


def gen_hq(a):
    a.label("K1_HQ")
    a(f"s_and_b32 s62, s{S_WAVE}, 1")
    a(f"s_lshr_b32 s63, s{S_WAVE}, 1")
    start_class(a)
    a(f"s_cmp_ge_u32 s{S_WAVE}, 4")
    a("s_cbranch_scc1 K1_HQ_NODMA")
    hq_line_code(a, 64, S_WAVE)
    a("s_bitcmp1_b32 s64, 7")
    a("s_cselect_b32 s24, s6, s8")
    a("s_cselect_b32 s25, s7, s9")
    a(f"s_mov_b32 s26, {D*3*D*2}")
    a(f"s_cselect_b32 s26, s26, {D*DFF*2}")
    a("s_mov_b32 s27, 0x20000")
    a("s_mov_b32 s65, 3840")
    a("s_cselect_b32 s65, s65, 3456")
    a(f"s_lshl_b32 s{S_WSTEP}, s65, 5")
    a("s_and_b32 s66, s64, 63")
    a("s_lshl_b32 s66, s66, 7")
    line_dma_voffsets(a, 65, 66)
    a(f"s_lshl_b32 s66, s{S_WAVE}, 12")
    for q in range(4):
        a(f"s_add_u32 s{S_LW[q]}, s66, {1024*q}")
    x_dma_voffsets(a)
    prologue_dma(a)
    a.label("K1_HQ_NODMA")
    hq_line_code(a, 64, 63)
    a(f"s_and_b32 s{S_LINE}, s64, 63")
    a(f"s_bfe_u32 s{S_ISQ}, s64, 0x10007")
    a(f"s_bfe_u32 s{S_DUMMY}, s64, 0x10006")
    a(f"s_cmp_ge_u32 s{S_IDX}, 5")
    a("s_cselect_b32 s68, 1, 0")
    a(f"s_cmp_lt_u32 s{S_T}, 7")
    a("s_cselect_b32 s68, s68, 0")
    a(f"s_cmp_eq_u32 s{S_WAVE}, 6")
    a("s_cselect_b32 s68, s68, 0")
    a(f"s_sub_u32 s69, s{S_IDX}, 5")
    a("s_mul_i32 s69, s69, 7")
    a(f"s_add_u32 s69, s69, s{S_T}")
    a(f"s_cmp_lt_u32 s69, {NZERO}")
    a("s_cselect_b32 s68, s68, 0")
    a("s_cmp_eq_u32 s68, 1")
    a("s_cbranch_scc0 K1_NOZERO")
    a("s_lshl_b32 s69, s69, 12")
    a(f"s_add_u32 s69, s69, {KVA}")
    for r in range(4):
        a(f"v_mov_b32 v{32+r}, 0")
    a(f"v_lshlrev_b32 v36, 4, v{V_LANE}")
    for q in range(4):
        a(f"buffer_store_dwordx4 v[32:35], v36, s[28:31], s69 offen offset:{1024*q} sc1")
    a.label("K1_NOZERO")
    a(f"s_lshl_b32 s64, s62, 1")
    a("s_lshl_b32 s66, s63, 12")
    for u in range(4):
        line_read_addr(a, V_AW + u, 64, u, 66, 0)
    a(f"v_and_b32 v56, 15, v{V_LANE}")
    a(f"v_lshrrev_b32 v57, 4, v{V_LANE}")
    a("v_lshrrev_b32 v58, 1, v56")
    a("s_lshl_b32 s66, s62, 6")
    a("v_add_u32 v56, s66, v56")
    a("v_lshlrev_b32 v56, 7, v56")
    for kh in range(2):
        a(f"v_or_b32 v59, {4*kh}, v57")
        a("v_xor_b32 v59, v59, v58")
        a("v_lshl_add_u32 v59, v59, 4, v56")
        for tt in range(4):
            a(f"s_xor_b32 s66, s63, {tt}")
            a("s_lshl_b32 s66, s66, 11")
            a(f"s_add_u32 s66, s66, {XB}")
            a(f"v_add_u32 v{V_AX + 4*kh + tt}, s66, v59")
    init_common(a, list(range(HQ_ACC, HQ_ACC + 72)))
    stamp(a, 2, 1)
    a("s_waitcnt vmcnt(4)")
    a("s_barrier")
    stamp(a, 3, 1)
    stamp(a, 1, 3)
    for f in hq_reads_w(0, 0) + hq_reads_x(0, 0):
        a(f[0])
    prologue_dma2(a, "K1_HQ")
    a("s_waitcnt vmcnt(12) lgkmcnt(0)")
    a("s_cmp_eq_u32 s68, 1")
    a("s_cbranch_scc0 K1_NOZSIG")
    a("s_waitcnt vmcnt(0)")
    a("v_mov_b32 v10, 1")
    a("v_mov_b32 v11, 0")
    a("s_mov_b64 exec, 1")
    a("buffer_atomic_add v10, v11, s[32:35], 0 offen")
    a("s_mov_b64 exec, -1")
    a.label("K1_NOZSIG")
    emit_main(a, HQ)

    a.label("K1_HQ_EPI")
    a("s_barrier")
    stamp(a, 4, 1)
    stamp(a, 6, 3)
    a(f"s_and_b32 s70, s{S_WAVE}, 1")
    a(f"s_lshr_b32 s71, s{S_WAVE}, 1")
    a("s_lshl_b32 s72, s70, 6")
    a(f"v_lshrrev_b32 v16, 4, v{V_LANE}")
    a("v_lshlrev_b32 v17, 4, v16")
    a("s_lshl_b32 s73, s71, 8")
    a(f"s_add_u32 s73, s73, {CS}")
    a("s_lshl_b32 s74, s70, 1")
    for u in range(4):
        a(f"s_xor_b32 s75, s74, {u}")
        a("s_lshl_b32 s75, s75, 6")
        a("s_add_u32 s75, s75, s73")
        a(f"v_add_u32 v{18+u}, s75, v17")
    stamp(a, 5, 1)
    stamp(a, 7, 3)
    CSR, STR = HQ_W, HQ_W + 16
    for u in range(4):
        a(f"ds_read_b128 {vr(CSR + 4*u, 4)}, v{18+u}")
    a(f"v_and_b32 v16, 15, v{V_LANE}")
    a("v_add_u32 v16, s72, v16")
    a("v_lshlrev_b32 v16, 2, v16")
    for tt in range(4):
        a(f"s_xor_b32 s75, s71, {tt}")
        a("s_lshl_b32 s75, s75, 6")
        a(f"s_add_u32 s75, s75, {ST}")
        a("v_add_u32 v17, s75, v16")
        a(f"ds_read2_b32 {vr(STR + 2*tt, 2)}, v17 offset1:128")
    a(f"s_lshl_b32 s{S_T64}, s{S_T}, 1")
    a(f"s_add_u32 s{S_T64}, s{S_T64}, s70")
    a(f"v_lshlrev_b32 v16, 4, v{V_LANE}")
    a("s_waitcnt lgkmcnt(0)")
    a(f"s_cmp_eq_u32 s{S_DUMMY}, 1")
    a("s_cbranch_scc1 K1_HQ_END")
    PK = HQ_X
    a(f"s_cmp_eq_u32 s{S_ISQ}, 1")
    a("s_cbranch_scc1 K1_HQ_Q")
    for pr in range(2):
        a(f"s_xor_b32 s72, s70, {pr}")
        a(f"s_lshl_b32 s73, s{S_LINE}, 1")
        a("s_add_u32 s72, s72, s73")
        sigma_h_scalar(a, 73, 72)
        a(f"s_mul_i32 s74, s{S_T64}, {NSIG}")
        a("s_add_u32 s73, s73, s74")
        a("s_lshl_b32 s73, s73, 12")
        for tt in range(4):
            f = PK + 4 * (pr * 4 + tt)
            relu_batch(a, [(hq_acc(2*pr + uu, tt) + 2*hh, CSR + 4*(2*pr + uu) + 2*hh, STR + 2*tt, f + 2*uu + hh)
                           for uu in range(2) for hh in range(2)])
            a(f"s_xor_b32 s75, s71, {tt}")
            a("s_lshl_b32 s75, s75, 10")
            a("s_add_u32 s75, s75, s73")
            a(f"buffer_store_dwordx4 {vr(f, 4)}, v16, s[28:31], s75 offen{stfl()}")
    a("s_branch K1_HQ_FIN")
    a.label("K1_HQ_Q")
    RL = HQ_W + 24
    for tt in range(4):
        a(f"v_mul_f32 v{RL + 2*tt}, 0x{LOG2E:x}, v{STR + 2*tt + 1}")
    a(f"s_mov_b32 s76, 0x{EPS6:x}")
    a(f"s_mov_b32 s77, 0x{EPS6:x}")
    TP = HQ_X + 32
    for pr in range(2):
        a(f"s_xor_b32 s72, s70, {pr}")
        a(f"s_lshl_b32 s73, s{S_LINE}, 1")
        a("s_add_u32 s72, s72, s73")
        a(f"s_mul_i32 s73, s{S_T64}, 40")
        a("s_add_u32 s73, s73, s72")
        a("s_lshl_b32 s73, s73, 11")
        a(f"s_add_u32 s73, s73, {PQ}")
        for tt in range(4):
            f = PK + 4 * (pr * 4 + tt)
            st = STR + 2 * tt
            items = []
            for uu in range(2):
                u = 2 * pr + uu
                for hh in range(2):
                    ac, cs = hq_acc(u, tt) + 2 * hh, CSR + 4 * u + 2 * hh
                    items.append((ac, f + 2 * uu + hh,
                                  f"{vr(cs,2)}, {vr(st,2)}, {vr(ac,2)} op_sel:[0,0,0] op_sel_hi:[1,0,1]",
                                  f"{vr(st,2)}, s[76:77] op_sel:[0,1,0] op_sel_hi:[1,1,1]",
                                  f"{vr(RL + 2*tt,2)} op_sel:[0,0] op_sel_hi:[1,0]", None))
            phi_batch(a, items, TP)
            a(f"s_xor_b32 s75, s71, {tt}")
            a("s_lshr_b32 s74, s75, 1")
            a("s_mul_i32 s74, s74, 40960")
            a("s_and_b32 s75, s75, 1")
            a("s_lshl_b32 s75, s75, 10")
            a("s_add_u32 s75, s75, s74")
            a("s_add_u32 s75, s75, s73")
            a(f"buffer_store_dwordx4 {vr(f, 4)}, v16, s[28:31], s75 offen{stfl()}")
    a.label("K1_HQ_FIN")
    stamp(a, 6, 1)
    a.label("K1_HQ_END")
    a("s_branch PH2")
    emit_hooks(a, HQ)


def init_common(a, regs):
    poll_address(a)
    for r in list(range(GRAM, GRAM + 8)) + regs:
        a(f"v_mov_b32 v{r}, 0")
    for r in range(4):
        a(f"v_mov_b32 v{ONES + r}, 0x3f803f80")


KV_ACC = ACC
KV_CS = ACC + 56
KV_W = ACC + 64
KV_X = KV_W + 56
V_A01, V_A2, V_A34, V_AH = V_ADR, V_ADR + 1, V_ADR + 2, V_ADR + 3
V_AXK = V_ADR + 5
V_KVW = V_ADR + 9
ONES_UNITS = [(0, 1), (2, 3), (4, 5), (6,)]


def kv_acc(u, tt):
    return KV_ACC + (u * 2 + tt) * 4


def kv_w(st, u):
    return KV_W + 28 * st + 4 * u


def kv_x(st, kh, tt):
    return KV_X + 16 * st + 8 * kh + 4 * tt


def kv_reads_w(slot, st):
    f = []
    for u in range(7):
        for s in range(2):
            if u < 2:
                adr, off = V_A01, 32 * u + 1280 * s
            elif u == 2:
                adr, off = V_A2, 1280 * s
            elif u < 5:
                adr, off = V_A34, 32 * (u - 3) + 1280 * s
            else:
                adr, off = V_AH + (u - 5), 512 * s
            f.append([f"ds_read_b64_tr_b16 {vr(kv_w(st, u) + 2*s, 2)}, v{adr} offset:{slot*SLOT + off}"])
    return f


def kv_reads_x(xs, st):
    return [[f"ds_read_b128 {vr(kv_x(st, kh, tt), 4)}, v{V_AXK + 2*kh + tt} offset:{xs*SLOT}"]
            for kh in range(2) for tt in range(2)]


class KV:
    L = "K1_KV"
    reads_w = staticmethod(kv_reads_w)
    reads_x = staticmethod(kv_reads_x)

    @staticmethod
    def mfmas(p):
        ws, xs, kh = p & 1, (p >> 1) & 1, p & 1
        mf = []
        for u in range(7):
            w = vr(kv_w(ws, u), 4)
            for tt in range(2):
                x, d = vr(kv_x(xs, kh, tt), 4), vr(kv_acc(u, tt), 4)
                mf.append(f"v_mfma_f32_16x16x32_bf16 {d}, {x}, {w}, {d}" if u < 5 else
                          f"v_mfma_f32_16x16x32_bf16 {d}, {w}, {x}, {d}")
        return mf

    @staticmethod
    def extras(p):
        ws, xs, kh = p & 1, (p >> 1) & 1, p & 1
        mf = []
        for u in range(7):
            w, d = vr(kv_w(ws, u), 4), vr(CSX + 4 * u, 4)
            mf.append(f"v_mfma_f32_16x16x32_bf16 {d}, {vr(ONES,4)}, {w}, {d}" if u < 5 else
                      f"v_mfma_f32_16x16x32_bf16 {d}, {w}, {vr(ONES,4)}, {d}")
        return mf + stats_mfma(kv_x(xs, kh, 0), False)

    @staticmethod
    def stage(a):
        a(f"s_and_b32 s70, s{S_WAVE}, 1")
        a(f"s_lshr_b32 s71, s{S_WAVE}, 1")
        a("s_lshl_b32 s72, s71, 5")
        a("s_lshl_b32 s73, s70, 4")
        a("s_add_u32 s73, s73, s72")
        stage_stats(a, 73)
        a("s_lshl_b32 s62, s70, 9")
        a(f"s_add_u32 s62, s62, {PUBC}")
        a(f"v_and_b32 v{V_T0}, 15, v{V_LANE}")
        a(f"v_lshl_add_u32 v{V_T0}, v{V_T0}, 2, s62")
        a(f"v_lshrrev_b32 v{V_T1}, 4, v{V_LANE}")
        a(f"v_lshl_add_u32 v{V_T1}, v{V_T1}, 4, s62")
        set_exec(a, 0xFFFF)
        for u in range(5):
            a(f"ds_write_b32 v{V_T0}, v{CSX + 4*u} offset:{64*u}")
        set_exec(a, 0x0001000100010001)
        for u in range(5, 7):
            a(f"ds_write_b128 v{V_T1}, {vr(CSX + 4*u, 4)} offset:{320 + 64*(u-5)}")
        a("s_mov_b64 exec, -1")


def kv_tile_mask(ua, ub):
    m = 0
    for l in range(64):
        e16, g = l & 15, l >> 4
        d0 = 16 * ua + 4 * g
        e = {2: e16 - 8, 3: 8 + e16, 4: 24 + e16}[ub]
        if d0 < 40 and e >= 0 and (d0 >= 20) == (e >= 20):
            m |= 1 << l
    return m


def gen_kv(a):
    a.label("K1_KV")
    a(f"s_and_b32 s62, s{S_WAVE}, 1")
    a(f"s_lshr_b32 s63, s{S_WAVE}, 1")
    start_class(a)
    a(f"s_cmp_ge_u32 s{S_WAVE}, 4")
    a("s_cbranch_scc1 K1_KV_NODMA")
    a(f"s_cmp_lt_u32 s{S_WAVE}, 3")
    a("s_cbranch_scc0 K1_KV_HD")
    a("s_mov_b32 s24, s6")
    a("s_mov_b32 s25, s7")
    a(f"s_mov_b32 s26, {D*3*D*2}")
    a("s_mov_b32 s27, 0x20000")
    a(f"s_mov_b32 s{S_WSTEP}, {3840*32}")
    for q in range(4):
        a(f"s_lshl_b32 s64, s{S_WAVE}, 2")
        a(f"s_add_u32 s64, s64, {q}")
        a("s_cmp_ge_u32 s64, 5")
        a("s_cselect_b32 s65, 5, 0")
        a(f"s_cselect_b32 s69, {VB}, 0")
        a("s_mov_b32 s67, 2560")
        a("s_cselect_b32 s67, s67, 1280")
        a("s_sub_u32 s66, s64, s65")
        a("s_lshl_b32 s70, s66, 10")
        a(f"s_add_u32 s{S_LW[q]}, s69, s70")
        a("s_lshl_b32 s70, s66, 6")
        a(f"v_add_u32 v20, s70, v{V_LANE}")
        a("v_mul_u32_u24 v21, 6554, v20")
        a("v_lshrrev_b32 v21, 16, v21")
        a("v_mul_u32_u24 v22, 10, v21")
        a("v_sub_u32 v22, v20, v22")
        a("v_and_b32 v23, 0x13, v21")
        a("v_bfe_u32 v24, v21, 2, 1")
        a("v_lshl_or_b32 v23, v24, 3, v23")
        a("v_bfe_u32 v24, v21, 3, 1")
        a("v_lshl_or_b32 v23, v24, 2, v23")
        a("v_mul_u32_u24 v23, 3840, v23")
        a("v_lshl_add_u32 v23, v22, 4, v23")
        a(f"s_mul_i32 s70, s{S_IDX}, 160")
        a("s_add_u32 s70, s70, s67")
        a("s_cmp_ge_u32 s64, 10")
        a(f"s_cselect_b32 s70, {OOB}, s70")
        a(f"s_cselect_b32 s{S_LW[q]}, {SLOT - 1024}, s{S_LW[q]}")
        a(f"v_add_u32 v{V_W[q]}, s70, v23")
    a("s_branch K1_KV_D1")
    a.label("K1_KV_HD")
    a("s_mov_b32 s24, s8")
    a("s_mov_b32 s25, s9")
    a(f"s_mov_b32 s26, {D*DFF*2}")
    a("s_mov_b32 s27, 0x20000")
    a(f"s_mov_b32 s{S_WSTEP}, {3456*32}")
    a("s_mov_b32 s65, 3456")
    a(f"s_lshl_b32 s66, s{S_IDX}, 7")
    for q in range(4):
        a(f"s_mov_b32 s{S_LW[q]}, {HB + 1024*q}")
    line_dma_voffsets(a, 65, 66)
    a.label("K1_KV_D1")
    x_dma_voffsets(a)
    prologue_dma(a)
    a.label("K1_KV_NODMA")
    a(f"v_lshrrev_b32 v56, 4, v{V_LANE}")
    a(f"v_bfe_u32 v57, v{V_LANE}, 2, 2")
    a(f"v_and_b32 v58, 3, v{V_LANE}")
    a("v_lshrrev_b32 v59, 1, v56")
    a("v_lshlrev_b32 v59, 4, v59")
    a("v_and_b32 v60, 1, v56")
    a("v_lshl_add_u32 v59, v60, 2, v59")
    a("v_add_u32 v59, v59, v57")
    a("v_mul_u32_u24 v59, 160, v59")
    a("s_mul_i32 s64, s62, 80")
    a("v_add_u32 v59, s64, v59")
    a(f"v_lshl_add_u32 v{V_A01}, v58, 3, v59")
    a(f"v_add_u32 v{V_A34}, {VB + 16}, v{V_A01}")
    a(f"v_add_u32 v60, 64, v{V_A01}")
    a(f"v_add_u32 v61, {VB - 16}, v{V_A01}")
    a("v_cmp_gt_u32 vcc, 2, v58")
    a(f"v_cndmask_b32 v{V_A2}, v61, v60, vcc")
    a("s_lshl_b32 s64, s62, 1")
    a(f"s_mov_b32 s66, {HB}")
    for uu in range(2):
        line_read_addr(a, V_AH + uu, 64, uu, 66, 0)
    a(f"v_and_b32 v56, 15, v{V_LANE}")
    a(f"v_lshrrev_b32 v57, 4, v{V_LANE}")
    a("v_lshrrev_b32 v58, 1, v56")
    for tt in range(2):
        a(f"s_xor_b32 s64, s62, {tt}")
        a("s_lshl_b32 s64, s64, 4")
        a("s_lshl_b32 s65, s63, 5")
        a("s_add_u32 s64, s64, s65")
        a("v_add_u32 v60, s64, v56")
        a("v_lshlrev_b32 v60, 7, v60")
        for kh in range(2):
            a(f"v_or_b32 v59, {4*kh}, v57")
            a("v_xor_b32 v59, v59, v58")
            a("v_lshl_add_u32 v59, v59, 4, v60")
            a(f"v_add_u32 v{V_AXK + 2*kh + tt}, {XB}, v59")
    a("v_mul_u32_u24 v59, 80, v56")
    a("v_lshl_add_u32 v59, v57, 4, v59")
    a("s_mul_i32 s64, s63, 6720")
    a("s_mul_i32 s65, s62, 3360")
    a("s_add_u32 s64, s64, s65")
    a(f"s_add_u32 s64, s64, {KVR - 640}")
    a(f"v_add_u32 v{V_KVW}, s64, v59")
    init_common(a, list(range(KV_ACC, KV_ACC + 56)) + list(range(CSX, CSX + 28)))
    stamp(a, 2, 1)
    a("s_waitcnt vmcnt(4)")
    a("s_barrier")
    stamp(a, 3, 1)
    stamp(a, 1, 3)
    for f in kv_reads_w(0, 0) + kv_reads_x(0, 0):
        a(f[0])
    prologue_dma2(a, "K1_KV")
    a("s_waitcnt vmcnt(12) lgkmcnt(0)")
    emit_main(a, KV)

    a.label("K1_KV_EPI")
    a("s_barrier")
    stamp(a, 4, 1)
    stamp(a, 6, 3)
    a(f"s_and_b32 s70, s{S_WAVE}, 1")
    a(f"s_lshr_b32 s71, s{S_WAVE}, 1")
    a("s_lshl_b32 s72, s71, 5")
    stamp(a, 5, 1)
    stamp(a, 7, 3)
    NM, RSV, RL = KV_W, KV_W + 8, KV_W + 16
    CSK = KV_W + 24
    CSH = KV_W + 32
    STH = KV_W + 40
    TP = KV_X + 32
    FR = KV_X
    a(f"v_lshrrev_b32 v16, 4, v{V_LANE}")
    a(f"v_and_b32 v17, 15, v{V_LANE}")
    for tt in range(2):
        a(f"s_xor_b32 s73, s70, {tt}")
        a("s_lshl_b32 s73, s73, 4")
        a("s_add_u32 s73, s73, s72")
        a("s_lshl_b32 s73, s73, 2")
        a(f"s_add_u32 s73, s73, {ST}")
        a("v_lshl_add_u32 v18, v16, 4, s73")
        a(f"ds_read_b128 {vr(NM + 4*tt, 4)}, v18")
        a(f"ds_read_b128 {vr(RSV + 4*tt, 4)}, v18 offset:512")
        a("v_lshl_add_u32 v19, v17, 2, s73")
        a(f"ds_read2_b32 {vr(STH + 2*tt, 2)}, v19 offset1:128")
    a("s_lshl_b32 s73, s70, 9")
    a(f"s_add_u32 s73, s73, {CS}")
    a("v_lshl_add_u32 v18, v17, 2, s73")
    for u in range(5):
        a(f"ds_read_b32 v{CSK + u}, v18 offset:{64*u}")
    a("v_lshl_add_u32 v18, v16, 4, s73")
    for uu in range(2):
        a(f"ds_read_b128 {vr(CSH + 4*uu, 4)}, v18 offset:{320 + 64*uu}")
    a(f"s_mov_b32 s76, 0x{EPS6:x}")
    a(f"s_mov_b32 s77, 0x{EPS6:x}")
    a("s_mov_b32 s78, 0x00ff00ff")
    a("s_mov_b32 s79, 0x00ff00ff")
    a("s_waitcnt lgkmcnt(0)")
    for i in range(8):
        a(f"v_mul_f32 v{RL + i}, 0x{LOG2E:x}, v{RSV + i}")
    a(f"s_lshl_b32 s72, s{S_IDX}, 1")
    a("s_add_u32 s72, s72, s70")
    sigma_h_scalar(a, 73, 72)
    a(f"s_lshl_b32 s{S_T64}, s{S_T}, 1")
    a("s_lshr_b32 s74, s71, 1")
    a(f"s_add_u32 s{S_T64}, s{S_T64}, s74")
    a(f"s_mul_i32 s74, s{S_T64}, {NSIG}")
    a("s_add_u32 s73, s73, s74")
    a("s_lshl_b32 s73, s73, 2")
    a("s_and_b32 s74, s71, 1")
    a("s_lshl_b32 s74, s74, 1")
    a("s_add_u32 s73, s73, s74")
    a(f"v_lshlrev_b32 v16, 4, v{V_LANE}")
    for tt in range(2):
        f = FR + 20 + 4 * tt
        relu_batch(a, [(kv_acc(5 + uu, tt) + 2*hh, CSH + 4*uu + 2*hh, STH + 2*tt, f + 2*uu + hh)
                       for uu in range(2) for hh in range(2)])
        a(f"s_xor_b32 s74, s70, {tt}")
        a("s_add_u32 s74, s74, s73")
        a("s_lshl_b32 s74, s74, 10")
        a(f"buffer_store_dwordx4 {vr(f, 4)}, v16, s[28:31], s74 offen{stfl()}")
    for u in range(5):
        cs = CSK + u
        csp = cs & ~1
        sel = cs & 1
        items = []
        for tt in range(2):
            for hh in range(2):
                ac = kv_acc(u, tt) + 2 * hh
                nm, rs, rl = NM + 4 * tt + 2 * hh, RSV + 4 * tt + 2 * hh, RL + 4 * tt + 2 * hh
                dst = FR + 4 * u + 2 * tt + hh
                t_ops = f"{vr(nm,2)}, {vr(csp,2)}, {vr(ac,2)} op_sel:[0,{sel},0] op_sel_hi:[1,{sel},1]"
                items.append((ac, dst, t_ops, f"{vr(rs,2)}, s[76:77]", f"{vr(rl,2)}", f"{vr(rs,2)}"))
        if u < 3:
            phi_batch(a, items, TP, keep="s[78:79]" if u == 2 else None)
        else:
            for (ac, dst, t_ops, _, _, v_ops) in items:
                a(f"v_pk_fma_f32 {vr(ac,2)}, {t_ops}")
            for (ac, dst, t_ops, _, _, v_ops) in items:
                a(f"v_pk_mul_f32 {vr(ac,2)}, {vr(ac,2)}, {v_ops}")
            for (ac, dst, t_ops, _, _, v_ops) in items:
                a(f"v_cvt_pk_bf16_f32 v{dst}, v{ac}, v{ac+1}")
    tiles = [(0, 2), (0, 3), (1, 2), (1, 3), (1, 4), (2, 3), (2, 4)]
    KT = KV_ACC
    for i, (ua, ub) in enumerate(tiles):
        mfma(a, KT + 4 * i, FR + 4 * ua, FR + 4 * ub, "0")
    for ua in range(3):
        mfma(a, KT + 28 + 4 * ua, FR + 4 * ua, ONES, "0")
    for i, (ua, ub) in enumerate(tiles):
        eoff = {2: -8, 3: 8, 4: 24}[ub]
        set_exec(a, kv_tile_mask(ua, ub))
        a(f"ds_write_b128 v{V_KVW}, {vr(KT + 4*i, 4)} offset:{80*(eoff + 8) + 64*ua}")
    for ua in range(3):
        for hd in range(2):
            m = 0
            for g in range(4):
                d0 = 16 * ua + 4 * g
                if d0 < 40 and (d0 >= 20) == (hd == 1):
                    m |= 1 << (16 * g)
            if m:
                set_exec(a, m)
                a(f"ds_write_b128 v{V_KVW}, {vr(KT + 28 + 4*ua, 4)} offset:{640 + 1600*(hd+1) + 64*ua}")
    a("s_mov_b64 exec, -1")
    a("s_waitcnt lgkmcnt(0)")
    a("s_barrier")
    a("v_lshlrev_b32 v17, 2, v0")
    a(f"v_add_u32 v18, {KVR}, v17")
    SM = KV_ACC
    for n in range(4):
        for r in range(4):
            a(f"ds_read_b32 v{SM + 4*n + r}, v18 offset:{2048*n + 6720*r}")
    a(f"s_mul_i32 s72, s{S_IDX}, 6720")
    a(f"s_add_u32 s72, s72, {KVA}")
    a("s_add_u32 s40, s10, s72")
    a("s_addc_u32 s41, s11, 0")
    a("s_mov_b32 s42, 6720")
    a("s_mov_b32 s43, 0x20000")
    a("s_waitcnt lgkmcnt(0)")
    for n in range(4):
        a(f"v_add_f32 v{SM + 4*n}, v{SM + 4*n}, v{SM + 4*n + 1}")
        a(f"v_add_f32 v{SM + 4*n + 2}, v{SM + 4*n + 2}, v{SM + 4*n + 3}")
        a(f"v_add_f32 v{SM + 4*n}, v{SM + 4*n}, v{SM + 4*n + 2}")
    stamp(a, 6, 1)
    for n in range(4):
        if n < 2:
            a(f"buffer_atomic_add_f32 v{SM + 4*n}, v17, s[40:43], 0 offen offset:{2048*n}")
        else:
            if n == 2:
                a("v_add_u32 v18, 4096, v17")
            a(f"buffer_atomic_add_f32 v{SM + 4*n}, v18, s[40:43], 0 offen offset:{2048*(n-2)}")
    a("s_branch PH2")
    emit_hooks(a, KV)


def gen_km():
    a = Asm()
    a("s_cmp_ge_u32 s2, 256")
    a("s_cbranch_scc1 KM_END")
    if asmlib.DIAG:
        for i in range(80, 96):
            a(f"s_mov_b32 s{i}, 0")
    stamp(a, 0)
    a("s_load_dwordx4 s[4:7], s[0:1], 0")
    a("s_load_dwordx2 s[14:15], s[0:1], 16")
    a("s_load_dwordx2 s[8:9], s[0:1], 32")
    a("s_load_dwordx2 s[16:17], s[0:1], 40")
    a(f"s_load_dwordx2 s[{S_OUT}:{S_OUT+1}], s[0:1], 48")
    a("s_load_dwordx2 s[12:13], s[0:1], 56")
    a("s_load_dwordx2 s[10:11], s[0:1], 64")
    a(f"v_and_b32 v{V_LANE}, 63, v0")
    a("v_lshrrev_b32 v2, 6, v0")
    a("s_and_b32 s62, s2, 7")
    a(f"v_readfirstlane_b32 s{S_WAVE}, v2")
    a("s_lshr_b32 s63, s2, 3")
    a("s_and_b32 s64, s62, 1")
    a("s_lshl_b32 s64, s64, 3")
    a("s_and_b32 s65, s63, 7")
    a(f"s_add_u32 s{S_T}, s64, s65")
    a("s_lshr_b32 s64, s62, 1")
    a("s_lshr_b32 s65, s63, 3")
    a("s_lshl_b32 s64, s64, 1")
    a("s_and_b32 s66, s65, 1")
    a(f"s_add_u32 s{S_IDX}, s64, s66")
    a("s_lshr_b32 s66, s65, 1")
    a("s_lshl_b32 s66, s66, 3")
    a(f"s_add_u32 s{S_CG}, s{S_IDX}, s66")
    for r in [3] + V_W:
        a(f"v_mov_b32 v{r}, 0")
    a("v_mov_b32 v4, 0")
    a("v_mov_b32 v5, 0")
    a(f"v_mov_b32 v6, {LW}")
    a("ds_write_b64 v6, v[4:5]")
    a("ds_write_b64 v6, v[4:5] offset:8")
    a("s_waitcnt lgkmcnt(0)")
    srd(a, 20, 4, S * D * 2)
    srd(a, 24, 4, S * D * 2)
    srd(a, 28, 10, WS_USED)
    srd(a, 32, 12, 256)
    a("s_cmp_ge_u32 s65, 2")
    a("s_cbranch_scc1 K1_HQ")
    gen_kv(a)
    gen_hq(a)
    gen_phase2(a, S_WAVE, S_T, S_CG, S_OUT)
    a.label("KM_END")
    a("s_endpgm")
    return a


if __name__ == "__main__":
    print(gen_km().text())
```

```python
import asmlib
from asmlib import *
from layout import *

RS = 336
REG = 64 * RS
KV0 = 4 * REG
LW = 112640
KM_LDS = LW + 64
SPIN_MAX = 1 << 20

ACC = 16
SET0 = 96
V_XR0, V_XR1 = 240, 244
V_G0, V_G1, V_L0, V_L1 = 248, 249, 250, 251


def acc(j, tt):
    return ACC + (j * 4 + tt) * 4


def wfr(d, j):
    return SET0 + 36 * d + 4 * j


def afr(d, tt):
    return SET0 + 36 * d + 20 + 4 * tt


def srd(a, r, lo, size):
    a(f"s_mov_b32 s{r}, s{lo}")
    a(f"s_mov_b32 s{r+1}, s{lo+1}")
    a(f"s_mov_b32 s{r+2}, {size}")
    a(f"s_mov_b32 s{r+3}, 0x20000")


def head_num_mask(j, s, b):
    m = 0
    for l in range(64):
        e, g = 16 * j + (l & 15), l >> 4
        if e // 20 == (32 * s + 16 * b + 4 * g) // 20:
            m |= 1 << l
    return m


def head_den_mask(jb, jmax, s, b):
    m = 0
    for l in range(64):
        row, g = l & 15, l >> 4
        gp, rp = row >> 2, row & 3
        j = jb + rp
        if j <= jmax and (16 * j + 4 * gp) // 20 == (32 * s + 16 * b + 4 * g) // 20:
            m |= 1 << l
    return m


def load_group(a, d, which, first=False):
    kind, i = which
    if kind == "w":
        if i < 4:
            a(f"buffer_load_dwordx4 {vr(wfr(d, i), 4)}, v1, s[12:15], s31 offen offset:{1024*i}")
        else:
            a(f"buffer_load_dwordx4 {vr(wfr(d, i), 4)}, v2, s[12:15], s31 offen")
    else:
        fl = "" if "k2plain" in asmlib.EXP else " sc1"
        a(f"buffer_load_dwordx4 {vr(afr(d, i), 4)}, v1, s[12:15], s30 offen offset:{1024*i}{fl}")


def slot(a, d, wait, loads, check=None):
    a(f"s_waitcnt vmcnt({wait})")
    for j in range(5):
        for tt in range(4):
            if "k2nomfma" not in asmlib.EXP:
                a(f"v_mfma_f32_16x16x32_bf16 {vr(acc(j, tt), 4)}, {vr(wfr(d, j), 4)}, {vr(afr(d, tt), 4)}, {vr(acc(j, tt), 4)}")
            if loads and j == 4:
                if tt == 0 and check:
                    check()
                if tt >= 1:
                    load_group(a, d, ("a", tt - 1))
        if loads and j < 4:
            load_group(a, d, ("w", j))
    if loads:
        load_group(a, d, ("w", 4))
        load_group(a, d, ("a", 3))
        a("s_add_u32 s30, s30, 4096")
        a("s_add_u32 s31, s31, 40960")


def lds_wait(a, label, off, back=None):
    a(f"v_mov_b32 v4, {LW}")
    a(f"s_mov_b32 s39, {SPIN_LDS}")
    a.label(label)
    a(f"ds_read_b32 v5, v4 offset:{off}")
    a("s_waitcnt lgkmcnt(0)")
    a("v_readfirstlane_b32 s40, v5")
    a("s_sub_u32 s39, s39, 1")
    a("s_cmp_eq_u32 s39, 0")
    a(f"s_cbranch_scc1 {label}_X")
    a("s_cmp_eq_u32 s40, 0")
    a(f"s_cbranch_scc0 {label}_X")
    a("s_sleep 1")
    a(f"s_branch {label}")
    a.label(label + "_X")


def main_offsets(a):
    a("s_mul_i32 s27, s24, 19")
    a("s_cmp_eq_u32 s24, 3")
    a("s_cselect_b32 s27, 56, s27")
    a("s_lshr_b32 s28, s24, 1")
    a("s_add_u32 s28, s28, 1")
    a(f"s_mul_i32 s34, s25, {NSIG}")
    a("s_add_u32 s34, s34, s27")
    a("s_lshl_b32 s34, s34, 12")
    a("s_mul_i32 s35, s27, 40")
    a("s_mul_i32 s33, s26, 5")
    a("s_add_u32 s35, s35, s33")
    a("s_lshl_b32 s35, s35, 10")
    a(f"s_add_u32 s35, s35, {WF}")
    for d in range(4):
        if d < 2:
            a(f"s_cmp_gt_u32 s28, {d}")
            a(f"s_cselect_b32 s{42+d}, {OOB}, s34")
            a(f"s_cselect_b32 s{46+d}, {OOB}, s35")
            a("s_cselect_b32 s36, 0, 4096")
            a("s_cselect_b32 s37, 0, 40960")
            a("s_add_u32 s34, s34, s36")
            a("s_add_u32 s35, s35, s37")
        else:
            a(f"s_mov_b32 s{42+d}, s34")
            a(f"s_mov_b32 s{46+d}, s35")
            a("s_add_u32 s34, s34, 4096")
            a("s_add_u32 s35, s35, 40960")


def gen_main(a):
    a.comment("main waves: stream the K quarter of this wave")
    main_offsets(a)
    for d in range(4):
        a(f"s_mov_b32 s31, s{46+d}")
        for j in range(5):
            load_group(a, d, ("w", j))
    for r in range(ACC, ACC + 80):
        a(f"v_mov_b32 v{r}, 0")
    lds_wait(a, "K2_HWAIT", 8)
    stamp(a, 1, 2)
    for d in range(4):
        a(f"s_mov_b32 s30, s{42+d}")
        for tt in range(4):
            load_group(a, d, ("a", tt))
    a("s_mov_b32 s30, s34")
    a("s_mov_b32 s31, s35")
    for d in range(4):
        slot(a, d, [12, 17, 22, 27][d], True)
    stamp(a, 2, 2)
    a("s_mov_b32 s38, 1")
    a.label("K2_LOOP")

    def check():
        a("s_cmp_eq_u32 s38, 2")
        a("s_cbranch_scc1 K2_OWAIT")
        a.label("K2_OBACK")

    for d in range(4):
        slot(a, d, 27, True, check if d == 3 else None)
    a("s_add_u32 s38, s38, 1")
    a("s_cmp_lt_u32 s38, 4")
    a("s_cbranch_scc1 K2_LOOP")
    stamp(a, 3, 2)
    for d in range(4):
        slot(a, d, 27 - 9 * d, False)
    stamp(a, 4, 2)
    a("v_and_b32 v4, 15, v3")
    a("v_lshrrev_b32 v5, 4, v3")
    a(f"v_mul_u32_u24 v4, {RS}, v4")
    a("v_lshl_add_u32 v4, v5, 4, v4")
    a(f"s_mul_i32 s27, s24, {REG}")
    a("v_add_u32 v4, s27, v4")
    for tt in range(4):
        for j in range(5):
            a(f"ds_write_b128 v4, {vr(acc(j, tt), 4)} offset:{tt*16*RS + j*64}")
    a("s_branch K2_FINAL")
    a.label("K2_OWAIT")
    stamp(a, 6, 2)
    lds_wait(a, "K2_OWAIT_L", 4)
    a("s_branch K2_OBACK")


def gen_ojob(a, half):
    L = f"K2_O{half}"
    a.label(L)
    if half == 0:
        tiles, s_list, s_lo = list(range(0, 6)), [0, 1, 2, 3], 0
        dens = [(0, 5, [0, 1, 2]), (4, 5, [1, 2, 3])]
    else:
        tiles, s_list, s_lo = list(range(6, 10)), [2, 3, 4], 2
        dens = [(6, 9, [2, 3, 4])]
    PQR = 8
    NUM = 24
    DEN = 48
    TMP = 64
    AF = 128
    pq = lambda s: PQR + 4 * (s - s_lo)
    a("s_mul_i32 s36, s29, 20")
    a("s_mul_i32 s37, s33, 5")
    a("s_add_u32 s36, s36, s37")
    a(f"s_add_u32 s36, s36, {s_lo}")
    a("s_lshl_b32 s36, s36, 1")
    a("s_add_u32 s36, s36, s32")
    a("s_lshl_b32 s36, s36, 10")
    a(f"s_add_u32 s36, s36, {PQ}")
    for s in s_list:
        k = s - s_lo
        if k < 2:
            a(f"buffer_load_dwordx4 {vr(pq(s), 4)}, v1, s[12:15], s36 offen offset:{2048*k} sc1")
        else:
            a(f"buffer_load_dwordx4 {vr(pq(s), 4)}, v2, s[12:15], s36 offen offset:{2048*(k-2)} sc1")
    a("s_waitcnt vmcnt(0)")
    a(f"v_mov_b32 v4, {LW}")
    a("v_mov_b32 v5, 1")
    a("ds_add_u32 v4, v5")
    a(f"s_mov_b32 s39, {SPIN_LDS}")
    a.label(L + "_W")
    a("ds_read_b32 v5, v4")
    a("s_waitcnt lgkmcnt(0)")
    a("v_readfirstlane_b32 s40, v5")
    a("s_sub_u32 s39, s39, 1")
    a("s_cmp_eq_u32 s39, 0")
    a(f"s_cbranch_scc1 {L}_G")
    a("s_cmp_ge_u32 s40, 256")
    a(f"s_cbranch_scc0 {L}_W")
    a.label(L + "_G")
    stamp(a, 2, 2)
    a("v_and_b32 v4, 15, v3")
    a("v_lshrrev_b32 v5, 4, v3")
    a("v_mul_u32_u24 v4, 80, v4")
    a("v_lshl_add_u32 v4, v5, 4, v4")
    a(f"v_add_u32 v4, {KV0}, v4")
    ZA = 56
    for s in s_list:
        for b in range(2):
            z = ZA + 2 * (s - s_lo) + b
            a(f"v_lshlrev_b32 v6, 2, v5")
            a(f"v_add_u32 v6, {32*s + 16*b}, v6")
            a(f"v_mul_u32_u24 v7, 3277, v6")
            a("v_lshrrev_b32 v7, 16, v7")
            a("v_mul_u32_u24 v7, 1600, v7")
            a(f"v_lshl_add_u32 v7, v6, 2, v7")
            a(f"v_add_u32 v{z}, {KV0 + 1600}, v7")
    frags = []
    from_s = {}
    for j in tiles:
        h_lo, h_hi = (16 * j) // 20, (16 * j + 15) // 20
        for s in range((20 * h_lo) // 32, (20 * h_hi + 19) // 32 + 1):
            frags.append(("n", j, s))
    for di, (jb, jmax, sl) in enumerate(dens):
        for s in sl:
            frags.append(("d", di, s))
    started = set()
    batches = [frags[i:i + 4] for i in range(0, len(frags), 4)]

    def issue(bi):
        for fi, (kind, x, s) in enumerate(batches[bi]):
            t = TMP + 32 * (bi & 1) + 8 * fi
            for b in range(2):
                if kind == "n":
                    a(f"ds_read_b128 {vr(t + 4*b, 4)}, v4 offset:{1280*x + 128*s + 64*b}")
                else:
                    a(f"ds_read_b128 {vr(t + 4*b, 4)}, v{ZA + 2*(s - s_lo) + b}")

    issue(0)
    for bi, batch in enumerate(batches):
        if bi + 1 < len(batches):
            issue(bi + 1)
            a(f"s_waitcnt lgkmcnt({2*len(batches[bi+1])})")
        else:
            a("s_waitcnt lgkmcnt(0)")
        for fi, (kind, x, s) in enumerate(batch):
            t = TMP + 32 * (bi & 1) + 8 * fi
            f = AF + 4 * fi
            for b in range(2):
                if kind == "n":
                    m = head_num_mask(x, s, b)
                else:
                    m = head_den_mask(dens[x][0], dens[x][1], s, b)
                if m == 0:
                    a(f"v_mov_b32 v{f + 2*b}, 0")
                    a(f"v_mov_b32 v{f + 2*b + 1}, 0")
                    continue
                a(f"v_cvt_pk_bf16_f32 v{f + 2*b}, v{t + 4*b}, v{t + 4*b + 1}")
                a(f"v_cvt_pk_bf16_f32 v{f + 2*b + 1}, v{t + 4*b + 2}, v{t + 4*b + 3}")
                if m != (1 << 64) - 1:
                    a(f"s_mov_b32 s40, 0x{m & 0xffffffff:x}")
                    a(f"s_mov_b32 s41, 0x{m >> 32:x}")
                    a(f"v_cndmask_b32 v{f + 2*b}, 0, v{f + 2*b}, s[40:41]")
                    a(f"v_cndmask_b32 v{f + 2*b + 1}, 0, v{f + 2*b + 1}, s[40:41]")
        for fi, (kind, x, s) in enumerate(batch):
            f = AF + 4 * fi
            dst = NUM + 4 * tiles.index(x) if kind == "n" else DEN + 4 * x
            c = vr(dst, 4) if (kind, x) in started else "0"
            started.add((kind, x))
            a(f"v_mfma_f32_16x16x32_bf16 {vr(dst, 4)}, {vr(f, 4)}, {vr(pq(s), 4)}, {c}")
    a("s_mov_b32 s40, 0x358637bd")
    for ti, j in enumerate(tiles):
        di = 0 if (half == 1 or j < 4) else 1
        dn = DEN + 4 * di + (j - dens[di][0])
        a(f"v_add_f32 v{TMP + ti}, s40, v{dn}")
    for ti, j in enumerate(tiles):
        a(f"v_rcp_f32 v{TMP + ti}, v{TMP + ti}")
    for ti, j in enumerate(tiles):
        for r in range(4):
            a(f"v_mul_f32 v{NUM + 4*ti + r}, v{NUM + 4*ti + r}, v{TMP + ti}")
    npair = len(tiles) // 2
    for p in range(npair):
        for hh in range(2):
            n = NUM + 4 * (2 * p + hh)
            a(f"v_cvt_pk_bf16_f32 v{AF + 4*p + 2*hh}, v{n}, v{n+1}")
            a(f"v_cvt_pk_bf16_f32 v{AF + 4*p + 2*hh + 1}, v{n+2}, v{n+3}")
    a("s_mul_i32 s36, s33, 5")
    a("s_mul_i32 s37, s33, 14")
    a("s_cmp_ge_u32 s33, 2")
    a("s_cselect_b32 s40, 1, 0")
    a("s_sub_u32 s37, s37, s40")
    a("s_cmp_ge_u32 s33, 3")
    a("s_cselect_b32 s40, 1, 0")
    a("s_sub_u32 s37, s37, s40")
    a("s_add_u32 s37, s37, 14")
    a("s_add_u32 s36, s36, s37")
    a(f"s_add_u32 s36, s36, {tiles[0] // 2}")
    a(f"s_mul_i32 s37, s25, {NSIG}")
    a("s_add_u32 s36, s36, s37")
    a("s_lshl_b32 s36, s36, 2")
    a("s_and_b32 s37, s26, 1")
    a("s_lshl_b32 s37, s37, 1")
    a("s_add_u32 s37, s37, s32")
    a("s_add_u32 s36, s36, s37")
    a("s_lshl_b32 s36, s36, 10")
    for p in range(npair):
        a(f"buffer_store_dwordx4 {vr(AF + 4*p, 4)}, v1, s[12:15], s36 offen sc1")
        if p + 1 < npair:
            a("s_add_u32 s36, s36, 4096")
    stamp(a, 3, 2)
    a("s_waitcnt vmcnt(0)")
    stamp(a, 4, 2)
    a("s_lshl_b32 s36, s25, 7")
    a(f"s_add_u32 s36, s36, {FLG}")
    a("s_lshl_b32 s37, s26, 2")
    a("s_add_u32 s37, s37, s24")
    a("s_sub_u32 s37, s37, 4")
    a("s_lshl_b32 s37, s37, 2")
    a("s_add_u32 s37, s37, s36")
    a("v_mov_b32 v6, 1")
    a("v_mov_b32 v7, 0")
    a("buffer_store_dword v6, v7, s[12:15], s37 offen sc1")
    if half == 0:
        a("s_cmp_eq_u32 s24, 4")
        a("s_cbranch_scc0 K2_FINAL")
        a("v_and_b32 v6, 31, v3")
        a("v_lshlrev_b32 v6, 2, v6")
        a(f"s_mov_b32 s39, {SPIN_MAX}")
        a.label("K2_POLL")
        a("buffer_load_dword v7, v6, s[12:15], s36 offen sc1")
        a("s_waitcnt vmcnt(0)")
        a("v_cmp_eq_u32 vcc, 1, v7")
        a("s_sub_u32 s39, s39, 1")
        a("s_cmp_eq_u32 s39, 0")
        a("s_cbranch_scc1 K2_POLL_D")
        a("s_cmp_eq_u64 vcc, -1")
        a("s_cbranch_scc1 K2_POLL_D")
        a("s_sleep 3")
        a("s_branch K2_POLL")
        a.label("K2_POLL_D")
        stamp(a, 6, 2)
        a(f"v_mov_b32 v4, {LW}")
        a("v_mov_b32 v5, 1")
        a("ds_write_b32 v4, v5 offset:4")
    a("s_branch K2_FINAL")


def poll_counts(a, label, vaddr):
    a(f"s_mov_b32 s39, {SPIN_MAX}")
    a.label(label)
    a(f"buffer_load_dword v7, v{vaddr}, s[12:15], 0 offen sc1")
    a("s_waitcnt vmcnt(0)")
    a("v_cmp_eq_u32 vcc, 16, v7")
    a("s_sub_u32 s39, s39, 1")
    a("s_cmp_eq_u32 s39, 0")
    a(f"s_cbranch_scc1 {label}_X")
    a("s_cmp_eq_u64 vcc, -1")
    a(f"s_cbranch_scc1 {label}_X")
    a("s_sleep 3")
    a(f"s_branch {label}")
    a.label(label + "_X")


def gen_phase2(a, S_WAVE, S_T, S_CG, S_OUT):
    a.label("PH2")
    stamp(a, 7, 1)
    a(f"s_mov_b32 s24, s{S_WAVE}")
    a(f"s_mov_b32 s50, s{S_T}")
    a(f"s_mov_b32 s52, s{S_CG}")
    a("v_mov_b32 v3, v1")
    a("v_lshlrev_b32 v1, 4, v3")
    a("v_add_u32 v2, 4096, v1")
    a("s_and_b32 s27, s2, 7")
    a("s_lshr_b32 s28, s2, 3")
    a("s_lshr_b32 s25, s27, 1")
    a("s_lshl_b32 s25, s25, 3")
    a("s_and_b32 s29, s28, 7")
    a("s_add_u32 s25, s25, s29")
    a("s_and_b32 s26, s27, 1")
    a("s_lshl_b32 s26, s26, 2")
    a("s_lshr_b32 s28, s28, 3")
    a("s_add_u32 s26, s26, s28")
    srd(a, 12, 10, WS_USED)
    srd(a, 16, 4, S * D * 2)
    srd(a, 20, S_OUT, S * D * 2)
    a("v_mul_u32_u24 v5, 6554, v0")
    a("v_lshrrev_b32 v5, 16, v5")
    a("v_mul_u32_u24 v6, 10, v5")
    a("v_sub_u32 v6, v0, v6")
    a("v_add_u32 v7, 512, v0")
    a("v_mul_u32_u24 v8, 6554, v7")
    a("v_lshrrev_b32 v8, 16, v8")
    a("v_mul_u32_u24 v9, 10, v8")
    a("v_sub_u32 v9, v7, v9")
    a("s_mul_i32 s27, s25, 81920")
    a("s_mul_i32 s28, s26, 160")
    a("s_add_u32 s27, s27, s28")
    a(f"v_mul_u32_u24 v{V_G0}, 1280, v5")
    a(f"v_lshl_add_u32 v{V_G0}, v6, 4, v{V_G0}")
    a(f"v_add_u32 v{V_G0}, s27, v{V_G0}")
    a(f"v_mul_u32_u24 v{V_G1}, 1280, v8")
    a(f"v_lshl_add_u32 v{V_G1}, v9, 4, v{V_G1}")
    a(f"v_add_u32 v{V_G1}, s27, v{V_G1}")
    a("v_mov_b32 v10, 0x7ff00000")
    a("v_cmp_gt_u32 vcc, 128, v0")
    a(f"v_cndmask_b32 v{V_G1}, v10, v{V_G1}, vcc")
    a(f"v_mul_u32_u24 v{V_L0}, {RS}, v5")
    a(f"v_lshl_add_u32 v{V_L0}, v6, 5, v{V_L0}")
    a(f"v_mul_u32_u24 v{V_L1}, {RS}, v8")
    a(f"v_lshl_add_u32 v{V_L1}, v9, 5, v{V_L1}")
    a("v_mov_b32 v10, 0")
    a(f"v_cndmask_b32 v{V_L1}, v10, v{V_L1}, vcc")
    a("s_waitcnt vmcnt(0)")
    a("s_barrier")
    a(f"buffer_load_dwordx4 {vr(V_XR0, 4)}, v{V_G0}, s[16:19], 0 offen")
    a(f"buffer_load_dwordx4 {vr(V_XR1, 4)}, v{V_G1}, s[16:19], 0 offen")
    a("s_cmp_ge_u32 s24, 4")
    a("s_cbranch_scc1 K2_SIDE")
    gen_main(a)

    a.label("K2_SIDE")
    a("s_setprio 3")
    a("s_and_b32 s32, s24, 1")
    a("s_lshr_b32 s33, s26, 1")
    a("s_and_b32 s29, s26, 1")
    a("s_lshl_b32 s27, s25, 1")
    a("s_add_u32 s29, s29, s27")
    a("s_lshr_b32 s51, s25, 1")
    a("s_cmp_eq_u32 s24, 4")
    a("s_cbranch_scc1 K2_W4")
    a("s_cmp_eq_u32 s24, 5")
    a("s_cbranch_scc0 K2_SRDY")
    a("s_lshl_b32 s40, s51, 7")
    a(f"s_add_u32 s40, s40, {CNT_H}")
    a("v_mov_b32 v6, s40")
    poll_counts(a, "K2_PH", 6)
    a(f"v_mov_b32 v4, {LW}")
    a("v_mov_b32 v5, 1")
    a("ds_write_b32 v4, v5 offset:8")
    a("s_branch K2_SRDY")
    a.label("K2_W4")
    a("s_lshl_b32 s40, s50, 7")
    a(f"s_add_u32 s40, s40, {CNT_H}")
    a("v_mov_b32 v8, s40")
    a("s_lshl_b32 s40, s52, 10")
    a(f"s_add_u32 s40, s40, {CNT_KV - 128}")
    a("v_lshlrev_b32 v9, 7, v3")
    a("v_add_u32 v9, s40, v9")
    a("v_cmp_eq_u32 vcc, 0, v3")
    a("v_cndmask_b32 v8, v9, v8, vcc")
    a("v_mov_b32 v6, 1")
    a("s_cmp_lt_u32 s52, 8")
    a("s_cselect_b32 s40, 0x1ff, 1")
    a("s_mov_b32 exec_hi, 0")
    a("s_mov_b32 exec_lo, s40")
    a("buffer_atomic_add v6, v8, s[12:15], 0 offen")
    a("s_mov_b64 exec, -1")
    a("s_lshl_b32 s40, s33, 11")
    a("s_and_b32 s41, s2, 7")
    a("s_lshl_b32 s41, s41, 7")
    a("s_add_u32 s40, s40, s41")
    a(f"s_add_u32 s40, s40, {CNT_KV}")
    a("v_and_b32 v8, 1, v3")
    a("v_lshlrev_b32 v8, 10, v8")
    a("v_add_u32 v8, s40, v8")
    a("s_lshl_b32 s40, s51, 7")
    a(f"s_add_u32 s40, s40, {CNT_H}")
    a("v_mov_b32 v9, s40")
    a("v_and_b32 v10, 2, v3")
    a("v_cmp_eq_u32 vcc, 0, v10")
    a("v_cndmask_b32 v6, v9, v8, vcc")
    poll_counts(a, "K2_PK", 6)
    a(f"v_mov_b32 v4, {LW}")
    a("v_mov_b32 v5, 1")
    a("ds_write_b32 v4, v5 offset:12")
    a.label("K2_SRDY")
    lds_wait(a, "K2_KWAIT", 12)
    stamp(a, 1, 2)
    a("s_mul_i32 s36, s33, 13440")
    a(f"s_add_u32 s36, s36, {KVA}")
    a("s_sub_u32 s37, s24, 4")
    a("s_lshl_b32 s37, s37, 10")
    a("s_add_u32 s36, s36, s37")
    a(f"s_add_u32 s37, s37, {KV0}")
    for n in range(4):
        a(f"s_add_u32 m0, s37, {4096*n}")
        a(f"buffer_load_dwordx4 v1, s[12:15], s36 offen sc1 lds")
        if n < 3:
            a("s_add_u32 s36, s36, 4096")
    a("s_cmp_ge_u32 s24, 6")
    a("s_cbranch_scc1 K2_O1")
    gen_ojob(a, 0)
    gen_ojob(a, 1)

    a.label("K2_FINAL")
    a("s_setprio 0")
    a("s_waitcnt lgkmcnt(0)")
    a("s_barrier")
    stamp(a, 5, 2)
    for rnd, (vl, vg, xr) in enumerate(((V_L0, V_G0, V_XR0), (V_L1, V_G1, V_XR1))):
        if rnd == 1:
            a("s_cmp_ge_u32 s24, 2")
            a("s_cbranch_scc1 K2_DONE")
        T = 16
        for w in range(4):
            for hh in range(2):
                a(f"ds_read_b128 {vr(T + 8*w + 4*hh, 4)}, v{vl} offset:{w * REG + hh * 16}")
        a("s_waitcnt vmcnt(0)")
        for i in range(4):
            a(f"v_lshlrev_b32 v{64 + 2*i}, 16, v{xr + i}")
            a(f"v_and_b32 v{64 + 2*i + 1}, 0xffff0000, v{xr + i}")
        a("s_waitcnt lgkmcnt(0)")
        for i in range(8):
            a(f"v_add_f32 v{T + i}, v{T + i}, v{T + 8 + i}")
            a(f"v_add_f32 v{T + 16 + i}, v{T + 16 + i}, v{T + 24 + i}")
        for i in range(8):
            a(f"v_add_f32 v{T + i}, v{T + i}, v{T + 16 + i}")
        for i in range(8):
            a(f"v_add_f32 v{T + i}, v{T + i}, v{64 + i}")
        for i in range(4):
            a(f"v_cvt_pk_bf16_f32 v{72 + i}, v{T + 2*i}, v{T + 2*i + 1}")
        a(f"buffer_store_dwordx4 v[72:75], v{vg}, s[20:23], 0 offen")
    a.label("K2_DONE")
    a("s_waitcnt vmcnt(0)")
    stamp(a, 7, 2)
    stamp_flush(a, 0, 24, "s[12:15]", STAMPS)
```

```python
S, D, DFF, H, DH = 2048, 640, 1728, 32, 20
NSIG = 74
ACT = 0
PQ = 0x0A00000
WF = 0x0D00000
KVA = 0x1000000
FLG = KVA + 0xE000
F1 = KVA + 0xF000
CNT = KVA + 0x10000
CNT_S, CNT_C, CNT_H, CNT_KV, CNT_Q, CNT_W = CNT, CNT + 16 * 128, CNT + 32 * 128, CNT + 48 * 128, CNT + 80 * 128, CNT + 112 * 128
ZERO_BYTES = 0x14000
STAMPS = 0x1020000
SP = 0x10A0000
CP = 0x10E0000
WS_USED = 0x1120000
OOB = 0x40000000

H0 = [0, 14, 28, 41, 54]
SIG0 = [0, 19, 38, 56]
OBASE = [14, 28, 41, 54]


def sigma_h(s):
    return s + 5 * ((s >= 14) + (s >= 28) + (s >= 41))


def sigma_o(s):
    return s + OBASE[s // 5]


def kappa(g, jj):
    return 16 * (jj >> 2) + 4 * g + (jj & 3)
```

```python
import sys
sys.path.insert(0, "gen")
import km, km2
from asmlib import *
HEAD = """; Kernarg layout (72 bytes, pointers only, base s[0:1]):
"""
def build(sgpr=102):
    t = HEAD + f"; @launch grid=(256,1,1) block=(512,1,1) lds={km2.KM_LDS}\n"
    t += '.amdgcn_target "amdgcn-amd-amdhsa--gfx950"\n.text\n' + kernel_header(km.KM) + km.gen_km().text()
    t += '.section .rodata,"a"\n.p2align 6\n' + kernel_desc(km.KM, 256, sgpr, 256)
    return t
if __name__ == "__main__":
    out = sys.argv[1] if len(sys.argv) > 1 else "parallel_sum__linear_attn_block__dense_activation_relu__prompt.s"
    asm = build()
    open(out, "w").write(asm)
    print(out, len(asm), "bytes")
```

```python
import asmlib
from asmlib import *
from layout import *
from km2 import srd, SPIN_MAX, gen_phase2, LW, KM_LDS

KM = "parallel_sum__linear_attn_block__dense_activation_relu__prompt_kernel"
SLOT = 16384
XB = 65536
PUBS = 110592
PUBC = PUBS + 1024
ST, CS = PUBS, PUBC
VB = 5120 + 16
HB = 10496
JB = 98304
KVR = 32768
NZERO = ZERO_BYTES // 4096

S_WAVE, S_T, S_IDX, S_A, S_B = 44, 45, 46, 47, 48
S_XO, S_WO, S_WSTEP, S_LX, S_WEND = 50, 51, 52, 55, 56
S_CG, S_STEP = 18, 19
S_HM, S_XM, S_MYN = 49, 47, 48
S_JST, S_JLN, S_JBK = 98, 99, 100
S_OUT = 96
S_LINE, S_ISQ, S_DUMMY, S_JOB = 57, 58, 59, 60
S_T64 = 61

V_LANE = 1
V_X = [2, 3, 4, 5]
V_W = [248, 249, 250, 251]
S_LW = [53, 54, 36, 37]
V_T0, V_T1 = 10, 11
V_T2, V_T3 = 8, 9
ONES = 12
V_ADR = 16
ACC = 32
GRAM = 240
RSUM = 244
V_PADR, V_POLL, V_INIT, V_ZERO = 28, 29, 30, 31
V_ALL = 220
V_PART = 200
CSX = 200

LOG2E = 0x3fb8aa3b
EPS6 = 0x358637bd
EPS5 = 0x3727c5ac

HQ_TABLE = [["Q0", "Q1", "H8", "H9"], ["Q2", "Q3", "H10", "H11"], ["Q4", "H12", "H13", "H14"],
            ["Q5", "H15", "H16", "H17"], ["Q6", "H18", "H19", "H20"], ["Q7", "H21", "H22", "D22"],
            ["Q8", "H23", "H24", "D24"], ["Q9", "H25", "H26", "D26"]]


def stfl():
    E = asmlib.EXP
    return "" if "stplain" in E else " sc1"


def hq_word(row):
    w = 0
    for i, c in enumerate(row):
        b = int(c[1:]) | (0x80 if c[0] == "Q" else 0) | (0x40 if c[0] == "D" else 0)
        w |= b << (8 * i)
    return w


def mfma(a, d, x, y, c=None):
    a(f"v_mfma_f32_16x16x32_bf16 {vr(d, 4)}, {vr(x, 4)}, {vr(y, 4)}, {c if c is not None else vr(d, 4)}")


def interleave(a, mf, fillers, per=2):
    fillers = list(fillers)
    E = asmlib.EXP
    if "nomfma" in E:
        mf = ["s_nop 0"] * len(mf)
    keep = lambda f: not (("nodma" in E and any(" lds" in i for i in f)) or ("noread" in E and f[0].startswith("ds_read"))
                          or ("nostats" in E and f[0].startswith("v_")))
    fillers = [f for f in fillers if keep(f)]
    n = len(mf)
    for i, m in enumerate(mf):
        a(m)
        left = n - i
        k = max(per if fillers else 0, -(-len(fillers) // left) if left else 0)
        for _ in range(min(k, len(fillers))):
            for ins in fillers.pop(0):
                a(ins)
    for f in fillers:
        for ins in f:
            a(ins)


def w_issue(slot, wrap):
    f = [[f"s_add_u32 m0, s{S_LW[q]}, {slot*SLOT}",
          f"buffer_load_dwordx4 v{V_W[q]}, s[24:27], s{S_WO} offen lds"] for q in range(4)]
    f[-1].append(f"s_add_u32 s{S_WO}, s{S_WO}, s{S_WSTEP}")
    if wrap:
        f.append([f"s_cmp_eq_u32 s{S_WO}, s{S_WEND}", f"s_cselect_b32 s{S_WO}, 0, s{S_WO}"])
    return f


def x_issue(xs):
    f = [[f"s_add_u32 m0, s{S_LX}, {xs*SLOT + 1024*q}",
          f"buffer_load_dwordx4 v{V_X[q]}, s[20:23], s{S_XO} offen lds"] for q in range(4)]
    f[-1].append(f"s_add_u32 s{S_XO}, s{S_XO}, 128")
    f.append([f"s_cmp_eq_u32 s{S_XO}, 1280", f"s_cselect_b32 s{S_XO}, 0, s{S_XO}"])
    return f


def dma_fillers(p):
    f = x_issue((p >> 1) & 1) if p % 2 == 0 else []
    return f + w_issue(p, p & 1)


def stats_mfma(xreg, first):
    x = vr(xreg, 4)
    return [f"v_mfma_f32_16x16x32_bf16 {vr(GRAM,4)}, {x}, {x}, {'0' if first else vr(GRAM,4)}",
            f"v_mfma_f32_16x16x32_bf16 {vr(RSUM,4)}, {vr(ONES,4)}, {x}, {'0' if first else vr(RSUM,4)}"]


def start_class(a):
    a(f"s_add_u32 s75, s{S_T}, s{S_CG}")
    for _ in range(3):
        a("s_cmp_ge_u32 s75, 10")
        a("s_cselect_b32 s74, 10, 0")
        a("s_sub_u32 s75, s75, s74")


def prologue_dma(a):
    a(f"s_lshl_b32 s{S_XO}, s75, 7")
    a(f"s_mul_i32 s{S_WO}, s75, s{S_WSTEP}")
    a(f"s_lshl_b32 s{S_WO}, s{S_WO}, 1")
    a(f"s_mul_i32 s{S_WEND}, s{S_WSTEP}, 20")
    for f in w_issue(0, 0) + x_issue(0) + w_issue(1, 1):
        for ins in f:
            a(ins)


def prologue_dma2(a, L):
    a(f"s_cmp_ge_u32 s{S_WAVE}, 4")
    a(f"s_cbranch_scc1 {L}_NOP2")
    for f in x_issue(1) + w_issue(2, 0) + w_issue(3, 1):
        for ins in f:
            a(ins)
    a.label(f"{L}_NOP2")


def hook_masks(a):
    a(f"s_mov_b32 s{S_XM}, 6")
    a(f"s_mov_b32 s{S_HM}, 4")
    a(f"s_cmp_ge_u32 s{S_WAVE}, 4")
    a(f"s_cselect_b32 s63, {1 << 12}, 0")
    a(f"s_or_b32 s{S_HM}, s{S_HM}, s63")
    a(f"s_cmp_eq_u32 s{S_WAVE}, 7")
    a(f"s_cselect_b32 s63, {(1 << 3) | (1 << 6) | (1 << 10) | (1 << 11)}, 0")
    a(f"s_or_b32 s{S_HM}, s{S_HM}, s63")
    a(f"s_sub_u32 s64, s{S_WAVE}, 4")
    a(f"s_mul_i32 s{S_JOB}, s2, 3")
    a(f"s_add_u32 s{S_JOB}, s{S_JOB}, s64")
    a("s_cmp_lt_u32 s64, 3")
    a(f"s_cselect_b32 s{S_JOB}, s{S_JOB}, 1000")
    a(f"s_cmp_lt_u32 s{S_JOB}, 740")
    a(f"s_cselect_b32 s63, {(1 << 2) | (1 << 6) | (1 << 10)}, 0")
    a(f"s_or_b32 s{S_HM}, s{S_HM}, s63")
    a(f"s_mov_b32 s{S_STEP}, 0")


def stage_stats(a, tok_s):
    a("s_mov_b32 s74, 0xaaaaaaaa")
    a("s_mov_b32 s75, 0xaaaaaaaa")
    a("s_mov_b32 s76, 0xcccccccc")
    a("s_mov_b32 s77, 0xcccccccc")
    a(f"v_cndmask_b32 v{V_T2}, v{GRAM}, v{GRAM+1}, s[74:75]")
    a(f"v_cndmask_b32 v{V_T3}, v{GRAM+2}, v{GRAM+3}, s[74:75]")
    a(f"v_and_b32 v{V_T0}, 15, v{V_LANE}")
    a(f"v_cndmask_b32 v{V_T3}, v{V_T2}, v{V_T3}, s[76:77]")
    a(f"v_mov_b32 v{V_T2}, v{RSUM}")
    a(f"s_lshl_b32 s62, s{tok_s}, 3")
    a(f"s_add_u32 s62, s62, {PUBS}")
    a(f"v_lshl_add_u32 v{V_T0}, v{V_T0}, 3, s62")
    set_exec(a, 0xF0000F0000F0000F)
    a(f"ds_write_b64 v{V_T0}, {vr(V_T2,2)}")
    a("s_mov_b64 exec, -1")


def emit_step(a, role, p, mode, loader):
    last = mode == "last"
    L = role.L + ("L" if loader else "S")
    if "nobar" not in asmlib.EXP:
        a("s_barrier")
    if not last:
        a(f"s_cbranch_vccnz {L}_HK{p}")
        a.label(f"{L}_HK{p}_B")
    if last and p == 0 and not loader:
        finish_stats(a, L)
    if last and p == 2 and not loader:
        check_all(a, L)
    if asmlib.DIAG and asmlib.STAMPSET == 4 and not last:
        for st_, slot_ in ((0, 1), (2, 2), (4, 3), (6, 4), (8, 5), (12, 6)):
            if st_ % 4 == p:
                a(f"s_cmp_eq_u32 s{S_STEP}, {st_}")
                a(f"s_cbranch_scc0 {L}_ST{st_}")
                stamp(a, slot_, 4)
                a.label(f"{L}_ST{st_}")
    if last and p == 0:
        stamp(a, 7, 4)
    f = []
    if not last and loader:
        f += dma_fillers(p)
    if not (last and p == 3):
        f += role.reads_w((p + 1) % 4, (p + 1) & 1)
    if p & 1 and not (last and p == 3):
        nx = ((p + 1) >> 1) & 1
        f += role.reads_x(nx, nx)
    if not last:
        f.append([f"s_add_u32 s{S_STEP}, s{S_STEP}, 1", f"s_lshr_b32 s62, s{S_HM}, s{S_STEP}"])
        f.append(["s_and_b32 vcc_lo, s62, 1", f"s_bitcmp1_b32 s{S_XM}, s{S_STEP}"])
    interleave(a, role.mfmas(p), f, per=1)
    if not last:
        a(f"s_cbranch_scc1 {L}_XT{p}")
        a.label(f"{L}_XT{p}_B")
        a("s_waitcnt vmcnt(12) lgkmcnt(0)" if loader else "s_waitcnt lgkmcnt(0)")
    elif loader:
        a(["s_waitcnt vmcnt(4) lgkmcnt(0)", "s_waitcnt vmcnt(0) lgkmcnt(0)", "s_waitcnt lgkmcnt(0)", "s_nop 0"][p])
    else:
        a(["s_waitcnt lgkmcnt(0)", "s_waitcnt lgkmcnt(0)", "s_waitcnt lgkmcnt(0)", "s_nop 0"][p])


def finish_stats(a, L):
    P = V_PART
    a("s_waitcnt vmcnt(0)")
    for i in range(5):
        a(f"v_add_f32 v{P + 2*i}, v{P + 2*i}, v{P + 10 + 2*i}")
        a(f"v_add_f32 v{P + 2*i + 1}, v{P + 2*i + 1}, v{P + 11 + 2*i}")
    for (d, x) in ((0, 2), (4, 6), (0, 8), (0, 4)):
        a(f"v_add_f32 v{P + d}, v{P + d}, v{P + x}")
        a(f"v_add_f32 v{P + d + 1}, v{P + d + 1}, v{P + x + 1}")
    a(f"s_and_b32 s62, s{S_WAVE}, 1")
    a("s_lshl_b32 s62, s62, 6")
    a(f"v_add_u32 v{V_T1}, s62, v{V_LANE}")
    a(f"s_cmp_ge_u32 s{S_WAVE}, 6")
    a(f"s_cbranch_scc1 {L}_FCS")
    A, B = V_T2, V_T3
    a(f"v_mul_f32 v{P}, 0x3acccccd, v{P}")
    a(f"v_mul_f32 v{B}, 0x3acccccd, v{P+1}")
    a(f"v_lshlrev_b32 v{V_T1}, 2, v{V_T1}")
    a(f"v_fma_f32 v{B}, -v{P}, v{P}, v{B}")
    a(f"v_add_u32 v{V_T1}, {ST}, v{V_T1}")
    a(f"v_max_f32 v{B}, 0, v{B}")
    a(f"v_cvt_pk_bf16_f32 v{V_T0}, v{P}, v{B}")
    a(f"v_lshlrev_b32 v{A}, 16, v{V_T0}")
    a(f"v_and_b32 v{B}, 0xffff0000, v{V_T0}")
    a(f"v_add_f32 v{B}, 0x{EPS5:x}, v{B}")
    a(f"v_sub_f32 v{A}, 0, v{A}")
    a(f"v_cvt_pk_bf16_f32 v{V_T0}, v{B}, v{B}")
    a(f"v_lshlrev_b32 v{B}, 16, v{V_T0}")
    a(f"v_sqrt_f32 v{B}, v{B}")
    a(f"v_cvt_pk_bf16_f32 v{V_T0}, v{B}, v{B}")
    a(f"v_lshlrev_b32 v{B}, 16, v{V_T0}")
    a(f"v_rcp_f32 v{B}, v{B}")
    a(f"ds_write_b32 v{V_T1}, v{A}")
    a(f"ds_write_b32 v{V_T1}, v{B} offset:512")
    a(f"s_branch {L}_FDONE")
    a.label(f"{L}_FCS")
    a(f"v_lshlrev_b32 v{V_T1}, 3, v{V_T1}")
    a(f"v_add_u32 v{V_T1}, {CS}, v{V_T1}")
    a(f"ds_write_b64 v{V_T1}, {vr(P, 2)}")
    a.label(f"{L}_FDONE")
    a(f"s_cmp_eq_u32 s{S_WAVE}, 7")
    a(f"s_cbranch_scc0 {L}_FD2")
    a(f"v_and_b32 v{V_T0}, 15, v{V_LANE}")
    a(f"v_lshlrev_b32 v{V_T0}, 7, v{V_T0}")
    a(f"s_mov_b32 s62, {CNT_W}")
    a(f"buffer_load_dword v{V_ALL}, v{V_T0}, s[28:31], s62 offen sc1")
    a.label(f"{L}_FD2")


def check_all(a, L):
    a(f"s_cmp_eq_u32 s{S_WAVE}, 7")
    a(f"s_cbranch_scc0 {L}_GDONE")
    a("s_waitcnt vmcnt(0)")
    a(f"s_mov_b32 s63, {SPIN_MAX}")
    a.label(f"{L}_GALL_W")
    a(f"v_cmp_eq_u32 vcc, 16, v{V_ALL}")
    a("s_sub_u32 s63, s63, 1")
    a("s_cmp_eq_u32 s63, 0")
    a(f"s_cbranch_scc1 {L}_GDONE")
    a("s_cmp_eq_u64 vcc, -1")
    a(f"s_cbranch_scc1 {L}_GDONE")
    a("s_sleep 4")
    a(f"v_and_b32 v{V_T0}, 15, v{V_LANE}")
    a(f"v_lshlrev_b32 v{V_T0}, 7, v{V_T0}")
    a(f"s_mov_b32 s62, {CNT_W}")
    a(f"buffer_load_dword v{V_ALL}, v{V_T0}, s[28:31], s62 offen sc1")
    a("s_waitcnt vmcnt(0)")
    a(f"s_branch {L}_GALL_W")
    a.label(f"{L}_GDONE")


def emit_main(a, role):
    hook_masks(a)
    a("s_mov_b64 vcc, 0")
    a(f"s_cmp_ge_u32 s{S_WAVE}, 4")
    a(f"s_cbranch_scc1 {role.L}S_LOOP")
    for loader in (True, False):
        L = role.L + ("L" if loader else "S")
        a.label(f"{L}_LOOP")
        for p in range(4):
            emit_step(a, role, p, "mid", loader)
        a(f"s_cmp_lt_u32 s{S_STEP}, 16")
        a(f"s_cbranch_scc1 {L}_LOOP")
        stamp(a, 2, 3)
        for p in range(4):
            emit_step(a, role, p, "last", loader)
        if loader:
            a(f"s_branch {role.L}_EPI")


def job_issue(a):
    a(f"s_mul_hi_u32 s{S_JST}, s{S_JOB}, 0x1999999a")
    a(f"s_mul_i32 s63, s{S_JST}, 10")
    a(f"s_sub_u32 s{S_JLN}, s{S_JOB}, s63")
    a(f"s_cmp_lt_u32 s{S_JST}, 54")
    a("s_cselect_b32 s36, s16, s14")
    a("s_cselect_b32 s37, s17, s15")
    a(f"s_mov_b32 s38, {DFF*D*2}")
    a(f"s_cselect_b32 s38, s38, {D*D*2}")
    a("s_mov_b32 s39, 0x20000")
    a("s_cselect_b32 s64, 0, 54")
    a(f"s_sub_u32 s{S_JBK}, s{S_JST}, s64")
    a(f"s_mul_i32 s65, s{S_JBK}, 40960")
    a(f"s_lshl_b32 s66, s{S_JLN}, 7")
    a("s_add_u32 s65, s65, s66")
    a(f"v_lshrrev_b32 v{V_T0}, 3, v{V_LANE}")
    a(f"v_mul_u32_u24 v{V_T0}, 1280, v{V_T0}")
    a(f"v_and_b32 v{V_T1}, 7, v{V_LANE}")
    a(f"v_lshl_add_u32 v{V_T0}, v{V_T1}, 4, v{V_T0}")
    a(f"s_lshl_b32 s66, s{S_WAVE}, 12")
    for q in range(4):
        a(f"s_add_u32 m0, s66, {JB - 16384 + 1024*q}")
        a(f"buffer_load_dwordx4 v{V_T0}, s[36:39], s65 offen lds")
        if q < 3:
            a("s_add_u32 s65, s65, 10240")


def job_finish(a, L):
    a("s_waitcnt vmcnt(0)")
    R = [228, 232, 236, 248]
    A, B = 252, 253
    a(f"v_lshrrev_b32 v{A}, 4, v{V_LANE}")
    a(f"v_bfe_u32 v{B}, v{V_LANE}, 2, 2")
    a(f"v_lshl_add_u32 v{A}, v{A}, 2, v{B}")
    a(f"v_lshlrev_b32 v{A}, 7, v{A}")
    a(f"v_and_b32 v{B}, 3, v{V_LANE}")
    a(f"v_lshl_add_u32 v{A}, v{B}, 3, v{A}")
    a(f"s_lshl_b32 s66, s{S_WAVE}, 12")
    a(f"s_add_u32 s66, s66, {JB - 16384}")
    a(f"v_add_u32 v{A}, s66, v{A}")
    for jl in range(4):
        for b in range(2):
            a(f"ds_read_b64_tr_b16 {vr(R[jl] + 2*b, 2)}, v{A} offset:{2048*b + 32*jl}")
    a(f"s_cmp_lt_u32 s{S_JST}, 54")
    a(f"s_cbranch_scc0 {L}_JO")
    a(f"s_mov_b32 s66, s{S_JST}")
    for th in (14, 28, 41):
        a(f"s_cmp_ge_u32 s{S_JST}, {th}")
        a("s_cselect_b32 s67, 5, 0")
        a("s_add_u32 s66, s66, s67")
    a(f"s_branch {L}_JS")
    a.label(f"{L}_JO")
    a(f"s_add_u32 s66, s{S_JBK}, 14")
    for th, inc in ((5, 14), (10, 13), (15, 13)):
        a(f"s_cmp_ge_u32 s{S_JBK}, {th}")
        a(f"s_cselect_b32 s67, {inc}, 0")
        a("s_add_u32 s66, s66, s67")
    a.label(f"{L}_JS")
    a("s_mul_i32 s66, s66, 40")
    a(f"s_lshl_b32 s67, s{S_JLN}, 2")
    a("s_add_u32 s66, s66, s67")
    a("s_lshl_b32 s66, s66, 10")
    a(f"s_add_u32 s66, s66, {WF}")
    a(f"v_lshlrev_b32 v{B}, 4, v{V_LANE}")
    a("s_waitcnt lgkmcnt(0)")
    for jl in range(4):
        a(f"buffer_store_dwordx4 {vr(R[jl], 4)}, v{B}, s[28:31], s66 offen offset:{1024*jl} sc1")


def emit_hooks(a, role):
    for loader in (True, False):
        emit_hooks_of(a, role, loader)


def emit_hooks_of(a, role, loader):
    L = role.L + ("L" if loader else "S")
    for p in range(4):
        a.label(f"{L}_XT{p}")
        if p < 2:
            for m in role.extras(p):
                a(m)
        a(f"s_branch {L}_XT{p}_B")

    def at_step(X, n, tag, body, wave7=False):
        a(f"s_cmp_eq_u32 s{S_STEP}, {n}")
        a(f"s_cbranch_scc0 {X}_{tag}")
        body()
        a.label(f"{X}_{tag}")

    def store_partials():
        a(f"v_lshlrev_b32 v{V_T0}, 4, v{V_LANE}")
        a(f"v_add_u32 v{V_T1}, {PUBS}, v{V_T0}")
        a(f"ds_read_b128 v[228:231], v{V_T1}")
        a(f"ds_read_b128 v[232:235], v{V_T1} offset:1024")
        a(f"s_lshl_b32 s62, s{S_T}, 4")
        a(f"s_add_u32 s62, s62, s{S_CG}")
        a("s_lshl_b32 s62, s62, 10")
        a(f"s_add_u32 s62, s62, {SP}")
        a(f"s_lshl_b32 s63, s{S_CG}, 4")
        a(f"s_add_u32 s63, s63, s{S_T}")
        a("s_lshl_b32 s63, s63, 10")
        a(f"s_add_u32 s63, s63, {CP}")
        a("s_waitcnt lgkmcnt(0)")
        a(f"buffer_store_dwordx4 v[228:231], v{V_T0}, s[28:31], s62 offen sc1")
        a(f"buffer_store_dwordx4 v[232:235], v{V_T0}, s[28:31], s63 offen sc1")

    def flag(X):
        a("s_waitcnt vmcnt(0)")
        a(f"s_mov_b32 s63, {SPIN_MAX}")
        a.label(f"{X}_W")
        a(f"v_readfirstlane_b32 s62, v{V_INIT}")
        a("s_sub_u32 s63, s63, 1")
        a("s_cmp_eq_u32 s63, 0")
        a(f"s_cbranch_scc1 {X}_G")
        a(f"s_cmp_ge_u32 s62, {NZERO}")
        a(f"s_cbranch_scc1 {X}_G")
        a("s_sleep 4")
        a(f"buffer_load_dword v{V_INIT}, v{V_ZERO}, s[32:35], 0 offen sc1")
        a("s_waitcnt vmcnt(0)")
        a(f"s_branch {X}_W")
        a.label(f"{X}_G")
        stamp(a, 3, 3)
        a(f"v_mov_b32 v{V_T0}, 1")
        a("s_mov_b64 exec, 3")
        a(f"buffer_atomic_add v{V_T0}, v{V_PADR}, s[28:31], 0 offen")
        a("s_mov_b64 exec, -1")

    def check(X):
        stamp(a, 4, 3)
        a("s_waitcnt vmcnt(0)")
        a(f"s_mov_b32 s63, {SPIN_MAX}")
        a.label(f"{X}_CW")
        a(f"v_cmp_eq_u32 vcc, 16, v{V_POLL}")
        a("s_sub_u32 s63, s63, 1")
        a("s_cmp_eq_u32 s63, 0")
        a(f"s_cbranch_scc1 {X}_CG")
        a("s_cmp_eq_u64 vcc, -1")
        a(f"s_cbranch_scc1 {X}_CG")
        a("s_sleep 4")
        a(f"buffer_load_dword v{V_POLL}, v{V_PADR}, s[28:31], 0 offen sc1")
        a("s_waitcnt vmcnt(0)")
        a(f"s_branch {X}_CW")
        a.label(f"{X}_CG")
        stamp(a, 5, 3)

    def load_partials():
        a(f"s_and_b32 s62, s{S_WAVE}, 1")
        a("s_lshl_b32 s62, s62, 6")
        a(f"v_add_u32 v{V_T1}, s62, v{V_LANE}")
        a(f"v_lshlrev_b32 v{V_T1}, 3, v{V_T1}")
        a(f"s_lshl_b32 s62, s{S_T}, 14")
        a(f"s_add_u32 s62, s62, {SP}")
        a(f"s_lshl_b32 s63, s{S_CG}, 14")
        a(f"s_add_u32 s63, s63, {CP}")
        a(f"s_cmp_lt_u32 s{S_WAVE}, 6")
        a("s_cselect_b32 s62, s62, s63")
        for n in range(10):
            a(f"buffer_load_dwordx2 {vr(V_PART + 2*n, 2)}, v{V_T1}, s[28:31], s62 offen offset:{1024*(n & 3)} sc1")
            if n & 3 == 3:
                a("s_add_u32 s62, s62, 4096")

    def flag_w():
        a(f"s_lshl_b32 s62, s{S_T}, 7")
        a(f"s_add_u32 s62, s62, {CNT_W}")
        a(f"v_mov_b32 v{V_T0}, 1")
        a("s_mov_b64 exec, 1")
        a(f"buffer_atomic_add v{V_T0}, v{V_ZERO}, s[28:31], s62 offen")
        a("s_mov_b64 exec, -1")

    for p in range(4):
        X = f"{L}_HK{p}"
        a.label(X)
        if p == 2:
            at_step(X, 2, "a", lambda: role.stage(a))
        if not loader:
            if p == 0:
                at_step(X, 12, "b", load_partials)
            if p == 2:
                w7 = f"{X}_w7"
                a(f"s_cmp_eq_u32 s{S_WAVE}, 7")
                a(f"s_cbranch_scc0 {w7}")
                at_step(X, 6, "f", lambda: flag(X))
                at_step(X, 10, "g", lambda: a(f"buffer_load_dword v{V_POLL}, v{V_PADR}, s[28:31], 0 offen sc1"))
                a.label(w7)
                a(f"s_cmp_lt_u32 s{S_JOB}, 740")
                a(f"s_cbranch_scc0 {X}_B")
                at_step(X, 2, "c", lambda: job_issue(a))
                at_step(X, 6, "d", lambda: job_finish(a, X))
                at_step(X, 10, "e", lambda: a("s_waitcnt vmcnt(0)"))
            if p == 3:
                def store_and_init():
                    store_partials()
                    a(f"buffer_load_dword v{V_INIT}, v{V_ZERO}, s[32:35], 0 offen sc1")
                at_step(X, 3, "b", store_and_init)

                def flagw_and_check():
                    check(X)
                    flag_w()
                at_step(X, 11, "c", flagw_and_check)
        a(f"s_branch {X}_B")


def poll_address(a):
    a(f"v_mov_b32 v{V_ZERO}, 0")
    a(f"s_lshl_b32 s74, s{S_T}, 7")
    a(f"s_add_u32 s74, s74, {CNT_S}")
    a(f"s_lshl_b32 s75, s{S_CG}, 7")
    a(f"s_add_u32 s75, s75, {CNT_C}")
    a(f"v_mov_b32 v{V_T1}, s74")
    a(f"v_mov_b32 v{V_T2}, s75")
    a(f"v_and_b32 v{V_T3}, 1, v{V_LANE}")
    a(f"v_cmp_eq_u32 vcc, 1, v{V_T3}")
    a(f"v_cndmask_b32 v{V_PADR}, v{V_T1}, v{V_T2}, vcc")


def line_dma_voffsets(a, stride_s, coloff_s):
    a(f"v_lshrrev_b32 v20, 3, v{V_LANE}")
    a(f"v_and_b32 v21, 7, v{V_LANE}")
    a(f"v_bfe_u32 v22, v{V_LANE}, 4, 1")
    for q in range(4):
        a(f"v_or_b32 v23, {2*(q & 1)}, v22")
        a("v_lshlrev_b32 v23, 1, v23")
        a("v_xor_b32 v23, v23, v21")
        a(f"v_add_u32 v24, {8*q}, v20")
        a(f"v_mul_lo_u32 v24, v24, s{stride_s}")
        a("v_lshl_add_u32 v24, v23, 4, v24")
        a(f"v_add_u32 v{V_W[q]}, s{coloff_s}, v24")


def x_dma_voffsets(a):
    a(f"v_lshrrev_b32 v20, 3, v{V_LANE}")
    a(f"v_and_b32 v21, 7, v{V_LANE}")
    a(f"v_lshrrev_b32 v22, 4, v{V_LANE}")
    a(f"s_lshl_b32 s{S_A}, s{S_T}, 7")
    a(f"s_lshl_b32 s{S_B}, s{S_WAVE}, 5")
    a(f"s_add_u32 s{S_A}, s{S_A}, s{S_B}")
    for q in range(4):
        a(f"v_add_u32 v23, {4*(q & 1)}, v22")
        a("v_xor_b32 v23, v23, v21")
        a(f"v_add_u32 v24, s{S_A}, v20")
        if q:
            a(f"v_add_u32 v24, {8*q}, v24")
        a("v_mul_u32_u24 v24, 1280, v24")
        a(f"v_lshl_add_u32 v{V_X[q]}, v23, 4, v24")
    a(f"s_lshl_b32 s{S_LX}, s{S_WAVE}, 12")
    a(f"s_add_u32 s{S_LX}, s{S_LX}, {XB}")


def hq_line_code(a, dst, lreg):
    a(f"s_mov_b32 s{dst}, 0x{hq_word(HQ_TABLE[0]):x}")
    for hq in range(1, 8):
        a(f"s_cmp_eq_u32 s{S_IDX}, {hq}")
        a(f"s_cselect_b32 s{dst}, 0x{hq_word(HQ_TABLE[hq]):x}, s{dst}")
    a(f"s_lshl_b32 s65, s{lreg}, 3")
    a(f"s_lshr_b32 s{dst}, s{dst}, s65")


def line_read_addr(a, dst, u_s, u_add, base_s, base_add):
    a(f"v_lshrrev_b32 v56, 4, v{V_LANE}")
    a(f"v_bfe_u32 v57, v{V_LANE}, 2, 2")
    a(f"v_bfe_u32 v58, v{V_LANE}, 1, 1")
    a("v_lshrrev_b32 v59, 1, v57")
    a("v_and_b32 v60, 1, v56")
    a("v_lshl_or_b32 v59, v60, 1, v59")
    a("v_lshlrev_b32 v59, 1, v59")
    if u_s is None:
        a(f"v_or_b32 v60, {2*u_add}, v58")
    else:
        a(f"s_xor_b32 s{S_B}, s{u_s}, {u_add}")
        a(f"s_lshl_b32 s{S_B}, s{S_B}, 1")
        a(f"v_or_b32 v60, s{S_B}, v58")
    a("v_xor_b32 v60, v60, v59")
    a("v_lshl_add_u32 v61, v56, 3, v57")
    a("v_lshlrev_b32 v61, 7, v61")
    a("v_lshl_add_u32 v61, v60, 4, v61")
    a(f"v_and_b32 v60, 1, v{V_LANE}")
    a("v_lshl_add_u32 v61, v60, 3, v61")
    a(f"v_add_u32 v61, s{base_s}, v61")
    if base_add:
        a(f"v_add_u32 v{dst}, {base_add}, v61")
    else:
        a(f"v_mov_b32 v{dst}, v61")


def set_exec(a, m):
    a(f"s_mov_b32 exec_lo, 0x{m & 0xffffffff:x}")
    a(f"s_mov_b32 exec_hi, 0x{m >> 32:x}")


def sigma_h_scalar(a, dst, src):
    a(f"s_mov_b32 s{dst}, s{src}")
    for th in (14, 28, 41):
        a(f"s_cmp_ge_u32 s{src}, {th}")
        a("s_cselect_b32 s67, 5, 0")
        a(f"s_add_u32 s{dst}, s{dst}, s67")


def relu_batch(a, items):
    el = [e for (dst, pair) in items for e in pair]
    for (ac, cs, nm, rsh) in el:
        a(f"v_fma_f32 v{ac}, v{cs}, v{nm}, v{ac}")
    for (ac, cs, nm, rsh) in el:
        a(f"v_add_f32_e64 v{ac}, v{ac}, |v{ac}|")
    for (ac, cs, nm, rsh) in el:
        a(f"v_mul_f32 v{ac}, v{ac}, v{rsh}")
    for (dst, pair) in items:
        a(f"v_cvt_pk_bf16_f32 v{dst}, v{pair[0][0]}, v{pair[1][0]}")


def phi_batch(a, items, TP, keep=None):
    el = [e for (dst, pair) in items for e in pair]
    n = len(el)
    for (ac, cs, nm, rsh, rl, rs) in el:
        a(f"v_fma_f32 v{ac}, v{cs}, v{nm}, v{ac}")
    for i, (ac, cs, nm, rsh, rl, rs) in enumerate(el):
        a(f"v_mul_f32 v{TP+i}, v{ac}, v{rl}")
    if keep:
        for i, (ac, cs, nm, rsh, rl, rs) in enumerate(el):
            a(f"v_mul_f32 v{TP+n+i}, v{ac}, v{rs}")
    for i, (ac, cs, nm, rsh, rl, rs) in enumerate(el):
        a(f"v_exp_f32_e64 v{TP+i}, v{TP+i} clamp")
        a(f"v_add_f32_e64 v{ac}, v{ac}, |v{ac}|")
    for i, (ac, cs, nm, rsh, rl, rs) in enumerate(el):
        a(f"v_add_f32 v{TP+i}, s76, v{TP+i}")
    for i, (ac, cs, nm, rsh, rl, rs) in enumerate(el):
        a(f"v_fma_f32 v{ac}, v{ac}, v{rsh}, v{TP+i}")
    if keep:
        for i, (ac, cs, nm, rsh, rl, rs) in enumerate(el):
            a(f"v_cndmask_b32 v{ac}, v{TP+n+i}, v{ac}, {keep}")
    for (dst, pair) in items:
        a(f"v_cvt_pk_bf16_f32 v{dst}, v{pair[0][0]}, v{pair[1][0]}")


HQ_ACC = ACC
HQ_CS = ACC + 64
HQ_W = ACC + 72
HQ_X = HQ_W + 32
V_AW, V_AX = V_ADR, V_ADR + 4


def hq_acc(u, tt):
    return HQ_ACC + (u * 4 + tt) * 4


def hq_w(st, u):
    return HQ_W + 16 * st + 4 * u


def hq_x(st, kh, tt):
    return HQ_X + 32 * st + 16 * kh + 4 * tt


def hq_reads_w(slot, st):
    return [[f"ds_read_b64_tr_b16 {vr(hq_w(st, u) + 2*s, 2)}, v{V_AW + u} offset:{slot*SLOT + 512*s}"]
            for u in range(4) for s in range(2)]


def hq_reads_x(xs, st):
    return [[f"ds_read_b128 {vr(hq_x(st, kh, tt), 4)}, v{V_AX + 4*kh + tt} offset:{xs*SLOT}"]
            for kh in range(2) for tt in range(4)]


class HQ:
    L = "K1_HQ"
    reads_w = staticmethod(hq_reads_w)
    reads_x = staticmethod(hq_reads_x)

    @staticmethod
    def mfmas(p):
        ws, xs, kh = p & 1, (p >> 1) & 1, p & 1
        return [f"v_mfma_f32_16x16x32_bf16 {vr(hq_acc(u,tt),4)}, {vr(hq_w(ws,u),4)}, {vr(hq_x(xs,kh,tt),4)}, {vr(hq_acc(u,tt),4)}"
                for u in range(4) for tt in range(4)]

    @staticmethod
    def extras(p):
        ws, xs, kh = p & 1, (p >> 1) & 1, p & 1
        return [f"v_mfma_f32_16x16x32_bf16 {vr(HQ_CS+4*u,4)}, {vr(hq_w(ws,u),4)}, {vr(ONES,4)}, {vr(HQ_CS+4*u,4)}"
                for u in range(2)] + stats_mfma(hq_x(xs, kh, 0), False)

    @staticmethod
    def stage(a):
        a(f"s_and_b32 s70, s{S_WAVE}, 1")
        a(f"s_lshr_b32 s71, s{S_WAVE}, 1")
        a("s_lshl_b32 s72, s70, 6")
        a("s_lshl_b32 s73, s71, 4")
        a("s_add_u32 s73, s73, s72")
        stage_stats(a, 73)
        a("s_lshl_b32 s62, s71, 8")
        a(f"s_add_u32 s62, s62, {PUBC}")
        a(f"v_lshrrev_b32 v{V_T0}, 4, v{V_LANE}")
        a(f"v_lshlrev_b32 v{V_T0}, 4, v{V_T0}")
        a("s_lshl_b32 s74, s70, 1")
        for u in range(2):
            a(f"s_xor_b32 s75, s74, {u}")
            a("s_lshl_b32 s75, s75, 6")
            a("s_add_u32 s75, s75, s62")
            a(f"v_add_u32 v{V_T1}, s75, v{V_T0}")
            set_exec(a, 0x0001000100010001)
            a(f"ds_write_b128 v{V_T1}, {vr(HQ_CS + 4*u, 4)}")
            a("s_mov_b64 exec, -1")


def gen_hq(a):
    a.label("K1_HQ")
    a(f"s_and_b32 s62, s{S_WAVE}, 1")
    a(f"s_lshr_b32 s63, s{S_WAVE}, 1")
    start_class(a)
    a(f"s_cmp_ge_u32 s{S_WAVE}, 4")
    a("s_cbranch_scc1 K1_HQ_NODMA")
    hq_line_code(a, 64, S_WAVE)
    a("s_bitcmp1_b32 s64, 7")
    a("s_cselect_b32 s24, s6, s8")
    a("s_cselect_b32 s25, s7, s9")
    a(f"s_mov_b32 s26, {D*3*D*2}")
    a(f"s_cselect_b32 s26, s26, {D*DFF*2}")
    a("s_mov_b32 s27, 0x20000")
    a("s_mov_b32 s65, 3840")
    a("s_cselect_b32 s65, s65, 3456")
    a(f"s_lshl_b32 s{S_WSTEP}, s65, 5")
    a("s_and_b32 s66, s64, 63")
    a("s_lshl_b32 s66, s66, 7")
    line_dma_voffsets(a, 65, 66)
    a(f"s_lshl_b32 s66, s{S_WAVE}, 12")
    for q in range(4):
        a(f"s_add_u32 s{S_LW[q]}, s66, {1024*q}")
    x_dma_voffsets(a)
    prologue_dma(a)
    a.label("K1_HQ_NODMA")
    hq_line_code(a, 64, 63)
    a(f"s_and_b32 s{S_LINE}, s64, 63")
    a(f"s_bfe_u32 s{S_ISQ}, s64, 0x10007")
    a(f"s_bfe_u32 s{S_DUMMY}, s64, 0x10006")
    a(f"s_cmp_ge_u32 s{S_IDX}, 5")
    a("s_cselect_b32 s68, 1, 0")
    a(f"s_cmp_lt_u32 s{S_T}, 7")
    a("s_cselect_b32 s68, s68, 0")
    a(f"s_cmp_eq_u32 s{S_WAVE}, 6")
    a("s_cselect_b32 s68, s68, 0")
    a(f"s_sub_u32 s69, s{S_IDX}, 5")
    a("s_mul_i32 s69, s69, 7")
    a(f"s_add_u32 s69, s69, s{S_T}")
    a(f"s_cmp_lt_u32 s69, {NZERO}")
    a("s_cselect_b32 s68, s68, 0")
    a("s_cmp_eq_u32 s68, 1")
    a("s_cbranch_scc0 K1_NOZERO")
    a("s_lshl_b32 s69, s69, 12")
    a(f"s_add_u32 s69, s69, {KVA}")
    for r in range(4):
        a(f"v_mov_b32 v{32+r}, 0")
    a(f"v_lshlrev_b32 v36, 4, v{V_LANE}")
    for q in range(4):
        a(f"buffer_store_dwordx4 v[32:35], v36, s[28:31], s69 offen offset:{1024*q} sc1")
    a.label("K1_NOZERO")
    a(f"s_lshl_b32 s64, s62, 1")
    a("s_lshl_b32 s66, s63, 12")
    for u in range(4):
        line_read_addr(a, V_AW + u, 64, u, 66, 0)
    a(f"v_and_b32 v56, 15, v{V_LANE}")
    a(f"v_lshrrev_b32 v57, 4, v{V_LANE}")
    a("v_lshrrev_b32 v58, 1, v56")
    a("s_lshl_b32 s66, s62, 6")
    a("v_add_u32 v56, s66, v56")
    a("v_lshlrev_b32 v56, 7, v56")
    for kh in range(2):
        a(f"v_or_b32 v59, {4*kh}, v57")
        a("v_xor_b32 v59, v59, v58")
        a("v_lshl_add_u32 v59, v59, 4, v56")
        for tt in range(4):
            a(f"s_xor_b32 s66, s63, {tt}")
            a("s_lshl_b32 s66, s66, 11")
            a(f"s_add_u32 s66, s66, {XB}")
            a(f"v_add_u32 v{V_AX + 4*kh + tt}, s66, v59")
    init_common(a, list(range(HQ_ACC, HQ_ACC + 72)))
    stamp(a, 2, 1)
    a("s_waitcnt vmcnt(4)")
    a("s_barrier")
    stamp(a, 3, 1)
    stamp(a, 1, 3)
    for f in hq_reads_w(0, 0) + hq_reads_x(0, 0):
        a(f[0])
    prologue_dma2(a, "K1_HQ")
    a("s_waitcnt vmcnt(12) lgkmcnt(0)")
    a("s_cmp_eq_u32 s68, 1")
    a("s_cbranch_scc0 K1_NOZSIG")
    a("s_waitcnt vmcnt(0)")
    a("v_mov_b32 v10, 1")
    a("v_mov_b32 v11, 0")
    a("s_mov_b64 exec, 1")
    a("buffer_atomic_add v10, v11, s[32:35], 0 offen")
    a("s_mov_b64 exec, -1")
    a.label("K1_NOZSIG")
    emit_main(a, HQ)

    a.label("K1_HQ_EPI")
    a("s_barrier")
    stamp(a, 4, 1)
    stamp(a, 6, 3)
    a(f"s_and_b32 s70, s{S_WAVE}, 1")
    a(f"s_lshr_b32 s71, s{S_WAVE}, 1")
    a("s_lshl_b32 s72, s70, 6")
    a(f"v_lshrrev_b32 v16, 4, v{V_LANE}")
    a("v_lshlrev_b32 v17, 4, v16")
    a("s_lshl_b32 s73, s71, 8")
    a(f"s_add_u32 s73, s73, {CS}")
    a("s_lshl_b32 s74, s70, 1")
    for u in range(4):
        a(f"s_xor_b32 s75, s74, {u}")
        a("s_lshl_b32 s75, s75, 6")
        a("s_add_u32 s75, s75, s73")
        a(f"v_add_u32 v{18+u}, s75, v17")
    stamp(a, 5, 1)
    stamp(a, 7, 3)
    CSR, STR = HQ_W, HQ_W + 16
    for u in range(4):
        a(f"ds_read_b128 {vr(CSR + 4*u, 4)}, v{18+u}")
    a(f"v_and_b32 v16, 15, v{V_LANE}")
    a("v_add_u32 v16, s72, v16")
    a("v_lshlrev_b32 v16, 2, v16")
    for tt in range(4):
        a(f"s_xor_b32 s75, s71, {tt}")
        a("s_lshl_b32 s75, s75, 6")
        a(f"s_add_u32 s75, s75, {ST}")
        a("v_add_u32 v17, s75, v16")
        a(f"ds_read2_b32 {vr(STR + 2*tt, 2)}, v17 offset1:128")
    a(f"s_lshl_b32 s{S_T64}, s{S_T}, 1")
    a(f"s_add_u32 s{S_T64}, s{S_T64}, s70")
    a(f"v_lshlrev_b32 v16, 4, v{V_LANE}")
    a("s_waitcnt lgkmcnt(0)")
    a(f"s_cmp_eq_u32 s{S_DUMMY}, 1")
    a("s_cbranch_scc1 K1_HQ_END")
    PK = HQ_X
    RL = HQ_W + 24
    for tt in range(4):
        a(f"v_mul_f32 v{RL + 2*tt}, 0x{LOG2E:x}, v{STR + 2*tt + 1}")
        a(f"v_mul_f32 v{RL + 2*tt + 1}, 0.5, v{STR + 2*tt + 1}")
    a(f"s_cmp_eq_u32 s{S_ISQ}, 1")
    a("s_cbranch_scc1 K1_HQ_Q")
    for pr in range(2):
        a(f"s_xor_b32 s72, s70, {pr}")
        a(f"s_lshl_b32 s73, s{S_LINE}, 1")
        a("s_add_u32 s72, s72, s73")
        sigma_h_scalar(a, 73, 72)
        a(f"s_mul_i32 s74, s{S_T64}, {NSIG}")
        a("s_add_u32 s73, s73, s74")
        a("s_lshl_b32 s73, s73, 12")
        for tt in range(4):
            f = PK + 4 * (pr * 4 + tt)
            relu_batch(a, [(f + 2*uu + hh, [(hq_acc(2*pr + uu, tt) + 2*hh + z, CSR + 4*(2*pr + uu) + 2*hh + z, STR + 2*tt, RL + 2*tt + 1)
                                            for z in range(2)]) for uu in range(2) for hh in range(2)])
            a(f"s_xor_b32 s75, s71, {tt}")
            a("s_lshl_b32 s75, s75, 10")
            a("s_add_u32 s75, s75, s73")
            a(f"buffer_store_dwordx4 {vr(f, 4)}, v16, s[28:31], s75 offen{stfl()}")
    a("s_branch K1_HQ_FIN")
    a.label("K1_HQ_Q")
    a(f"s_mov_b32 s76, 0x{EPS6:x}")
    a(f"s_mov_b32 s77, 0x{EPS6:x}")
    TP = HQ_X + 32
    for pr in range(2):
        a(f"s_xor_b32 s72, s70, {pr}")
        a(f"s_lshl_b32 s73, s{S_LINE}, 1")
        a("s_add_u32 s72, s72, s73")
        a(f"s_mul_i32 s73, s{S_T64}, 40")
        a("s_add_u32 s73, s73, s72")
        a("s_lshl_b32 s73, s73, 11")
        a(f"s_add_u32 s73, s73, {PQ}")
        for tt in range(4):
            f = PK + 4 * (pr * 4 + tt)
            st = STR + 2 * tt
            items = [(f + 2*uu + hh, [(hq_acc(2*pr + uu, tt) + 2*hh + z, CSR + 4*(2*pr + uu) + 2*hh + z, st,
                                       RL + 2*tt + 1, RL + 2*tt, st + 1) for z in range(2)])
                     for uu in range(2) for hh in range(2)]
            phi_batch(a, items, TP)
            a(f"s_xor_b32 s75, s71, {tt}")
            a("s_lshr_b32 s74, s75, 1")
            a("s_mul_i32 s74, s74, 40960")
            a("s_and_b32 s75, s75, 1")
            a("s_lshl_b32 s75, s75, 10")
            a("s_add_u32 s75, s75, s74")
            a("s_add_u32 s75, s75, s73")
            a(f"buffer_store_dwordx4 {vr(f, 4)}, v16, s[28:31], s75 offen{stfl()}")
    a.label("K1_HQ_FIN")
    stamp(a, 6, 1)
    a.label("K1_HQ_END")
    a("s_branch PH2")
    emit_hooks(a, HQ)


def init_common(a, regs):
    poll_address(a)
    for r in list(range(GRAM, GRAM + 8)) + regs:
        a(f"v_mov_b32 v{r}, 0")
    for r in range(4):
        a(f"v_mov_b32 v{ONES + r}, 0x3f803f80")


KV_ACC = ACC
KV_CS = ACC + 56
KV_W = ACC + 64
KV_X = KV_W + 56
V_A01, V_A2, V_A34, V_AH = V_ADR, V_ADR + 1, V_ADR + 2, V_ADR + 3
V_AXK = V_ADR + 5
V_KVW = V_ADR + 9
ONES_UNITS = [(0, 1), (2, 3), (4, 5), (6,)]


def kv_acc(u, tt):
    return KV_ACC + (u * 2 + tt) * 4


def kv_w(st, u):
    return KV_W + 28 * st + 4 * u


def kv_x(st, kh, tt):
    return KV_X + 16 * st + 8 * kh + 4 * tt


def kv_reads_w(slot, st):
    f = []
    for u in range(7):
        for s in range(2):
            if u < 2:
                adr, off = V_A01, 32 * u + 1280 * s
            elif u == 2:
                adr, off = V_A2, 1280 * s
            elif u < 5:
                adr, off = V_A34, 32 * (u - 3) + 1280 * s
            else:
                adr, off = V_AH + (u - 5), 512 * s
            f.append([f"ds_read_b64_tr_b16 {vr(kv_w(st, u) + 2*s, 2)}, v{adr} offset:{slot*SLOT + off}"])
    return f


def kv_reads_x(xs, st):
    return [[f"ds_read_b128 {vr(kv_x(st, kh, tt), 4)}, v{V_AXK + 2*kh + tt} offset:{xs*SLOT}"]
            for kh in range(2) for tt in range(2)]


class KV:
    L = "K1_KV"
    reads_w = staticmethod(kv_reads_w)
    reads_x = staticmethod(kv_reads_x)

    @staticmethod
    def mfmas(p):
        ws, xs, kh = p & 1, (p >> 1) & 1, p & 1
        mf = []
        for u in range(7):
            w = vr(kv_w(ws, u), 4)
            for tt in range(2):
                x, d = vr(kv_x(xs, kh, tt), 4), vr(kv_acc(u, tt), 4)
                mf.append(f"v_mfma_f32_16x16x32_bf16 {d}, {x}, {w}, {d}" if u < 5 else
                          f"v_mfma_f32_16x16x32_bf16 {d}, {w}, {x}, {d}")
        return mf

    @staticmethod
    def extras(p):
        ws, xs, kh = p & 1, (p >> 1) & 1, p & 1
        mf = []
        for u in range(7):
            w, d = vr(kv_w(ws, u), 4), vr(CSX + 4 * u, 4)
            mf.append(f"v_mfma_f32_16x16x32_bf16 {d}, {vr(ONES,4)}, {w}, {d}" if u < 5 else
                      f"v_mfma_f32_16x16x32_bf16 {d}, {w}, {vr(ONES,4)}, {d}")
        return mf + stats_mfma(kv_x(xs, kh, 0), False)

    @staticmethod
    def stage(a):
        a(f"s_and_b32 s70, s{S_WAVE}, 1")
        a(f"s_lshr_b32 s71, s{S_WAVE}, 1")
        a("s_lshl_b32 s72, s71, 5")
        a("s_lshl_b32 s73, s70, 4")
        a("s_add_u32 s73, s73, s72")
        stage_stats(a, 73)
        a("s_lshl_b32 s62, s70, 9")
        a(f"s_add_u32 s62, s62, {PUBC}")
        a(f"v_and_b32 v{V_T0}, 15, v{V_LANE}")
        a(f"v_lshl_add_u32 v{V_T0}, v{V_T0}, 2, s62")
        a(f"v_lshrrev_b32 v{V_T1}, 4, v{V_LANE}")
        a(f"v_lshl_add_u32 v{V_T1}, v{V_T1}, 4, s62")
        set_exec(a, 0xFFFF)
        for u in range(5):
            a(f"ds_write_b32 v{V_T0}, v{CSX + 4*u} offset:{64*u}")
        set_exec(a, 0x0001000100010001)
        for u in range(5, 7):
            a(f"ds_write_b128 v{V_T1}, {vr(CSX + 4*u, 4)} offset:{320 + 64*(u-5)}")
        a("s_mov_b64 exec, -1")


def kv_tile_mask(ua, ub):
    m = 0
    for l in range(64):
        e16, g = l & 15, l >> 4
        d0 = 16 * ua + 4 * g
        e = {2: e16 - 8, 3: 8 + e16, 4: 24 + e16}[ub]
        if d0 < 40 and e >= 0 and (d0 >= 20) == (e >= 20):
            m |= 1 << l
    return m


def gen_kv(a):
    a.label("K1_KV")
    a(f"s_and_b32 s62, s{S_WAVE}, 1")
    a(f"s_lshr_b32 s63, s{S_WAVE}, 1")
    start_class(a)
    a(f"s_cmp_ge_u32 s{S_WAVE}, 4")
    a("s_cbranch_scc1 K1_KV_NODMA")
    a(f"s_cmp_lt_u32 s{S_WAVE}, 3")
    a("s_cbranch_scc0 K1_KV_HD")
    a("s_mov_b32 s24, s6")
    a("s_mov_b32 s25, s7")
    a(f"s_mov_b32 s26, {D*3*D*2}")
    a("s_mov_b32 s27, 0x20000")
    a(f"s_mov_b32 s{S_WSTEP}, {3840*32}")
    for q in range(4):
        a(f"s_lshl_b32 s64, s{S_WAVE}, 2")
        a(f"s_add_u32 s64, s64, {q}")
        a("s_cmp_ge_u32 s64, 5")
        a("s_cselect_b32 s65, 5, 0")
        a(f"s_cselect_b32 s69, {VB}, 0")
        a("s_mov_b32 s67, 2560")
        a("s_cselect_b32 s67, s67, 1280")
        a("s_sub_u32 s66, s64, s65")
        a("s_lshl_b32 s70, s66, 10")
        a(f"s_add_u32 s{S_LW[q]}, s69, s70")
        a("s_lshl_b32 s70, s66, 6")
        a(f"v_add_u32 v20, s70, v{V_LANE}")
        a("v_mul_u32_u24 v21, 6554, v20")
        a("v_lshrrev_b32 v21, 16, v21")
        a("v_mul_u32_u24 v22, 10, v21")
        a("v_sub_u32 v22, v20, v22")
        a("v_and_b32 v23, 0x13, v21")
        a("v_bfe_u32 v24, v21, 2, 1")
        a("v_lshl_or_b32 v23, v24, 3, v23")
        a("v_bfe_u32 v24, v21, 3, 1")
        a("v_lshl_or_b32 v23, v24, 2, v23")
        a("v_mul_u32_u24 v23, 3840, v23")
        a("v_lshl_add_u32 v23, v22, 4, v23")
        a(f"s_mul_i32 s70, s{S_IDX}, 160")
        a("s_add_u32 s70, s70, s67")
        a("s_cmp_ge_u32 s64, 10")
        a(f"s_cselect_b32 s70, {OOB}, s70")
        a(f"s_cselect_b32 s{S_LW[q]}, {SLOT - 1024}, s{S_LW[q]}")
        a(f"v_add_u32 v{V_W[q]}, s70, v23")
    a("s_branch K1_KV_D1")
    a.label("K1_KV_HD")
    a("s_mov_b32 s24, s8")
    a("s_mov_b32 s25, s9")
    a(f"s_mov_b32 s26, {D*DFF*2}")
    a("s_mov_b32 s27, 0x20000")
    a(f"s_mov_b32 s{S_WSTEP}, {3456*32}")
    a("s_mov_b32 s65, 3456")
    a(f"s_lshl_b32 s66, s{S_IDX}, 7")
    for q in range(4):
        a(f"s_mov_b32 s{S_LW[q]}, {HB + 1024*q}")
    line_dma_voffsets(a, 65, 66)
    a.label("K1_KV_D1")
    x_dma_voffsets(a)
    prologue_dma(a)
    a.label("K1_KV_NODMA")
    a(f"v_lshrrev_b32 v56, 4, v{V_LANE}")
    a(f"v_bfe_u32 v57, v{V_LANE}, 2, 2")
    a(f"v_and_b32 v58, 3, v{V_LANE}")
    a("v_lshrrev_b32 v59, 1, v56")
    a("v_lshlrev_b32 v59, 4, v59")
    a("v_and_b32 v60, 1, v56")
    a("v_lshl_add_u32 v59, v60, 2, v59")
    a("v_add_u32 v59, v59, v57")
    a("v_mul_u32_u24 v59, 160, v59")
    a("s_mul_i32 s64, s62, 80")
    a("v_add_u32 v59, s64, v59")
    a(f"v_lshl_add_u32 v{V_A01}, v58, 3, v59")
    a(f"v_add_u32 v{V_A34}, {VB + 16}, v{V_A01}")
    a(f"v_add_u32 v60, 64, v{V_A01}")
    a(f"v_add_u32 v61, {VB - 16}, v{V_A01}")
    a("v_cmp_gt_u32 vcc, 2, v58")
    a(f"v_cndmask_b32 v{V_A2}, v61, v60, vcc")
    a("s_lshl_b32 s64, s62, 1")
    a(f"s_mov_b32 s66, {HB}")
    for uu in range(2):
        line_read_addr(a, V_AH + uu, 64, uu, 66, 0)
    a(f"v_and_b32 v56, 15, v{V_LANE}")
    a(f"v_lshrrev_b32 v57, 4, v{V_LANE}")
    a("v_lshrrev_b32 v58, 1, v56")
    for tt in range(2):
        a(f"s_xor_b32 s64, s62, {tt}")
        a("s_lshl_b32 s64, s64, 4")
        a("s_lshl_b32 s65, s63, 5")
        a("s_add_u32 s64, s64, s65")
        a("v_add_u32 v60, s64, v56")
        a("v_lshlrev_b32 v60, 7, v60")
        for kh in range(2):
            a(f"v_or_b32 v59, {4*kh}, v57")
            a("v_xor_b32 v59, v59, v58")
            a("v_lshl_add_u32 v59, v59, 4, v60")
            a(f"v_add_u32 v{V_AXK + 2*kh + tt}, {XB}, v59")
    a("v_mul_u32_u24 v59, 80, v56")
    a("v_lshl_add_u32 v59, v57, 4, v59")
    a("s_mul_i32 s64, s63, 6720")
    a("s_mul_i32 s65, s62, 3360")
    a("s_add_u32 s64, s64, s65")
    a(f"s_add_u32 s64, s64, {KVR - 640}")
    a(f"v_add_u32 v{V_KVW}, s64, v59")
    init_common(a, list(range(KV_ACC, KV_ACC + 56)) + list(range(CSX, CSX + 28)))
    stamp(a, 2, 1)
    a("s_waitcnt vmcnt(4)")
    a("s_barrier")
    stamp(a, 3, 1)
    stamp(a, 1, 3)
    for f in kv_reads_w(0, 0) + kv_reads_x(0, 0):
        a(f[0])
    prologue_dma2(a, "K1_KV")
    a("s_waitcnt vmcnt(12) lgkmcnt(0)")
    emit_main(a, KV)

    a.label("K1_KV_EPI")
    a("s_barrier")
    stamp(a, 4, 1)
    stamp(a, 6, 3)
    a(f"s_and_b32 s70, s{S_WAVE}, 1")
    a(f"s_lshr_b32 s71, s{S_WAVE}, 1")
    a("s_lshl_b32 s72, s71, 5")
    stamp(a, 5, 1)
    stamp(a, 7, 3)
    NM, RSV, RL = KV_W, KV_W + 8, KV_W + 16
    CSK = KV_W + 24
    CSH = KV_W + 32
    STH = KV_W + 40
    TP = KV_X + 32
    FR = KV_X
    a(f"v_lshrrev_b32 v16, 4, v{V_LANE}")
    a(f"v_and_b32 v17, 15, v{V_LANE}")
    for tt in range(2):
        a(f"s_xor_b32 s73, s70, {tt}")
        a("s_lshl_b32 s73, s73, 4")
        a("s_add_u32 s73, s73, s72")
        a("s_lshl_b32 s73, s73, 2")
        a(f"s_add_u32 s73, s73, {ST}")
        a("v_lshl_add_u32 v18, v16, 4, s73")
        a(f"ds_read_b128 {vr(NM + 4*tt, 4)}, v18")
        a(f"ds_read_b128 {vr(RSV + 4*tt, 4)}, v18 offset:512")
        a("v_lshl_add_u32 v19, v17, 2, s73")
        a(f"ds_read2_b32 {vr(STH + 2*tt, 2)}, v19 offset1:128")
    a("s_lshl_b32 s73, s70, 9")
    a(f"s_add_u32 s73, s73, {CS}")
    a("v_lshl_add_u32 v18, v17, 2, s73")
    for u in range(5):
        a(f"ds_read_b32 v{CSK + u}, v18 offset:{64*u}")
    a("v_lshl_add_u32 v18, v16, 4, s73")
    for uu in range(2):
        a(f"ds_read_b128 {vr(CSH + 4*uu, 4)}, v18 offset:{320 + 64*uu}")
    a(f"s_mov_b32 s76, 0x{EPS6:x}")
    a(f"s_mov_b32 s77, 0x{EPS6:x}")
    a("s_mov_b32 s78, 0x00ff00ff")
    a("s_mov_b32 s79, 0x00ff00ff")
    a("s_waitcnt lgkmcnt(0)")
    RSH, RSHH = KV_W + 44, KV_W + 52
    for i in range(8):
        a(f"v_mul_f32 v{RL + i}, 0x{LOG2E:x}, v{RSV + i}")
        a(f"v_mul_f32 v{RSH + i}, 0.5, v{RSV + i}")
    for tt in range(2):
        a(f"v_mul_f32 v{RSHH + tt}, 0.5, v{STH + 2*tt + 1}")
    a(f"s_lshl_b32 s72, s{S_IDX}, 1")
    a("s_add_u32 s72, s72, s70")
    sigma_h_scalar(a, 73, 72)
    a(f"s_lshl_b32 s{S_T64}, s{S_T}, 1")
    a("s_lshr_b32 s74, s71, 1")
    a(f"s_add_u32 s{S_T64}, s{S_T64}, s74")
    a(f"s_mul_i32 s74, s{S_T64}, {NSIG}")
    a("s_add_u32 s73, s73, s74")
    a("s_lshl_b32 s73, s73, 2")
    a("s_and_b32 s74, s71, 1")
    a("s_lshl_b32 s74, s74, 1")
    a("s_add_u32 s73, s73, s74")
    a(f"v_lshlrev_b32 v16, 4, v{V_LANE}")
    for tt in range(2):
        f = FR + 20 + 4 * tt
        relu_batch(a, [(f + 2*uu + hh, [(kv_acc(5 + uu, tt) + 2*hh + z, CSH + 4*uu + 2*hh + z, STH + 2*tt, RSHH + tt)
                                        for z in range(2)]) for uu in range(2) for hh in range(2)])
        a(f"s_xor_b32 s74, s70, {tt}")
        a("s_add_u32 s74, s74, s73")
        a("s_lshl_b32 s74, s74, 10")
        a(f"buffer_store_dwordx4 {vr(f, 4)}, v16, s[28:31], s74 offen{stfl()}")
    for u in range(5):
        cs = CSK + u
        items = []
        for tt in range(2):
            for hh in range(2):
                pair = []
                for z in range(2):
                    r = 4 * tt + 2 * hh + z
                    pair.append((kv_acc(u, tt) + 2 * hh + z, cs, NM + r, RSH + r, RL + r, RSV + r))
                items.append((FR + 4 * u + 2 * tt + hh, pair))
        if u < 3:
            phi_batch(a, items, TP, keep="s[78:79]" if u == 2 else None)
        else:
            el = [e for (dst, pair) in items for e in pair]
            for (ac, c, nm, rsh, rl, rs) in el:
                a(f"v_fma_f32 v{ac}, v{c}, v{nm}, v{ac}")
            for (ac, c, nm, rsh, rl, rs) in el:
                a(f"v_mul_f32 v{ac}, v{ac}, v{rs}")
            for (dst, pair) in items:
                a(f"v_cvt_pk_bf16_f32 v{dst}, v{pair[0][0]}, v{pair[1][0]}")
    tiles = [(0, 2), (0, 3), (1, 2), (1, 3), (1, 4), (2, 3), (2, 4)]
    KT = KV_ACC
    for i, (ua, ub) in enumerate(tiles):
        mfma(a, KT + 4 * i, FR + 4 * ua, FR + 4 * ub, "0")
    for ua in range(3):
        mfma(a, KT + 28 + 4 * ua, FR + 4 * ua, ONES, "0")
    for i, (ua, ub) in enumerate(tiles):
        eoff = {2: -8, 3: 8, 4: 24}[ub]
        set_exec(a, kv_tile_mask(ua, ub))
        a(f"ds_write_b128 v{V_KVW}, {vr(KT + 4*i, 4)} offset:{80*(eoff + 8) + 64*ua}")
    for ua in range(3):
        for hd in range(2):
            m = 0
            for g in range(4):
                d0 = 16 * ua + 4 * g
                if d0 < 40 and (d0 >= 20) == (hd == 1):
                    m |= 1 << (16 * g)
            if m:
                set_exec(a, m)
                a(f"ds_write_b128 v{V_KVW}, {vr(KT + 28 + 4*ua, 4)} offset:{640 + 1600*(hd+1) + 64*ua}")
    a("s_mov_b64 exec, -1")
    a("s_waitcnt lgkmcnt(0)")
    a("s_barrier")
    a("v_lshlrev_b32 v17, 2, v0")
    a(f"v_add_u32 v18, {KVR}, v17")
    SM = KV_ACC
    for n in range(4):
        for r in range(4):
            a(f"ds_read_b32 v{SM + 4*n + r}, v18 offset:{2048*n + 6720*r}")
    a(f"s_mul_i32 s72, s{S_IDX}, 6720")
    a(f"s_add_u32 s72, s72, {KVA}")
    a("s_add_u32 s40, s10, s72")
    a("s_addc_u32 s41, s11, 0")
    a("s_mov_b32 s42, 6720")
    a("s_mov_b32 s43, 0x20000")
    a("s_waitcnt lgkmcnt(0)")
    for n in range(4):
        a(f"v_add_f32 v{SM + 4*n}, v{SM + 4*n}, v{SM + 4*n + 1}")
        a(f"v_add_f32 v{SM + 4*n + 2}, v{SM + 4*n + 2}, v{SM + 4*n + 3}")
        a(f"v_add_f32 v{SM + 4*n}, v{SM + 4*n}, v{SM + 4*n + 2}")
    stamp(a, 6, 1)
    for n in range(4):
        if n < 2:
            a(f"buffer_atomic_add_f32 v{SM + 4*n}, v17, s[40:43], 0 offen offset:{2048*n}")
        else:
            if n == 2:
                a("v_add_u32 v18, 4096, v17")
            a(f"buffer_atomic_add_f32 v{SM + 4*n}, v18, s[40:43], 0 offen offset:{2048*(n-2)}")
    a("s_branch PH2")
    emit_hooks(a, KV)


def gen_km():
    a = Asm()
    a("s_cmp_ge_u32 s2, 256")
    a("s_cbranch_scc1 KM_END")
    if asmlib.DIAG:
        for i in range(80, 96):
            a(f"s_mov_b32 s{i}, 0")
    stamp(a, 0)
    a("s_load_dwordx4 s[4:7], s[0:1], 0")
    a("s_load_dwordx2 s[14:15], s[0:1], 16")
    a("s_load_dwordx2 s[8:9], s[0:1], 32")
    a("s_load_dwordx2 s[16:17], s[0:1], 40")
    a(f"s_load_dwordx2 s[{S_OUT}:{S_OUT+1}], s[0:1], 48")
    a("s_load_dwordx2 s[12:13], s[0:1], 56")
    a("s_load_dwordx2 s[10:11], s[0:1], 64")
    a(f"v_and_b32 v{V_LANE}, 63, v0")
    a("v_lshrrev_b32 v2, 6, v0")
    a("s_and_b32 s62, s2, 7")
    a(f"v_readfirstlane_b32 s{S_WAVE}, v2")
    a("s_lshr_b32 s63, s2, 3")
    a("s_and_b32 s64, s62, 1")
    a("s_lshl_b32 s64, s64, 3")
    a("s_and_b32 s65, s63, 7")
    a(f"s_add_u32 s{S_T}, s64, s65")
    a("s_lshr_b32 s64, s62, 1")
    a("s_lshr_b32 s65, s63, 3")
    a("s_lshl_b32 s64, s64, 1")
    a("s_and_b32 s66, s65, 1")
    a(f"s_add_u32 s{S_IDX}, s64, s66")
    a("s_lshr_b32 s66, s65, 1")
    a("s_lshl_b32 s66, s66, 3")
    a(f"s_add_u32 s{S_CG}, s{S_IDX}, s66")
    for r in [3] + V_W:
        a(f"v_mov_b32 v{r}, 0")
    a("v_mov_b32 v4, 0")
    a("v_mov_b32 v5, 0")
    a(f"v_mov_b32 v6, {LW}")
    a("ds_write_b64 v6, v[4:5]")
    a("ds_write_b64 v6, v[4:5] offset:8")
    a("s_waitcnt lgkmcnt(0)")
    srd(a, 20, 4, S * D * 2)
    srd(a, 24, 4, S * D * 2)
    srd(a, 28, 10, WS_USED)
    srd(a, 32, 12, 256)
    a("s_cmp_ge_u32 s65, 2")
    a("s_cbranch_scc1 K1_HQ")
    gen_kv(a)
    gen_hq(a)
    gen_phase2(a, S_WAVE, S_T, S_CG, S_OUT)
    a.label("KM_END")
    a("s_endpgm")
    return a


if __name__ == "__main__":
    print(gen_km().text())
```

```python
import asmlib
from asmlib import *
from layout import *
from km2 import srd, SPIN_MAX, gen_phase2, LW, KM_LDS

KM = "parallel_sum__linear_attn_block__dense_activation_relu__prompt_kernel"
SLOT = 16384
XB = 65536
PUBS = 110592
PUBC = PUBS + 1024
ST, CS = PUBS, PUBC
VB = 5120 + 16
HB = 10496
JB = 98304
KVR = 32768
NZERO = ZERO_BYTES // 4096

S_WAVE, S_T, S_IDX, S_A, S_B = 44, 45, 46, 47, 48
S_XO, S_WO, S_WSTEP, S_LX, S_WEND = 50, 51, 52, 55, 56
S_CG, S_STEP = 18, 19
S_HM, S_XM, S_MYN = 49, 47, 48
S_JST, S_JLN, S_JBK = 98, 99, 100
S_OUT = 96
S_LINE, S_ISQ, S_DUMMY, S_JOB = 57, 58, 59, 60
S_T64 = 61

V_LANE = 1
V_X = [2, 3, 4, 5]
V_W = [248, 249, 250, 251]
S_LW = [53, 54, 36, 37]
V_T0, V_T1 = 10, 11
V_T2, V_T3 = 8, 9
ONES = 12
V_ADR = 16
ACC = 32
GRAM = 240
RSUM = 244
V_PADR, V_POLL, V_INIT, V_ZERO = 28, 29, 30, 31
V_ALL = 220
V_PART = 200
CSX = 200

LOG2E = 0x3fb8aa3b
EPS6 = 0x358637bd
EPS5 = 0x3727c5ac

HQ_TABLE = [["H8", "H9", "Q0", "Q1"], ["H10", "H11", "Q2", "Q3"], ["H12", "H13", "Q4", "H14"],
            ["H15", "H16", "Q5", "H17"], ["H18", "H19", "Q6", "H20"], ["H21", "H22", "Q7", "D22"],
            ["H23", "H24", "Q8", "D24"], ["H25", "H26", "Q9", "D26"]]


def stfl():
    E = asmlib.EXP
    return "" if "stplain" in E else " sc1"


def hq_word(row):
    w = 0
    for i, c in enumerate(row):
        b = int(c[1:]) | (0x80 if c[0] == "Q" else 0) | (0x40 if c[0] == "D" else 0)
        w |= b << (8 * i)
    return w


def mfma(a, d, x, y, c=None):
    a(f"v_mfma_f32_16x16x32_bf16 {vr(d, 4)}, {vr(x, 4)}, {vr(y, 4)}, {c if c is not None else vr(d, 4)}")


def interleave(a, mf, fillers, per=2):
    fillers = list(fillers)
    E = asmlib.EXP
    if "nomfma" in E:
        mf = ["s_nop 0"] * len(mf)
    keep = lambda f: not (("nodma" in E and any(" lds" in i for i in f)) or ("noread" in E and f[0].startswith("ds_read"))
                          or ("nostats" in E and f[0].startswith("v_")))
    fillers = [f for f in fillers if keep(f)]
    n = len(mf)
    for i, m in enumerate(mf):
        a(m)
        left = n - i
        k = max(per if fillers else 0, -(-len(fillers) // left) if left else 0)
        for _ in range(min(k, len(fillers))):
            for ins in fillers.pop(0):
                a(ins)
    for f in fillers:
        for ins in f:
            a(ins)


def w_issue(slot, wrap):
    f = [[f"s_add_u32 m0, s{S_LW[q]}, {slot*SLOT}",
          f"buffer_load_dwordx4 v{V_W[q]}, s[24:27], s{S_WO} offen lds"] for q in range(4)]
    f[-1].append(f"s_add_u32 s{S_WO}, s{S_WO}, s{S_WSTEP}")
    if wrap:
        f.append([f"s_cmp_eq_u32 s{S_WO}, s{S_WEND}", f"s_cselect_b32 s{S_WO}, 0, s{S_WO}"])
    return f


def x_issue(xs):
    f = [[f"s_add_u32 m0, s{S_LX}, {xs*SLOT + 1024*q}",
          f"buffer_load_dwordx4 v{V_X[q]}, s[20:23], s{S_XO} offen lds"] for q in range(4)]
    f[-1].append(f"s_add_u32 s{S_XO}, s{S_XO}, 128")
    f.append([f"s_cmp_eq_u32 s{S_XO}, 1280", f"s_cselect_b32 s{S_XO}, 0, s{S_XO}"])
    return f


def dma_fillers(p):
    f = x_issue((p >> 1) & 1) if p % 2 == 0 else []
    return f + w_issue(p, p & 1)


def stats_mfma(xreg, first):
    x = vr(xreg, 4)
    return [f"v_mfma_f32_16x16x32_bf16 {vr(GRAM,4)}, {x}, {x}, {'0' if first else vr(GRAM,4)}",
            f"v_mfma_f32_16x16x32_bf16 {vr(RSUM,4)}, {vr(ONES,4)}, {x}, {'0' if first else vr(RSUM,4)}"]


def start_class(a):
    a(f"s_add_u32 s75, s{S_T}, s{S_CG}")
    for _ in range(3):
        a("s_cmp_ge_u32 s75, 10")
        a("s_cselect_b32 s74, 10, 0")
        a("s_sub_u32 s75, s75, s74")


def prologue_dma(a):
    a(f"s_lshl_b32 s{S_XO}, s75, 7")
    a(f"s_mul_i32 s{S_WO}, s75, s{S_WSTEP}")
    a(f"s_lshl_b32 s{S_WO}, s{S_WO}, 1")
    a(f"s_mul_i32 s{S_WEND}, s{S_WSTEP}, 20")
    for f in w_issue(0, 0) + x_issue(0) + w_issue(1, 1):
        for ins in f:
            a(ins)


def prologue_dma2(a, L):
    a(f"s_cmp_ge_u32 s{S_WAVE}, 4")
    a(f"s_cbranch_scc1 {L}_NOP2")
    for f in x_issue(1) + w_issue(2, 0) + w_issue(3, 1):
        for ins in f:
            a(ins)
    a.label(f"{L}_NOP2")


def hook_masks(a):
    a(f"s_mov_b32 s{S_XM}, 6")
    a(f"s_mov_b32 s{S_HM}, 4")
    a(f"s_cmp_ge_u32 s{S_WAVE}, 4")
    a(f"s_cselect_b32 s63, {1 << 12}, 0")
    a(f"s_or_b32 s{S_HM}, s{S_HM}, s63")
    a(f"s_cmp_eq_u32 s{S_WAVE}, 7")
    a(f"s_cselect_b32 s63, {(1 << 3) | (1 << 6) | (1 << 10) | (1 << 11)}, 0")
    a(f"s_or_b32 s{S_HM}, s{S_HM}, s63")
    a(f"s_sub_u32 s64, s{S_WAVE}, 4")
    a(f"s_mul_i32 s{S_JOB}, s2, 3")
    a(f"s_add_u32 s{S_JOB}, s{S_JOB}, s64")
    a("s_cmp_lt_u32 s64, 3")
    a(f"s_cselect_b32 s{S_JOB}, s{S_JOB}, 1000")
    a(f"s_cmp_lt_u32 s{S_JOB}, 740")
    a(f"s_cselect_b32 s63, {(1 << 2) | (1 << 6) | (1 << 10)}, 0")
    a(f"s_or_b32 s{S_HM}, s{S_HM}, s63")
    a(f"s_mov_b32 s{S_STEP}, 0")


def stage_stats(a, tok_s):
    a("s_mov_b32 s74, 0xaaaaaaaa")
    a("s_mov_b32 s75, 0xaaaaaaaa")
    a("s_mov_b32 s76, 0xcccccccc")
    a("s_mov_b32 s77, 0xcccccccc")
    a(f"v_cndmask_b32 v{V_T2}, v{GRAM}, v{GRAM+1}, s[74:75]")
    a(f"v_cndmask_b32 v{V_T3}, v{GRAM+2}, v{GRAM+3}, s[74:75]")
    a(f"v_and_b32 v{V_T0}, 15, v{V_LANE}")
    a(f"v_cndmask_b32 v{V_T3}, v{V_T2}, v{V_T3}, s[76:77]")
    a(f"v_mov_b32 v{V_T2}, v{RSUM}")
    a(f"s_lshl_b32 s62, s{tok_s}, 3")
    a(f"s_add_u32 s62, s62, {PUBS}")
    a(f"v_lshl_add_u32 v{V_T0}, v{V_T0}, 3, s62")
    set_exec(a, 0xF0000F0000F0000F)
    a(f"ds_write_b64 v{V_T0}, {vr(V_T2,2)}")
    a("s_mov_b64 exec, -1")


def emit_step(a, role, p, mode, loader):
    last = mode == "last"
    L = role.L + ("L" if loader else "S")
    if "nobar" not in asmlib.EXP:
        a("s_barrier")
    if not last:
        a(f"s_cbranch_vccnz {L}_HK{p}")
        a.label(f"{L}_HK{p}_B")
    if last and p == 0 and not loader:
        finish_stats(a, L)
    if last and p == 2 and not loader:
        check_all(a, L)
    if asmlib.DIAG and asmlib.STAMPSET == 4 and not last:
        for st_, slot_ in ((0, 1), (2, 2), (4, 3), (6, 4), (8, 5), (12, 6)):
            if st_ % 4 == p:
                a(f"s_cmp_eq_u32 s{S_STEP}, {st_}")
                a(f"s_cbranch_scc0 {L}_ST{st_}")
                stamp(a, slot_, 4)
                a.label(f"{L}_ST{st_}")
    if last and p == 0:
        stamp(a, 7, 4)
    f = []
    if not last and loader:
        f += dma_fillers(p)
    if not (last and p == 3):
        f += role.reads_w((p + 1) % 4, (p + 1) & 1)
    if p & 1 and not (last and p == 3):
        nx = ((p + 1) >> 1) & 1
        f += role.reads_x(nx, nx)
    if not last:
        f.append([f"s_add_u32 s{S_STEP}, s{S_STEP}, 1", f"s_lshr_b32 s62, s{S_HM}, s{S_STEP}"])
        f.append(["s_and_b32 vcc_lo, s62, 1", f"s_bitcmp1_b32 s{S_XM}, s{S_STEP}"])
    interleave(a, role.mfmas(p), f, per=1)
    if not last:
        a(f"s_cbranch_scc1 {L}_XT{p}")
        a.label(f"{L}_XT{p}_B")
        a("s_waitcnt vmcnt(12) lgkmcnt(0)" if loader else "s_waitcnt lgkmcnt(0)")
    elif loader:
        a(["s_waitcnt vmcnt(4) lgkmcnt(0)", "s_waitcnt vmcnt(0) lgkmcnt(0)", "s_waitcnt lgkmcnt(0)", "s_nop 0"][p])
    else:
        a(["s_waitcnt lgkmcnt(0)", "s_waitcnt lgkmcnt(0)", "s_waitcnt lgkmcnt(0)", "s_nop 0"][p])


def finish_stats(a, L):
    P = V_PART
    a("s_waitcnt vmcnt(0)")
    for i in range(5):
        a(f"v_add_f32 v{P + 2*i}, v{P + 2*i}, v{P + 10 + 2*i}")
        a(f"v_add_f32 v{P + 2*i + 1}, v{P + 2*i + 1}, v{P + 11 + 2*i}")
    for (d, x) in ((0, 2), (4, 6), (0, 8), (0, 4)):
        a(f"v_add_f32 v{P + d}, v{P + d}, v{P + x}")
        a(f"v_add_f32 v{P + d + 1}, v{P + d + 1}, v{P + x + 1}")
    a(f"s_and_b32 s62, s{S_WAVE}, 1")
    a("s_lshl_b32 s62, s62, 6")
    a(f"v_add_u32 v{V_T1}, s62, v{V_LANE}")
    a(f"s_cmp_ge_u32 s{S_WAVE}, 6")
    a(f"s_cbranch_scc1 {L}_FCS")
    A, B = V_T2, V_T3
    a(f"v_mul_f32 v{P}, 0x3acccccd, v{P}")
    a(f"v_mul_f32 v{B}, 0x3acccccd, v{P+1}")
    a(f"v_lshlrev_b32 v{V_T1}, 2, v{V_T1}")
    a(f"v_fma_f32 v{B}, -v{P}, v{P}, v{B}")
    a(f"v_add_u32 v{V_T1}, {ST}, v{V_T1}")
    a(f"v_max_f32 v{B}, 0, v{B}")
    a(f"v_cvt_pk_bf16_f32 v{V_T0}, v{P}, v{B}")
    a(f"v_lshlrev_b32 v{A}, 16, v{V_T0}")
    a(f"v_and_b32 v{B}, 0xffff0000, v{V_T0}")
    a(f"v_add_f32 v{B}, 0x{EPS5:x}, v{B}")
    a(f"v_sub_f32 v{A}, 0, v{A}")
    a(f"v_cvt_pk_bf16_f32 v{V_T0}, v{B}, v{B}")
    a(f"v_lshlrev_b32 v{B}, 16, v{V_T0}")
    a(f"v_sqrt_f32 v{B}, v{B}")
    a(f"v_cvt_pk_bf16_f32 v{V_T0}, v{B}, v{B}")
    a(f"v_lshlrev_b32 v{B}, 16, v{V_T0}")
    a(f"v_rcp_f32 v{B}, v{B}")
    a(f"ds_write_b32 v{V_T1}, v{A}")
    a(f"ds_write_b32 v{V_T1}, v{B} offset:512")
    a(f"s_branch {L}_FDONE")
    a.label(f"{L}_FCS")
    a(f"v_lshlrev_b32 v{V_T1}, 3, v{V_T1}")
    a(f"v_add_u32 v{V_T1}, {CS}, v{V_T1}")
    a(f"ds_write_b64 v{V_T1}, {vr(P, 2)}")
    a.label(f"{L}_FDONE")
    a(f"s_cmp_eq_u32 s{S_WAVE}, 7")
    a(f"s_cbranch_scc0 {L}_FD2")
    a(f"v_and_b32 v{V_T0}, 15, v{V_LANE}")
    a(f"v_lshlrev_b32 v{V_T0}, 7, v{V_T0}")
    a(f"s_mov_b32 s62, {CNT_W}")
    a(f"buffer_load_dword v{V_ALL}, v{V_T0}, s[28:31], s62 offen sc1")
    a.label(f"{L}_FD2")


def check_all(a, L):
    a(f"s_cmp_eq_u32 s{S_WAVE}, 7")
    a(f"s_cbranch_scc0 {L}_GDONE")
    a("s_waitcnt vmcnt(0)")
    a(f"s_mov_b32 s63, {SPIN_MAX}")
    a.label(f"{L}_GALL_W")
    a(f"v_cmp_eq_u32 vcc, 16, v{V_ALL}")
    a("s_sub_u32 s63, s63, 1")
    a("s_cmp_eq_u32 s63, 0")
    a(f"s_cbranch_scc1 {L}_GDONE")
    a("s_cmp_eq_u64 vcc, -1")
    a(f"s_cbranch_scc1 {L}_GDONE")
    a("s_sleep 4")
    a(f"v_and_b32 v{V_T0}, 15, v{V_LANE}")
    a(f"v_lshlrev_b32 v{V_T0}, 7, v{V_T0}")
    a(f"s_mov_b32 s62, {CNT_W}")
    a(f"buffer_load_dword v{V_ALL}, v{V_T0}, s[28:31], s62 offen sc1")
    a("s_waitcnt vmcnt(0)")
    a(f"s_branch {L}_GALL_W")
    a.label(f"{L}_GDONE")


def emit_main(a, role):
    hook_masks(a)
    a("s_mov_b64 vcc, 0")
    a(f"s_cmp_ge_u32 s{S_WAVE}, 4")
    a(f"s_cbranch_scc1 {role.L}S_LOOP")
    for loader in (True, False):
        L = role.L + ("L" if loader else "S")
        a.label(f"{L}_LOOP")
        for p in range(4):
            emit_step(a, role, p, "mid", loader)
        a(f"s_cmp_lt_u32 s{S_STEP}, 16")
        a(f"s_cbranch_scc1 {L}_LOOP")
        stamp(a, 2, 3)
        for p in range(4):
            emit_step(a, role, p, "last", loader)
        if loader:
            a(f"s_branch {role.L}_EPI")


def job_issue(a):
    a(f"s_mul_hi_u32 s{S_JST}, s{S_JOB}, 0x1999999a")
    a(f"s_mul_i32 s63, s{S_JST}, 10")
    a(f"s_sub_u32 s{S_JLN}, s{S_JOB}, s63")
    a(f"s_cmp_lt_u32 s{S_JST}, 54")
    a("s_cselect_b32 s36, s16, s14")
    a("s_cselect_b32 s37, s17, s15")
    a(f"s_mov_b32 s38, {DFF*D*2}")
    a(f"s_cselect_b32 s38, s38, {D*D*2}")
    a("s_mov_b32 s39, 0x20000")
    a("s_cselect_b32 s64, 0, 54")
    a(f"s_sub_u32 s{S_JBK}, s{S_JST}, s64")
    a(f"s_mul_i32 s65, s{S_JBK}, 40960")
    a(f"s_lshl_b32 s66, s{S_JLN}, 7")
    a("s_add_u32 s65, s65, s66")
    a(f"v_lshrrev_b32 v{V_T0}, 3, v{V_LANE}")
    a(f"v_mul_u32_u24 v{V_T0}, 1280, v{V_T0}")
    a(f"v_and_b32 v{V_T1}, 7, v{V_LANE}")
    a(f"v_lshl_add_u32 v{V_T0}, v{V_T1}, 4, v{V_T0}")
    a(f"s_lshl_b32 s66, s{S_WAVE}, 12")
    for q in range(4):
        a(f"s_add_u32 m0, s66, {JB - 16384 + 1024*q}")
        a(f"buffer_load_dwordx4 v{V_T0}, s[36:39], s65 offen lds")
        if q < 3:
            a("s_add_u32 s65, s65, 10240")


def job_finish(a, L):
    a("s_waitcnt vmcnt(0)")
    R = [228, 232, 236, 248]
    A, B = 252, 253
    a(f"v_lshrrev_b32 v{A}, 4, v{V_LANE}")
    a(f"v_bfe_u32 v{B}, v{V_LANE}, 2, 2")
    a(f"v_lshl_add_u32 v{A}, v{A}, 2, v{B}")
    a(f"v_lshlrev_b32 v{A}, 7, v{A}")
    a(f"v_and_b32 v{B}, 3, v{V_LANE}")
    a(f"v_lshl_add_u32 v{A}, v{B}, 3, v{A}")
    a(f"s_lshl_b32 s66, s{S_WAVE}, 12")
    a(f"s_add_u32 s66, s66, {JB - 16384}")
    a(f"v_add_u32 v{A}, s66, v{A}")
    for jl in range(4):
        for b in range(2):
            a(f"ds_read_b64_tr_b16 {vr(R[jl] + 2*b, 2)}, v{A} offset:{2048*b + 32*jl}")
    a(f"s_cmp_lt_u32 s{S_JST}, 54")
    a(f"s_cbranch_scc0 {L}_JO")
    a(f"s_mov_b32 s66, s{S_JST}")
    for th in (14, 28, 41):
        a(f"s_cmp_ge_u32 s{S_JST}, {th}")
        a("s_cselect_b32 s67, 5, 0")
        a("s_add_u32 s66, s66, s67")
    a(f"s_branch {L}_JS")
    a.label(f"{L}_JO")
    a(f"s_add_u32 s66, s{S_JBK}, 14")
    for th, inc in ((5, 14), (10, 13), (15, 13)):
        a(f"s_cmp_ge_u32 s{S_JBK}, {th}")
        a(f"s_cselect_b32 s67, {inc}, 0")
        a("s_add_u32 s66, s66, s67")
    a.label(f"{L}_JS")
    a("s_mul_i32 s66, s66, 40")
    a(f"s_lshl_b32 s67, s{S_JLN}, 2")
    a("s_add_u32 s66, s66, s67")
    a("s_lshl_b32 s66, s66, 10")
    a(f"s_add_u32 s66, s66, {WF}")
    a(f"v_lshlrev_b32 v{B}, 4, v{V_LANE}")
    a("s_waitcnt lgkmcnt(0)")
    for jl in range(4):
        a(f"buffer_store_dwordx4 {vr(R[jl], 4)}, v{B}, s[28:31], s66 offen offset:{1024*jl} sc1")


def emit_hooks(a, role):
    for loader in (True, False):
        emit_hooks_of(a, role, loader)


def emit_hooks_of(a, role, loader):
    L = role.L + ("L" if loader else "S")
    for p in range(4):
        a.label(f"{L}_XT{p}")
        if p < 2:
            for m in role.extras(p):
                a(m)
        a(f"s_branch {L}_XT{p}_B")

    def at_step(X, n, tag, body, wave7=False):
        a(f"s_cmp_eq_u32 s{S_STEP}, {n}")
        a(f"s_cbranch_scc0 {X}_{tag}")
        body()
        a.label(f"{X}_{tag}")

    def store_partials():
        a(f"v_lshlrev_b32 v{V_T0}, 4, v{V_LANE}")
        a(f"v_add_u32 v{V_T1}, {PUBS}, v{V_T0}")
        a(f"ds_read_b128 v[228:231], v{V_T1}")
        a(f"ds_read_b128 v[232:235], v{V_T1} offset:1024")
        a(f"s_lshl_b32 s62, s{S_T}, 4")
        a(f"s_add_u32 s62, s62, s{S_CG}")
        a("s_lshl_b32 s62, s62, 10")
        a(f"s_add_u32 s62, s62, {SP}")
        a(f"s_lshl_b32 s63, s{S_CG}, 4")
        a(f"s_add_u32 s63, s63, s{S_T}")
        a("s_lshl_b32 s63, s63, 10")
        a(f"s_add_u32 s63, s63, {CP}")
        a("s_waitcnt lgkmcnt(0)")
        a(f"buffer_store_dwordx4 v[228:231], v{V_T0}, s[28:31], s62 offen sc1")
        a(f"buffer_store_dwordx4 v[232:235], v{V_T0}, s[28:31], s63 offen sc1")

    def flag(X):
        a("s_waitcnt vmcnt(0)")
        a(f"s_mov_b32 s63, {SPIN_MAX}")
        a.label(f"{X}_W")
        a(f"v_readfirstlane_b32 s62, v{V_INIT}")
        a("s_sub_u32 s63, s63, 1")
        a("s_cmp_eq_u32 s63, 0")
        a(f"s_cbranch_scc1 {X}_G")
        a(f"s_cmp_ge_u32 s62, {NZERO}")
        a(f"s_cbranch_scc1 {X}_G")
        a("s_sleep 4")
        a(f"buffer_load_dword v{V_INIT}, v{V_ZERO}, s[32:35], 0 offen sc1")
        a("s_waitcnt vmcnt(0)")
        a(f"s_branch {X}_W")
        a.label(f"{X}_G")
        stamp(a, 3, 3)
        a(f"v_mov_b32 v{V_T0}, 1")
        a("s_mov_b64 exec, 3")
        a(f"buffer_atomic_add v{V_T0}, v{V_PADR}, s[28:31], 0 offen")
        a("s_mov_b64 exec, -1")

    def check(X):
        stamp(a, 4, 3)
        a("s_waitcnt vmcnt(0)")
        a(f"s_mov_b32 s63, {SPIN_MAX}")
        a.label(f"{X}_CW")
        a(f"v_cmp_eq_u32 vcc, 16, v{V_POLL}")
        a("s_sub_u32 s63, s63, 1")
        a("s_cmp_eq_u32 s63, 0")
        a(f"s_cbranch_scc1 {X}_CG")
        a("s_cmp_eq_u64 vcc, -1")
        a(f"s_cbranch_scc1 {X}_CG")
        a("s_sleep 4")
        a(f"buffer_load_dword v{V_POLL}, v{V_PADR}, s[28:31], 0 offen sc1")
        a("s_waitcnt vmcnt(0)")
        a(f"s_branch {X}_CW")
        a.label(f"{X}_CG")
        stamp(a, 5, 3)

    def load_partials():
        a(f"s_and_b32 s62, s{S_WAVE}, 1")
        a("s_lshl_b32 s62, s62, 6")
        a(f"v_add_u32 v{V_T1}, s62, v{V_LANE}")
        a(f"v_lshlrev_b32 v{V_T1}, 3, v{V_T1}")
        a(f"s_lshl_b32 s62, s{S_T}, 14")
        a(f"s_add_u32 s62, s62, {SP}")
        a(f"s_lshl_b32 s63, s{S_CG}, 14")
        a(f"s_add_u32 s63, s63, {CP}")
        a(f"s_cmp_lt_u32 s{S_WAVE}, 6")
        a("s_cselect_b32 s62, s62, s63")
        for n in range(10):
            a(f"buffer_load_dwordx2 {vr(V_PART + 2*n, 2)}, v{V_T1}, s[28:31], s62 offen offset:{1024*(n & 3)} sc1")
            if n & 3 == 3:
                a("s_add_u32 s62, s62, 4096")

    def flag_w():
        a(f"s_lshl_b32 s62, s{S_T}, 7")
        a(f"s_add_u32 s62, s62, {CNT_W}")
        a(f"v_mov_b32 v{V_T0}, 1")
        a("s_mov_b64 exec, 1")
        a(f"buffer_atomic_add v{V_T0}, v{V_ZERO}, s[28:31], s62 offen")
        a("s_mov_b64 exec, -1")

    for p in range(4):
        X = f"{L}_HK{p}"
        a.label(X)
        if p == 2:
            at_step(X, 2, "a", lambda: role.stage(a))
        if not loader:
            if p == 0:
                at_step(X, 12, "b", load_partials)
            if p == 2:
                w7 = f"{X}_w7"
                a(f"s_cmp_eq_u32 s{S_WAVE}, 7")
                a(f"s_cbranch_scc0 {w7}")
                at_step(X, 6, "f", lambda: flag(X))
                at_step(X, 10, "g", lambda: a(f"buffer_load_dword v{V_POLL}, v{V_PADR}, s[28:31], 0 offen sc1"))
                a.label(w7)
                a(f"s_cmp_lt_u32 s{S_JOB}, 740")
                a(f"s_cbranch_scc0 {X}_B")
                at_step(X, 2, "c", lambda: job_issue(a))
                at_step(X, 6, "d", lambda: job_finish(a, X))
                at_step(X, 10, "e", lambda: a("s_waitcnt vmcnt(0)"))
            if p == 3:
                def store_and_init():
                    store_partials()
                    a(f"buffer_load_dword v{V_INIT}, v{V_ZERO}, s[32:35], 0 offen sc1")
                at_step(X, 3, "b", store_and_init)

                def flagw_and_check():
                    check(X)
                    flag_w()
                at_step(X, 11, "c", flagw_and_check)
        a(f"s_branch {X}_B")


def poll_address(a):
    a(f"v_mov_b32 v{V_ZERO}, 0")
    a(f"s_lshl_b32 s74, s{S_T}, 7")
    a(f"s_add_u32 s74, s74, {CNT_S}")
    a(f"s_lshl_b32 s75, s{S_CG}, 7")
    a(f"s_add_u32 s75, s75, {CNT_C}")
    a(f"v_mov_b32 v{V_T1}, s74")
    a(f"v_mov_b32 v{V_T2}, s75")
    a(f"v_and_b32 v{V_T3}, 1, v{V_LANE}")
    a(f"v_cmp_eq_u32 vcc, 1, v{V_T3}")
    a(f"v_cndmask_b32 v{V_PADR}, v{V_T1}, v{V_T2}, vcc")


def line_dma_voffsets(a, stride_s, coloff_s):
    a(f"v_lshrrev_b32 v20, 3, v{V_LANE}")
    a(f"v_and_b32 v21, 7, v{V_LANE}")
    a(f"v_bfe_u32 v22, v{V_LANE}, 4, 1")
    for q in range(4):
        a(f"v_or_b32 v23, {2*(q & 1)}, v22")
        a("v_lshlrev_b32 v23, 1, v23")
        a("v_xor_b32 v23, v23, v21")
        a(f"v_add_u32 v24, {8*q}, v20")
        a(f"v_mul_lo_u32 v24, v24, s{stride_s}")
        a("v_lshl_add_u32 v24, v23, 4, v24")
        a(f"v_add_u32 v{V_W[q]}, s{coloff_s}, v24")


def x_dma_voffsets(a):
    a(f"v_lshrrev_b32 v20, 3, v{V_LANE}")
    a(f"v_and_b32 v21, 7, v{V_LANE}")
    a(f"v_lshrrev_b32 v22, 4, v{V_LANE}")
    a(f"s_lshl_b32 s{S_A}, s{S_T}, 7")
    a(f"s_lshl_b32 s{S_B}, s{S_WAVE}, 5")
    a(f"s_add_u32 s{S_A}, s{S_A}, s{S_B}")
    for q in range(4):
        a(f"v_add_u32 v23, {4*(q & 1)}, v22")
        a("v_xor_b32 v23, v23, v21")
        a(f"v_add_u32 v24, s{S_A}, v20")
        if q:
            a(f"v_add_u32 v24, {8*q}, v24")
        a("v_mul_u32_u24 v24, 1280, v24")
        a(f"v_lshl_add_u32 v{V_X[q]}, v23, 4, v24")
    a(f"s_lshl_b32 s{S_LX}, s{S_WAVE}, 12")
    a(f"s_add_u32 s{S_LX}, s{S_LX}, {XB}")


def hq_line_code(a, dst, lreg):
    a(f"s_mov_b32 s{dst}, 0x{hq_word(HQ_TABLE[0]):x}")
    for hq in range(1, 8):
        a(f"s_cmp_eq_u32 s{S_IDX}, {hq}")
        a(f"s_cselect_b32 s{dst}, 0x{hq_word(HQ_TABLE[hq]):x}, s{dst}")
    a(f"s_lshl_b32 s65, s{lreg}, 3")
    a(f"s_lshr_b32 s{dst}, s{dst}, s65")


def line_read_addr(a, dst, u_s, u_add, base_s, base_add):
    a(f"v_lshrrev_b32 v56, 4, v{V_LANE}")
    a(f"v_bfe_u32 v57, v{V_LANE}, 2, 2")
    a(f"v_bfe_u32 v58, v{V_LANE}, 1, 1")
    a("v_lshrrev_b32 v59, 1, v57")
    a("v_and_b32 v60, 1, v56")
    a("v_lshl_or_b32 v59, v60, 1, v59")
    a("v_lshlrev_b32 v59, 1, v59")
    if u_s is None:
        a(f"v_or_b32 v60, {2*u_add}, v58")
    else:
        a(f"s_xor_b32 s{S_B}, s{u_s}, {u_add}")
        a(f"s_lshl_b32 s{S_B}, s{S_B}, 1")
        a(f"v_or_b32 v60, s{S_B}, v58")
    a("v_xor_b32 v60, v60, v59")
    a("v_lshl_add_u32 v61, v56, 3, v57")
    a("v_lshlrev_b32 v61, 7, v61")
    a("v_lshl_add_u32 v61, v60, 4, v61")
    a(f"v_and_b32 v60, 1, v{V_LANE}")
    a("v_lshl_add_u32 v61, v60, 3, v61")
    a(f"v_add_u32 v61, s{base_s}, v61")
    if base_add:
        a(f"v_add_u32 v{dst}, {base_add}, v61")
    else:
        a(f"v_mov_b32 v{dst}, v61")


def set_exec(a, m):
    a(f"s_mov_b32 exec_lo, 0x{m & 0xffffffff:x}")
    a(f"s_mov_b32 exec_hi, 0x{m >> 32:x}")


def signal(a, tag, lds_off, expected, action):
    a("s_waitcnt vmcnt(0)")
    a(f"v_mov_b32 v{V_T0}, {LW}")
    a(f"v_mov_b32 v{V_T1}, 1")
    a("s_mov_b64 exec, 1")
    a(f"ds_add_rtn_u32 v{V_T2}, v{V_T0}, v{V_T1} offset:{lds_off}")
    a("s_mov_b64 exec, -1")
    a("s_waitcnt lgkmcnt(0)")
    a(f"v_readfirstlane_b32 s62, v{V_T2}")
    a("s_add_u32 s62, s62, 1")
    a(f"s_cmp_eq_u32 s62, {expected}")
    a(f"s_cbranch_scc0 {tag}")
    action()
    a.label(tag)


def add_counter(a, base, index_s):
    a(f"s_lshl_b32 s62, s{index_s}, 7")
    a(f"s_add_u32 s62, s62, {base}")
    a("s_mov_b64 exec, 1")
    a(f"buffer_atomic_add v{V_T1}, v{V_ZERO}, s[28:31], s62 offen")
    a("s_mov_b64 exec, -1")


def sigma_h_scalar(a, dst, src):
    a(f"s_mov_b32 s{dst}, s{src}")
    for th in (14, 28, 41):
        a(f"s_cmp_ge_u32 s{src}, {th}")
        a("s_cselect_b32 s67, 5, 0")
        a(f"s_add_u32 s{dst}, s{dst}, s67")


def relu_batch(a, items):
    el = [e for (dst, pair) in items for e in pair]
    for (ac, cs, nm, rsh) in el:
        a(f"v_fma_f32 v{ac}, v{cs}, v{nm}, v{ac}")
    for (ac, cs, nm, rsh) in el:
        a(f"v_add_f32_e64 v{ac}, v{ac}, |v{ac}|")
    for (ac, cs, nm, rsh) in el:
        a(f"v_mul_f32 v{ac}, v{ac}, v{rsh}")
    for (dst, pair) in items:
        a(f"v_cvt_pk_bf16_f32 v{dst}, v{pair[0][0]}, v{pair[1][0]}")


def phi_batch(a, items, TP, keep=None):
    el = [e for (dst, pair) in items for e in pair]
    n = len(el)
    for (ac, cs, nm, rsh, rl, rs) in el:
        a(f"v_fma_f32 v{ac}, v{cs}, v{nm}, v{ac}")
    for i, (ac, cs, nm, rsh, rl, rs) in enumerate(el):
        a(f"v_mul_f32 v{TP+i}, v{ac}, v{rl}")
    if keep:
        for i, (ac, cs, nm, rsh, rl, rs) in enumerate(el):
            a(f"v_mul_f32 v{TP+n+i}, v{ac}, v{rs}")
    for i, (ac, cs, nm, rsh, rl, rs) in enumerate(el):
        a(f"v_exp_f32_e64 v{TP+i}, v{TP+i} clamp")
        a(f"v_add_f32_e64 v{ac}, v{ac}, |v{ac}|")
    for i, (ac, cs, nm, rsh, rl, rs) in enumerate(el):
        a(f"v_add_f32 v{TP+i}, s76, v{TP+i}")
    for i, (ac, cs, nm, rsh, rl, rs) in enumerate(el):
        a(f"v_fma_f32 v{ac}, v{ac}, v{rsh}, v{TP+i}")
    if keep:
        for i, (ac, cs, nm, rsh, rl, rs) in enumerate(el):
            a(f"v_cndmask_b32 v{ac}, v{TP+n+i}, v{ac}, {keep}")
    for (dst, pair) in items:
        a(f"v_cvt_pk_bf16_f32 v{dst}, v{pair[0][0]}, v{pair[1][0]}")


HQ_ACC = ACC
HQ_CS = ACC + 64
HQ_W = ACC + 72
HQ_X = HQ_W + 32
V_AW, V_AX = V_ADR, V_ADR + 4


def hq_acc(u, tt):
    return HQ_ACC + (u * 4 + tt) * 4


def hq_w(st, u):
    return HQ_W + 16 * st + 4 * u


def hq_x(st, kh, tt):
    return HQ_X + 32 * st + 16 * kh + 4 * tt


def hq_reads_w(slot, st):
    return [[f"ds_read_b64_tr_b16 {vr(hq_w(st, u) + 2*s, 2)}, v{V_AW + u} offset:{slot*SLOT + 512*s}"]
            for u in range(4) for s in range(2)]


def hq_reads_x(xs, st):
    return [[f"ds_read_b128 {vr(hq_x(st, kh, tt), 4)}, v{V_AX + 4*kh + tt} offset:{xs*SLOT}"]
            for kh in range(2) for tt in range(4)]


class HQ:
    L = "K1_HQ"
    reads_w = staticmethod(hq_reads_w)
    reads_x = staticmethod(hq_reads_x)

    @staticmethod
    def mfmas(p):
        ws, xs, kh = p & 1, (p >> 1) & 1, p & 1
        return [f"v_mfma_f32_16x16x32_bf16 {vr(hq_acc(u,tt),4)}, {vr(hq_w(ws,u),4)}, {vr(hq_x(xs,kh,tt),4)}, {vr(hq_acc(u,tt),4)}"
                for u in range(4) for tt in range(4)]

    @staticmethod
    def extras(p):
        ws, xs, kh = p & 1, (p >> 1) & 1, p & 1
        return [f"v_mfma_f32_16x16x32_bf16 {vr(HQ_CS+4*u,4)}, {vr(hq_w(ws,u),4)}, {vr(ONES,4)}, {vr(HQ_CS+4*u,4)}"
                for u in range(2)] + stats_mfma(hq_x(xs, kh, 0), False)

    @staticmethod
    def stage(a):
        a(f"s_and_b32 s70, s{S_WAVE}, 1")
        a(f"s_lshr_b32 s71, s{S_WAVE}, 1")
        a("s_lshl_b32 s72, s70, 6")
        a("s_lshl_b32 s73, s71, 4")
        a("s_add_u32 s73, s73, s72")
        stage_stats(a, 73)
        a("s_lshl_b32 s62, s71, 8")
        a(f"s_add_u32 s62, s62, {PUBC}")
        a(f"v_lshrrev_b32 v{V_T0}, 4, v{V_LANE}")
        a(f"v_lshlrev_b32 v{V_T0}, 4, v{V_T0}")
        a("s_lshl_b32 s74, s70, 1")
        for u in range(2):
            a(f"s_xor_b32 s75, s74, {u}")
            a("s_lshl_b32 s75, s75, 6")
            a("s_add_u32 s75, s75, s62")
            a(f"v_add_u32 v{V_T1}, s75, v{V_T0}")
            set_exec(a, 0x0001000100010001)
            a(f"ds_write_b128 v{V_T1}, {vr(HQ_CS + 4*u, 4)}")
            a("s_mov_b64 exec, -1")


def gen_hq(a):
    a.label("K1_HQ")
    a(f"s_and_b32 s62, s{S_WAVE}, 1")
    a(f"s_lshr_b32 s63, s{S_WAVE}, 1")
    start_class(a)
    a(f"s_cmp_ge_u32 s{S_WAVE}, 4")
    a("s_cbranch_scc1 K1_HQ_NODMA")
    hq_line_code(a, 64, S_WAVE)
    a("s_bitcmp1_b32 s64, 7")
    a("s_cselect_b32 s24, s6, s8")
    a("s_cselect_b32 s25, s7, s9")
    a(f"s_mov_b32 s26, {D*3*D*2}")
    a(f"s_cselect_b32 s26, s26, {D*DFF*2}")
    a("s_mov_b32 s27, 0x20000")
    a("s_mov_b32 s65, 3840")
    a("s_cselect_b32 s65, s65, 3456")
    a(f"s_lshl_b32 s{S_WSTEP}, s65, 5")
    a("s_and_b32 s66, s64, 63")
    a("s_lshl_b32 s66, s66, 7")
    line_dma_voffsets(a, 65, 66)
    a(f"s_lshl_b32 s66, s{S_WAVE}, 12")
    for q in range(4):
        a(f"s_add_u32 s{S_LW[q]}, s66, {1024*q}")
    x_dma_voffsets(a)
    prologue_dma(a)
    a.label("K1_HQ_NODMA")
    hq_line_code(a, 64, 63)
    a(f"s_and_b32 s{S_LINE}, s64, 63")
    a(f"s_bfe_u32 s{S_ISQ}, s64, 0x10007")
    a(f"s_bfe_u32 s{S_DUMMY}, s64, 0x10006")
    a(f"s_cmp_ge_u32 s{S_IDX}, 5")
    a("s_cselect_b32 s68, 1, 0")
    a(f"s_cmp_lt_u32 s{S_T}, 7")
    a("s_cselect_b32 s68, s68, 0")
    a(f"s_cmp_eq_u32 s{S_WAVE}, 6")
    a("s_cselect_b32 s68, s68, 0")
    a(f"s_sub_u32 s69, s{S_IDX}, 5")
    a("s_mul_i32 s69, s69, 7")
    a(f"s_add_u32 s69, s69, s{S_T}")
    a(f"s_cmp_lt_u32 s69, {NZERO}")
    a("s_cselect_b32 s68, s68, 0")
    a("s_cmp_eq_u32 s68, 1")
    a("s_cbranch_scc0 K1_NOZERO")
    a("s_lshl_b32 s69, s69, 12")
    a(f"s_add_u32 s69, s69, {KVA}")
    for r in range(4):
        a(f"v_mov_b32 v{32+r}, 0")
    a(f"v_lshlrev_b32 v36, 4, v{V_LANE}")
    for q in range(4):
        a(f"buffer_store_dwordx4 v[32:35], v36, s[28:31], s69 offen offset:{1024*q} sc1")
    a.label("K1_NOZERO")
    a(f"s_lshl_b32 s64, s62, 1")
    a("s_lshl_b32 s66, s63, 12")
    for u in range(4):
        line_read_addr(a, V_AW + u, 64, u, 66, 0)
    a(f"v_and_b32 v56, 15, v{V_LANE}")
    a(f"v_lshrrev_b32 v57, 4, v{V_LANE}")
    a("v_lshrrev_b32 v58, 1, v56")
    a("s_lshl_b32 s66, s62, 6")
    a("v_add_u32 v56, s66, v56")
    a("v_lshlrev_b32 v56, 7, v56")
    for kh in range(2):
        a(f"v_or_b32 v59, {4*kh}, v57")
        a("v_xor_b32 v59, v59, v58")
        a("v_lshl_add_u32 v59, v59, 4, v56")
        for tt in range(4):
            a(f"s_xor_b32 s66, s63, {tt}")
            a("s_lshl_b32 s66, s66, 11")
            a(f"s_add_u32 s66, s66, {XB}")
            a(f"v_add_u32 v{V_AX + 4*kh + tt}, s66, v59")
    init_common(a, list(range(HQ_ACC, HQ_ACC + 72)))
    stamp(a, 2, 1)
    a("s_waitcnt vmcnt(4)")
    a("s_barrier")
    stamp(a, 3, 1)
    stamp(a, 1, 3)
    for f in hq_reads_w(0, 0) + hq_reads_x(0, 0):
        a(f[0])
    prologue_dma2(a, "K1_HQ")
    a("s_waitcnt vmcnt(12) lgkmcnt(0)")
    a("s_cmp_eq_u32 s68, 1")
    a("s_cbranch_scc0 K1_NOZSIG")
    a("s_waitcnt vmcnt(0)")
    a("v_mov_b32 v10, 1")
    a("v_mov_b32 v11, 0")
    a("s_mov_b64 exec, 1")
    a("buffer_atomic_add v10, v11, s[32:35], 0 offen")
    a("s_mov_b64 exec, -1")
    a.label("K1_NOZSIG")
    emit_main(a, HQ)

    a.label("K1_HQ_EPI")
    a("s_barrier")
    stamp(a, 4, 1)
    stamp(a, 6, 3)
    stamp(a, 1, 5)
    a(f"s_and_b32 s70, s{S_WAVE}, 1")
    a(f"s_lshr_b32 s71, s{S_WAVE}, 1")
    a("s_lshl_b32 s72, s70, 6")
    a(f"v_lshrrev_b32 v16, 4, v{V_LANE}")
    a("v_lshlrev_b32 v17, 4, v16")
    a("s_lshl_b32 s73, s71, 8")
    a(f"s_add_u32 s73, s73, {CS}")
    a("s_lshl_b32 s74, s70, 1")
    for u in range(4):
        a(f"s_xor_b32 s75, s74, {u}")
        a("s_lshl_b32 s75, s75, 6")
        a("s_add_u32 s75, s75, s73")
        a(f"v_add_u32 v{18+u}, s75, v17")
    stamp(a, 5, 1)
    stamp(a, 7, 3)
    CSR, STR = HQ_W, HQ_W + 16
    for u in range(4):
        a(f"ds_read_b128 {vr(CSR + 4*u, 4)}, v{18+u}")
    a(f"v_and_b32 v16, 15, v{V_LANE}")
    a("v_add_u32 v16, s72, v16")
    a("v_lshlrev_b32 v16, 2, v16")
    for tt in range(4):
        a(f"s_xor_b32 s75, s71, {tt}")
        a("s_lshl_b32 s75, s75, 6")
        a(f"s_add_u32 s75, s75, {ST}")
        a("v_add_u32 v17, s75, v16")
        a(f"ds_read2_b32 {vr(STR + 2*tt, 2)}, v17 offset1:128")
    a(f"s_lshl_b32 s{S_T64}, s{S_T}, 1")
    a(f"s_add_u32 s{S_T64}, s{S_T64}, s70")
    a(f"v_lshlrev_b32 v16, 4, v{V_LANE}")
    a("s_waitcnt lgkmcnt(0)")
    a(f"s_cmp_eq_u32 s{S_DUMMY}, 1")
    a("s_cbranch_scc1 K1_HQ_END")
    PK = HQ_X
    RL = HQ_W + 24
    for tt in range(4):
        a(f"v_mul_f32 v{RL + 2*tt}, 0x{LOG2E:x}, v{STR + 2*tt + 1}")
        a(f"v_mul_f32 v{RL + 2*tt + 1}, 0.5, v{STR + 2*tt + 1}")
    a(f"s_cmp_eq_u32 s{S_ISQ}, 1")
    a("s_cbranch_scc1 K1_HQ_Q")
    for pr in range(2):
        a(f"s_xor_b32 s72, s70, {pr}")
        a(f"s_lshl_b32 s73, s{S_LINE}, 1")
        a("s_add_u32 s72, s72, s73")
        sigma_h_scalar(a, 73, 72)
        a(f"s_mul_i32 s74, s{S_T64}, {NSIG}")
        a("s_add_u32 s73, s73, s74")
        a("s_lshl_b32 s73, s73, 12")
        for tt in range(4):
            f = PK + 4 * (pr * 4 + tt)
            relu_batch(a, [(f + 2*uu + hh, [(hq_acc(2*pr + uu, tt) + 2*hh + z, CSR + 4*(2*pr + uu) + 2*hh + z, STR + 2*tt, RL + 2*tt + 1)
                                            for z in range(2)]) for uu in range(2) for hh in range(2)])
            a(f"s_xor_b32 s75, s71, {tt}")
            a("s_lshl_b32 s75, s75, 10")
            a("s_add_u32 s75, s75, s73")
            a(f"buffer_store_dwordx4 {vr(f, 4)}, v16, s[28:31], s75 offen{stfl()}")
    a(f"s_cmp_ge_u32 s{S_IDX}, 2")
    a("s_cselect_b32 s63, 6, 4")
    a(f"s_cmp_ge_u32 s{S_IDX}, 5")
    a("s_cselect_b32 s63, 4, s63")
    signal(a, "K1_HQ_SH", 16, "s63", lambda: add_counter(a, CNT_H, S_T))
    a("s_branch K1_HQ_FIN")
    a.label("K1_HQ_Q")
    a(f"s_mov_b32 s76, 0x{EPS6:x}")
    a(f"s_mov_b32 s77, 0x{EPS6:x}")
    TP = HQ_X + 32
    for pr in range(2):
        a(f"s_xor_b32 s72, s70, {pr}")
        a(f"s_lshl_b32 s73, s{S_LINE}, 1")
        a("s_add_u32 s72, s72, s73")
        a(f"s_mul_i32 s73, s{S_T64}, 40")
        a("s_add_u32 s73, s73, s72")
        a("s_lshl_b32 s73, s73, 11")
        a(f"s_add_u32 s73, s73, {PQ}")
        for tt in range(4):
            f = PK + 4 * (pr * 4 + tt)
            st = STR + 2 * tt
            items = [(f + 2*uu + hh, [(hq_acc(2*pr + uu, tt) + 2*hh + z, CSR + 4*(2*pr + uu) + 2*hh + z, st,
                                       RL + 2*tt + 1, RL + 2*tt, st + 1) for z in range(2)])
                     for uu in range(2) for hh in range(2)]
            phi_batch(a, items, TP)
            a(f"s_xor_b32 s75, s71, {tt}")
            a("s_lshr_b32 s74, s75, 1")
            a("s_mul_i32 s74, s74, 40960")
            a("s_and_b32 s75, s75, 1")
            a("s_lshl_b32 s75, s75, 10")
            a("s_add_u32 s75, s75, s74")
            a("s_add_u32 s75, s75, s73")
            a(f"buffer_store_dwordx4 {vr(f, 4)}, v16, s[28:31], s75 offen{stfl()}")
    a(f"s_cmp_ge_u32 s{S_IDX}, 2")
    a("s_cselect_b32 s63, 2, 4")
    signal(a, "K1_HQ_SQ", 20, "s63", lambda: add_counter(a, CNT_Q, S_T))
    a.label("K1_HQ_FIN")
    stamp(a, 6, 1)
    stamp(a, 7, 5)
    a.label("K1_HQ_END")
    a("s_branch PH2")
    emit_hooks(a, HQ)


def init_common(a, regs):
    poll_address(a)
    for r in list(range(GRAM, GRAM + 8)) + regs:
        a(f"v_mov_b32 v{r}, 0")
    for r in range(4):
        a(f"v_mov_b32 v{ONES + r}, 0x3f803f80")


KV_ACC = ACC
KV_CS = ACC + 56
KV_W = ACC + 64
KV_X = KV_W + 56
V_A01, V_A2, V_A34, V_AH = V_ADR, V_ADR + 1, V_ADR + 2, V_ADR + 3
V_AXK = V_ADR + 5
V_KVW = V_ADR + 9
ONES_UNITS = [(0, 1), (2, 3), (4, 5), (6,)]


def kv_acc(u, tt):
    return KV_ACC + (u * 2 + tt) * 4


def kv_w(st, u):
    return KV_W + 28 * st + 4 * u


def kv_x(st, kh, tt):
    return KV_X + 16 * st + 8 * kh + 4 * tt


def kv_reads_w(slot, st):
    f = []
    for u in range(7):
        for s in range(2):
            if u < 2:
                adr, off = V_A01, 32 * u + 1280 * s
            elif u == 2:
                adr, off = V_A2, 1280 * s
            elif u < 5:
                adr, off = V_A34, 32 * (u - 3) + 1280 * s
            else:
                adr, off = V_AH + (u - 5), 512 * s
            f.append([f"ds_read_b64_tr_b16 {vr(kv_w(st, u) + 2*s, 2)}, v{adr} offset:{slot*SLOT + off}"])
    return f


def kv_reads_x(xs, st):
    return [[f"ds_read_b128 {vr(kv_x(st, kh, tt), 4)}, v{V_AXK + 2*kh + tt} offset:{xs*SLOT}"]
            for kh in range(2) for tt in range(2)]


class KV:
    L = "K1_KV"
    reads_w = staticmethod(kv_reads_w)
    reads_x = staticmethod(kv_reads_x)

    @staticmethod
    def mfmas(p):
        ws, xs, kh = p & 1, (p >> 1) & 1, p & 1
        mf = []
        for u in range(7):
            w = vr(kv_w(ws, u), 4)
            for tt in range(2):
                x, d = vr(kv_x(xs, kh, tt), 4), vr(kv_acc(u, tt), 4)
                mf.append(f"v_mfma_f32_16x16x32_bf16 {d}, {x}, {w}, {d}" if u < 5 else
                          f"v_mfma_f32_16x16x32_bf16 {d}, {w}, {x}, {d}")
        return mf

    @staticmethod
    def extras(p):
        ws, xs, kh = p & 1, (p >> 1) & 1, p & 1
        mf = []
        for u in range(7):
            w, d = vr(kv_w(ws, u), 4), vr(CSX + 4 * u, 4)
            mf.append(f"v_mfma_f32_16x16x32_bf16 {d}, {vr(ONES,4)}, {w}, {d}" if u < 5 else
                      f"v_mfma_f32_16x16x32_bf16 {d}, {w}, {vr(ONES,4)}, {d}")
        return mf + stats_mfma(kv_x(xs, kh, 0), False)

    @staticmethod
    def stage(a):
        a(f"s_and_b32 s70, s{S_WAVE}, 1")
        a(f"s_lshr_b32 s71, s{S_WAVE}, 1")
        a("s_lshl_b32 s72, s71, 5")
        a("s_lshl_b32 s73, s70, 4")
        a("s_add_u32 s73, s73, s72")
        stage_stats(a, 73)
        a("s_lshl_b32 s62, s70, 9")
        a(f"s_add_u32 s62, s62, {PUBC}")
        a(f"v_and_b32 v{V_T0}, 15, v{V_LANE}")
        a(f"v_lshl_add_u32 v{V_T0}, v{V_T0}, 2, s62")
        a(f"v_lshrrev_b32 v{V_T1}, 4, v{V_LANE}")
        a(f"v_lshl_add_u32 v{V_T1}, v{V_T1}, 4, s62")
        set_exec(a, 0xFFFF)
        for u in range(5):
            a(f"ds_write_b32 v{V_T0}, v{CSX + 4*u} offset:{64*u}")
        set_exec(a, 0x0001000100010001)
        for u in range(5, 7):
            a(f"ds_write_b128 v{V_T1}, {vr(CSX + 4*u, 4)} offset:{320 + 64*(u-5)}")
        a("s_mov_b64 exec, -1")


def kv_tile_mask(ua, ub):
    m = 0
    for l in range(64):
        e16, g = l & 15, l >> 4
        d0 = 16 * ua + 4 * g
        e = {2: e16 - 8, 3: 8 + e16, 4: 24 + e16}[ub]
        if d0 < 40 and e >= 0 and (d0 >= 20) == (e >= 20):
            m |= 1 << l
    return m


def gen_kv(a):
    a.label("K1_KV")
    a(f"s_and_b32 s62, s{S_WAVE}, 1")
    a(f"s_lshr_b32 s63, s{S_WAVE}, 1")
    start_class(a)
    a(f"s_cmp_ge_u32 s{S_WAVE}, 4")
    a("s_cbranch_scc1 K1_KV_NODMA")
    a(f"s_cmp_lt_u32 s{S_WAVE}, 3")
    a("s_cbranch_scc0 K1_KV_HD")
    a("s_mov_b32 s24, s6")
    a("s_mov_b32 s25, s7")
    a(f"s_mov_b32 s26, {D*3*D*2}")
    a("s_mov_b32 s27, 0x20000")
    a(f"s_mov_b32 s{S_WSTEP}, {3840*32}")
    for q in range(4):
        a(f"s_lshl_b32 s64, s{S_WAVE}, 2")
        a(f"s_add_u32 s64, s64, {q}")
        a("s_cmp_ge_u32 s64, 5")
        a("s_cselect_b32 s65, 5, 0")
        a(f"s_cselect_b32 s69, {VB}, 0")
        a("s_mov_b32 s67, 2560")
        a("s_cselect_b32 s67, s67, 1280")
        a("s_sub_u32 s66, s64, s65")
        a("s_lshl_b32 s70, s66, 10")
        a(f"s_add_u32 s{S_LW[q]}, s69, s70")
        a("s_lshl_b32 s70, s66, 6")
        a(f"v_add_u32 v20, s70, v{V_LANE}")
        a("v_mul_u32_u24 v21, 6554, v20")
        a("v_lshrrev_b32 v21, 16, v21")
        a("v_mul_u32_u24 v22, 10, v21")
        a("v_sub_u32 v22, v20, v22")
        a("v_and_b32 v23, 0x13, v21")
        a("v_bfe_u32 v24, v21, 2, 1")
        a("v_lshl_or_b32 v23, v24, 3, v23")
        a("v_bfe_u32 v24, v21, 3, 1")
        a("v_lshl_or_b32 v23, v24, 2, v23")
        a("v_mul_u32_u24 v23, 3840, v23")
        a("v_lshl_add_u32 v23, v22, 4, v23")
        a(f"s_mul_i32 s70, s{S_IDX}, 160")
        a("s_add_u32 s70, s70, s67")
        a("s_cmp_ge_u32 s64, 10")
        a(f"s_cselect_b32 s70, {OOB}, s70")
        a(f"s_cselect_b32 s{S_LW[q]}, {SLOT - 1024}, s{S_LW[q]}")
        a(f"v_add_u32 v{V_W[q]}, s70, v23")
    a("s_branch K1_KV_D1")
    a.label("K1_KV_HD")
    a("s_mov_b32 s24, s8")
    a("s_mov_b32 s25, s9")
    a(f"s_mov_b32 s26, {D*DFF*2}")
    a("s_mov_b32 s27, 0x20000")
    a(f"s_mov_b32 s{S_WSTEP}, {3456*32}")
    a("s_mov_b32 s65, 3456")
    a(f"s_lshl_b32 s66, s{S_IDX}, 7")
    for q in range(4):
        a(f"s_mov_b32 s{S_LW[q]}, {HB + 1024*q}")
    line_dma_voffsets(a, 65, 66)
    a.label("K1_KV_D1")
    x_dma_voffsets(a)
    prologue_dma(a)
    a.label("K1_KV_NODMA")
    a(f"v_lshrrev_b32 v56, 4, v{V_LANE}")
    a(f"v_bfe_u32 v57, v{V_LANE}, 2, 2")
    a(f"v_and_b32 v58, 3, v{V_LANE}")
    a("v_lshrrev_b32 v59, 1, v56")
    a("v_lshlrev_b32 v59, 4, v59")
    a("v_and_b32 v60, 1, v56")
    a("v_lshl_add_u32 v59, v60, 2, v59")
    a("v_add_u32 v59, v59, v57")
    a("v_mul_u32_u24 v59, 160, v59")
    a("s_mul_i32 s64, s62, 80")
    a("v_add_u32 v59, s64, v59")
    a(f"v_lshl_add_u32 v{V_A01}, v58, 3, v59")
    a(f"v_add_u32 v{V_A34}, {VB + 16}, v{V_A01}")
    a(f"v_add_u32 v60, 64, v{V_A01}")
    a(f"v_add_u32 v61, {VB - 16}, v{V_A01}")
    a("v_cmp_gt_u32 vcc, 2, v58")
    a(f"v_cndmask_b32 v{V_A2}, v61, v60, vcc")
    a("s_lshl_b32 s64, s62, 1")
    a(f"s_mov_b32 s66, {HB}")
    for uu in range(2):
        line_read_addr(a, V_AH + uu, 64, uu, 66, 0)
    a(f"v_and_b32 v56, 15, v{V_LANE}")
    a(f"v_lshrrev_b32 v57, 4, v{V_LANE}")
    a("v_lshrrev_b32 v58, 1, v56")
    for tt in range(2):
        a(f"s_xor_b32 s64, s62, {tt}")
        a("s_lshl_b32 s64, s64, 4")
        a("s_lshl_b32 s65, s63, 5")
        a("s_add_u32 s64, s64, s65")
        a("v_add_u32 v60, s64, v56")
        a("v_lshlrev_b32 v60, 7, v60")
        for kh in range(2):
            a(f"v_or_b32 v59, {4*kh}, v57")
            a("v_xor_b32 v59, v59, v58")
            a("v_lshl_add_u32 v59, v59, 4, v60")
            a(f"v_add_u32 v{V_AXK + 2*kh + tt}, {XB}, v59")
    a("v_mul_u32_u24 v59, 80, v56")
    a("v_lshl_add_u32 v59, v57, 4, v59")
    a("s_mul_i32 s64, s63, 6720")
    a("s_mul_i32 s65, s62, 3360")
    a("s_add_u32 s64, s64, s65")
    a(f"s_add_u32 s64, s64, {KVR - 640}")
    a(f"v_add_u32 v{V_KVW}, s64, v59")
    init_common(a, list(range(KV_ACC, KV_ACC + 56)) + list(range(CSX, CSX + 28)))
    stamp(a, 2, 1)
    a("s_waitcnt vmcnt(4)")
    a("s_barrier")
    stamp(a, 3, 1)
    stamp(a, 1, 3)
    for f in kv_reads_w(0, 0) + kv_reads_x(0, 0):
        a(f[0])
    prologue_dma2(a, "K1_KV")
    a("s_waitcnt vmcnt(12) lgkmcnt(0)")
    emit_main(a, KV)

    a.label("K1_KV_EPI")
    a("s_barrier")
    stamp(a, 4, 1)
    stamp(a, 6, 3)
    stamp(a, 1, 5)
    a(f"s_and_b32 s70, s{S_WAVE}, 1")
    a(f"s_lshr_b32 s71, s{S_WAVE}, 1")
    a("s_lshl_b32 s72, s71, 5")
    stamp(a, 5, 1)
    stamp(a, 7, 3)
    NM, RSV, RL = KV_W, KV_W + 8, KV_W + 16
    CSK = KV_W + 24
    CSH = KV_W + 32
    STH = KV_W + 40
    TP = KV_X + 32
    FR = KV_X
    a(f"v_lshrrev_b32 v16, 4, v{V_LANE}")
    a(f"v_and_b32 v17, 15, v{V_LANE}")
    for tt in range(2):
        a(f"s_xor_b32 s73, s70, {tt}")
        a("s_lshl_b32 s73, s73, 4")
        a("s_add_u32 s73, s73, s72")
        a("s_lshl_b32 s73, s73, 2")
        a(f"s_add_u32 s73, s73, {ST}")
        a("v_lshl_add_u32 v18, v16, 4, s73")
        a(f"ds_read_b128 {vr(NM + 4*tt, 4)}, v18")
        a(f"ds_read_b128 {vr(RSV + 4*tt, 4)}, v18 offset:512")
        a("v_lshl_add_u32 v19, v17, 2, s73")
        a(f"ds_read2_b32 {vr(STH + 2*tt, 2)}, v19 offset1:128")
    a("s_lshl_b32 s73, s70, 9")
    a(f"s_add_u32 s73, s73, {CS}")
    a("v_lshl_add_u32 v18, v17, 2, s73")
    for u in range(5):
        a(f"ds_read_b32 v{CSK + u}, v18 offset:{64*u}")
    a("v_lshl_add_u32 v18, v16, 4, s73")
    for uu in range(2):
        a(f"ds_read_b128 {vr(CSH + 4*uu, 4)}, v18 offset:{320 + 64*uu}")
    a(f"s_mov_b32 s76, 0x{EPS6:x}")
    a(f"s_mov_b32 s77, 0x{EPS6:x}")
    a("s_mov_b32 s78, 0x00ff00ff")
    a("s_mov_b32 s79, 0x00ff00ff")
    a("s_waitcnt lgkmcnt(0)")
    stamp(a, 2, 5)
    RSH, RSHH = KV_W + 44, KV_W + 52
    for i in range(8):
        a(f"v_mul_f32 v{RL + i}, 0x{LOG2E:x}, v{RSV + i}")
        a(f"v_mul_f32 v{RSH + i}, 0.5, v{RSV + i}")
    for tt in range(2):
        a(f"v_mul_f32 v{RSHH + tt}, 0.5, v{STH + 2*tt + 1}")
    a(f"s_lshl_b32 s72, s{S_IDX}, 1")
    a("s_add_u32 s72, s72, s70")
    sigma_h_scalar(a, 73, 72)
    a(f"s_lshl_b32 s{S_T64}, s{S_T}, 1")
    a("s_lshr_b32 s74, s71, 1")
    a(f"s_add_u32 s{S_T64}, s{S_T64}, s74")
    a(f"s_mul_i32 s74, s{S_T64}, {NSIG}")
    a("s_add_u32 s73, s73, s74")
    a("s_lshl_b32 s73, s73, 2")
    a("s_and_b32 s74, s71, 1")
    a("s_lshl_b32 s74, s74, 1")
    a("s_add_u32 s73, s73, s74")
    a(f"v_lshlrev_b32 v16, 4, v{V_LANE}")
    for tt in range(2):
        f = FR + 20 + 4 * tt
        relu_batch(a, [(f + 2*uu + hh, [(kv_acc(5 + uu, tt) + 2*hh + z, CSH + 4*uu + 2*hh + z, STH + 2*tt, RSHH + tt)
                                        for z in range(2)]) for uu in range(2) for hh in range(2)])
        a(f"s_xor_b32 s74, s70, {tt}")
        a("s_add_u32 s74, s74, s73")
        a("s_lshl_b32 s74, s74, 10")
        a(f"buffer_store_dwordx4 {vr(f, 4)}, v16, s[28:31], s74 offen{stfl()}")
    stamp(a, 3, 5)
    for u in range(5):
        cs = CSK + u
        items = []
        for tt in range(2):
            for hh in range(2):
                pair = []
                for z in range(2):
                    r = 4 * tt + 2 * hh + z
                    pair.append((kv_acc(u, tt) + 2 * hh + z, cs, NM + r, RSH + r, RL + r, RSV + r))
                items.append((FR + 4 * u + 2 * tt + hh, pair))
        if u == 1:
            signal(a, "K1_KV_SH", 16, 8, lambda: add_counter(a, CNT_H, S_T))
        if u < 3:
            phi_batch(a, items, TP, keep="s[78:79]" if u == 2 else None)
        else:
            el = [e for (dst, pair) in items for e in pair]
            for (ac, c, nm, rsh, rl, rs) in el:
                a(f"v_fma_f32 v{ac}, v{c}, v{nm}, v{ac}")
            for (ac, c, nm, rsh, rl, rs) in el:
                a(f"v_mul_f32 v{ac}, v{ac}, v{rs}")
            for (dst, pair) in items:
                a(f"v_cvt_pk_bf16_f32 v{dst}, v{pair[0][0]}, v{pair[1][0]}")
    stamp(a, 4, 5)
    tiles = [(0, 2), (0, 3), (1, 2), (1, 3), (1, 4), (2, 3), (2, 4)]
    KT = KV_ACC
    for i, (ua, ub) in enumerate(tiles):
        mfma(a, KT + 4 * i, FR + 4 * ua, FR + 4 * ub, "0")
    for ua in range(3):
        mfma(a, KT + 28 + 4 * ua, FR + 4 * ua, ONES, "0")
    for i, (ua, ub) in enumerate(tiles):
        eoff = {2: -8, 3: 8, 4: 24}[ub]
        set_exec(a, kv_tile_mask(ua, ub))
        a(f"ds_write_b128 v{V_KVW}, {vr(KT + 4*i, 4)} offset:{80*(eoff + 8) + 64*ua}")
    for ua in range(3):
        for hd in range(2):
            m = 0
            for g in range(4):
                d0 = 16 * ua + 4 * g
                if d0 < 40 and (d0 >= 20) == (hd == 1):
                    m |= 1 << (16 * g)
            if m:
                set_exec(a, m)
                a(f"ds_write_b128 v{V_KVW}, {vr(KT + 28 + 4*ua, 4)} offset:{640 + 1600*(hd+1) + 64*ua}")
    a("s_mov_b64 exec, -1")
    a("s_waitcnt lgkmcnt(0)")
    stamp(a, 5, 5)
    a("s_barrier")
    stamp(a, 6, 5)
    a(f"s_mul_i32 s72, s{S_IDX}, 6720")
    a(f"s_add_u32 s72, s72, {KVA}")
    a("s_add_u32 s40, s10, s72")
    a("s_addc_u32 s41, s11, 0")
    a("s_mov_b32 s42, 6720")
    a("s_mov_b32 s43, 0x20000")
    SM = KV_ACC

    def kv_replicas():
        a(f"s_lshl_b32 s62, s{S_IDX}, 9")
        a(f"s_add_u32 s62, s62, {CNT_KV}")
        a(f"v_lshlrev_b32 v{V_T0}, 7, v{V_LANE}")
        a(f"v_mov_b32 v{V_T1}, 1")
        a("s_mov_b64 exec, 15")
        a(f"buffer_atomic_add v{V_T1}, v{V_T0}, s[28:31], s62 offen")
        a("s_mov_b64 exec, -1")

    side_only = "kvside" in asmlib.EXP
    nthr = 256 if side_only else 512
    if side_only:
        a(f"s_cmp_lt_u32 s{S_WAVE}, 4")
        a("s_cbranch_scc1 K1_KV_MAINX")
        a("s_setprio 3")
    a(f"v_and_b32 v17, {nthr - 1}, v0")
    a("v_lshlrev_b32 v17, 2, v17")
    a(f"v_add_u32 v18, {KVR}, v17")
    a("v_add_u32 v19, 4096, v17")
    step = nthr * 4
    nr = -(-6720 // step)
    for n0 in range(0, nr, 3):
        ns = range(n0, min(n0 + 3, nr))
        for n in ns:
            for r in range(4):
                a(f"ds_read_b32 v{SM + 4*n + r}, v18 offset:{step*n + 6720*r}")
        a("s_waitcnt lgkmcnt(0)")
        for n in ns:
            a(f"v_add_f32 v{SM + 4*n}, v{SM + 4*n}, v{SM + 4*n + 1}")
            a(f"v_add_f32 v{SM + 4*n + 2}, v{SM + 4*n + 2}, v{SM + 4*n + 3}")
        for n in ns:
            a(f"v_add_f32 v{SM + 4*n}, v{SM + 4*n}, v{SM + 4*n + 2}")
        for n in ns:
            if step * n < 4096:
                a(f"buffer_atomic_add_f32 v{SM + 4*n}, v17, s[40:43], 0 offen offset:{step*n}")
            else:
                a(f"buffer_atomic_add_f32 v{SM + 4*n}, v19, s[40:43], 0 offen offset:{step*n - 4096}")
    stamp(a, 6, 1)
    stamp(a, 7, 5)
    if side_only:
        a("s_barrier")
    signal(a, "K1_KV_SK", 24, nthr // 64, kv_replicas)
    a("s_branch PH2")
    if side_only:
        a.label("K1_KV_MAINX")
        a("s_barrier")
        a("s_branch PH2")
    emit_hooks(a, KV)


def gen_km():
    a = Asm()
    a("s_cmp_ge_u32 s2, 256")
    a("s_cbranch_scc1 KM_END")
    if asmlib.DIAG:
        for i in range(80, 96):
            a(f"s_mov_b32 s{i}, 0")
    stamp(a, 0)
    a("s_load_dwordx4 s[4:7], s[0:1], 0")
    a("s_load_dwordx2 s[14:15], s[0:1], 16")
    a("s_load_dwordx2 s[8:9], s[0:1], 32")
    a("s_load_dwordx2 s[16:17], s[0:1], 40")
    a(f"s_load_dwordx2 s[{S_OUT}:{S_OUT+1}], s[0:1], 48")
    a("s_load_dwordx2 s[12:13], s[0:1], 56")
    a("s_load_dwordx2 s[10:11], s[0:1], 64")
    a(f"v_and_b32 v{V_LANE}, 63, v0")
    a("v_lshrrev_b32 v2, 6, v0")
    a("s_and_b32 s62, s2, 7")
    a(f"v_readfirstlane_b32 s{S_WAVE}, v2")
    a("s_lshr_b32 s63, s2, 3")
    a("s_and_b32 s64, s62, 1")
    a("s_lshl_b32 s64, s64, 3")
    a("s_and_b32 s65, s63, 7")
    a(f"s_add_u32 s{S_T}, s64, s65")
    a("s_lshr_b32 s64, s62, 1")
    a("s_lshr_b32 s65, s63, 3")
    a("s_lshl_b32 s64, s64, 1")
    a("s_and_b32 s66, s65, 1")
    a(f"s_add_u32 s{S_IDX}, s64, s66")
    a("s_lshr_b32 s66, s65, 1")
    a("s_lshl_b32 s66, s66, 3")
    a(f"s_add_u32 s{S_CG}, s{S_IDX}, s66")
    if "nopf" not in asmlib.EXP:
        a.comment("pull this XCD's copy of the code into L2: one 8-KB part per workgroup")
        a("s_getpc_b64 s[70:71]")
        a.label("KM_PC")
        a("s_sub_u32 s70, s70, KM_PC-" + KM)
        a("s_subb_u32 s71, s71, 0")
        a("s_mul_hi_u32 s72, s63, 0x33333334")
        a("s_mul_i32 s72, s72, 5")
        a("s_sub_u32 s72, s63, s72")
        a("s_lshl_b32 s72, s72, 13")
        a(f"v_lshlrev_b32 v8, 7, v{V_LANE}")
        a("v_add_u32 v8, s72, v8")
        a("v_min_u32 v8, KM_CODE_END-" + KM + "-4, v8")
        a("v_mov_b32 v9, s71")
        a("v_add_co_u32 v8, vcc, s70, v8")
        a("v_addc_co_u32 v9, vcc, 0, v9, vcc")
        a(f"s_cmp_eq_u32 s{S_WAVE}, 7")
        a("s_cbranch_scc0 KM_NOPF")
        a("global_load_dword v255, v[8:9], off")
        a.label("KM_NOPF")
    for r in [3] + V_W:
        a(f"v_mov_b32 v{r}, 0")
    a("v_mov_b32 v4, 0")
    a("v_mov_b32 v5, 0")
    a(f"v_mov_b32 v6, {LW}")
    a("ds_write_b64 v6, v[4:5]")
    a("ds_write_b64 v6, v[4:5] offset:8")
    a("ds_write_b64 v6, v[4:5] offset:16")
    a("ds_write_b64 v6, v[4:5] offset:24")
    a("s_waitcnt lgkmcnt(0)")
    srd(a, 20, 4, S * D * 2)
    srd(a, 24, 4, S * D * 2)
    srd(a, 28, 10, WS_USED)
    srd(a, 32, 12, 256)
    a("s_cmp_ge_u32 s65, 2")
    a("s_cbranch_scc1 K1_HQ")
    gen_kv(a)
    gen_hq(a)
    gen_phase2(a, S_WAVE, S_T, S_CG, S_OUT)
    a.label("KM_END")
    a("s_endpgm")
    a.label("KM_CODE_END")
    a("s_endpgm")
    return a


if __name__ == "__main__":
    print(gen_km().text())
```

```python
import asmlib
from asmlib import *
from layout import *

RS = 336
REG = 64 * RS
KV0 = 4 * REG
LW = 112640
KM_LDS = LW + 64
SPIN_MAX = 1 << 20

ACC = 16
SET0 = 96
V_XR0, V_XR1 = 240, 244
V_G0, V_G1, V_L0, V_L1 = 248, 249, 250, 251


def acc(j, tt):
    return ACC + (j * 4 + tt) * 4


def wfr(d, j):
    return SET0 + 36 * d + 4 * j


def afr(d, tt):
    return SET0 + 36 * d + 20 + 4 * tt


def srd(a, r, lo, size):
    a(f"s_mov_b32 s{r}, s{lo}")
    a(f"s_mov_b32 s{r+1}, s{lo+1}")
    a(f"s_mov_b32 s{r+2}, {size}")
    a(f"s_mov_b32 s{r+3}, 0x20000")


def head_num_mask(j, s, b):
    m = 0
    for l in range(64):
        e, g = 16 * j + (l & 15), l >> 4
        if e // 20 == (32 * s + 16 * b + 4 * g) // 20:
            m |= 1 << l
    return m


def head_den_mask(jb, jmax, s, b):
    m = 0
    for l in range(64):
        row, g = l & 15, l >> 4
        gp, rp = row >> 2, row & 3
        j = jb + rp
        if j <= jmax and (16 * j + 4 * gp) // 20 == (32 * s + 16 * b + 4 * g) // 20:
            m |= 1 << l
    return m


def load_group(a, d, which, first=False):
    kind, i = which
    if kind == "w":
        if i < 4:
            a(f"buffer_load_dwordx4 {vr(wfr(d, i), 4)}, v1, s[12:15], s31 offen offset:{1024*i}")
        else:
            a(f"buffer_load_dwordx4 {vr(wfr(d, i), 4)}, v2, s[12:15], s31 offen")
    else:
        fl = "" if "k2plain" in asmlib.EXP else " sc1"
        a(f"buffer_load_dwordx4 {vr(afr(d, i), 4)}, v1, s[12:15], s30 offen offset:{1024*i}{fl}")


def slot(a, d, wait, loads, check=None):
    a(f"s_waitcnt vmcnt({wait})")
    for j in range(5):
        for tt in range(4):
            if "k2nomfma" not in asmlib.EXP:
                a(f"v_mfma_f32_16x16x32_bf16 {vr(acc(j, tt), 4)}, {vr(wfr(d, j), 4)}, {vr(afr(d, tt), 4)}, {vr(acc(j, tt), 4)}")
            if loads and j == 4:
                if tt == 0 and check:
                    check()
                if tt >= 1:
                    load_group(a, d, ("a", tt - 1))
        if loads and j < 4:
            load_group(a, d, ("w", j))
    if loads:
        load_group(a, d, ("w", 4))
        load_group(a, d, ("a", 3))
        a("s_add_u32 s30, s30, 4096")
        a("s_add_u32 s31, s31, 40960")


def lds_wait(a, label, off, back=None):
    a(f"v_mov_b32 v4, {LW}")
    a(f"s_mov_b32 s39, {SPIN_LDS}")
    a.label(label)
    a(f"ds_read_b32 v5, v4 offset:{off}")
    a("s_waitcnt lgkmcnt(0)")
    a("v_readfirstlane_b32 s40, v5")
    a("s_sub_u32 s39, s39, 1")
    a("s_cmp_eq_u32 s39, 0")
    a(f"s_cbranch_scc1 {label}_X")
    a("s_cmp_eq_u32 s40, 0")
    a(f"s_cbranch_scc0 {label}_X")
    a("s_sleep 1")
    a(f"s_branch {label}")
    a.label(label + "_X")


def main_offsets(a):
    a("s_mul_i32 s27, s24, 19")
    a("s_cmp_eq_u32 s24, 3")
    a("s_cselect_b32 s27, 56, s27")
    a("s_lshr_b32 s28, s24, 1")
    a("s_add_u32 s28, s28, 1")
    a(f"s_mul_i32 s34, s25, {NSIG}")
    a("s_add_u32 s34, s34, s27")
    a("s_lshl_b32 s34, s34, 12")
    a("s_mul_i32 s35, s27, 40")
    a("s_mul_i32 s33, s26, 5")
    a("s_add_u32 s35, s35, s33")
    a("s_lshl_b32 s35, s35, 10")
    a(f"s_add_u32 s35, s35, {WF}")
    for d in range(4):
        if d < 2:
            a(f"s_cmp_gt_u32 s28, {d}")
            a(f"s_cselect_b32 s{42+d}, {OOB}, s34")
            a(f"s_cselect_b32 s{46+d}, {OOB}, s35")
            a("s_cselect_b32 s36, 0, 4096")
            a("s_cselect_b32 s37, 0, 40960")
            a("s_add_u32 s34, s34, s36")
            a("s_add_u32 s35, s35, s37")
        else:
            a(f"s_mov_b32 s{42+d}, s34")
            a(f"s_mov_b32 s{46+d}, s35")
            a("s_add_u32 s34, s34, 4096")
            a("s_add_u32 s35, s35, 40960")


def gen_main(a):
    a.comment("main waves: stream the K quarter of this wave")
    main_offsets(a)
    for d in range(4):
        a(f"s_mov_b32 s31, s{46+d}")
        for j in range(5):
            load_group(a, d, ("w", j))
    for r in range(ACC, ACC + 80):
        a(f"v_mov_b32 v{r}, 0")
    stamp(a, 5, 6)
    a("s_cmp_eq_u32 s24, 0")
    a("s_cbranch_scc0 K2_HOTHER")
    a("s_lshr_b32 s40, s25, 1")
    a("s_lshl_b32 s40, s40, 7")
    a(f"s_add_u32 s40, s40, {CNT_H}")
    a("v_mov_b32 v6, s40")
    a("v_mov_b32 v8, 16")
    poll_counts(a, "K2_PH", 6, 8)
    a(f"v_mov_b32 v4, {LW}")
    a("v_mov_b32 v5, 1")
    a("ds_write_b32 v4, v5 offset:8")
    a.label("K2_HOTHER")
    lds_wait(a, "K2_HWAIT", 8)
    stamp(a, 1, 2)
    stamp(a, 6, 6)
    for d in range(4):
        a(f"s_mov_b32 s30, s{42+d}")
        for tt in range(4):
            load_group(a, d, ("a", tt))
    a("s_mov_b32 s30, s34")
    a("s_mov_b32 s31, s35")
    for d in range(4):
        slot(a, d, [12, 17, 22, 27][d], True)
    stamp(a, 2, 2)
    a("s_mov_b32 s38, 1")
    a.label("K2_LOOP")

    def check():
        a("s_cmp_eq_u32 s38, 2")
        a("s_cbranch_scc1 K2_OWAIT")
        a.label("K2_OBACK")

    for d in range(4):
        slot(a, d, 27, True, check if d == 3 else None)
    a("s_add_u32 s38, s38, 1")
    a("s_cmp_lt_u32 s38, 4")
    a("s_cbranch_scc1 K2_LOOP")
    stamp(a, 3, 2)
    for d in range(4):
        slot(a, d, 27 - 9 * d, False)
    stamp(a, 4, 2)
    a("v_and_b32 v4, 15, v3")
    a("v_lshrrev_b32 v5, 4, v3")
    a(f"v_mul_u32_u24 v4, {RS}, v4")
    a("v_lshl_add_u32 v4, v5, 4, v4")
    a(f"s_mul_i32 s27, s24, {REG}")
    a("v_add_u32 v4, s27, v4")
    for tt in range(4):
        for j in range(5):
            a(f"ds_write_b128 v4, {vr(acc(j, tt), 4)} offset:{tt*16*RS + j*64}")
    a("s_branch K2_FINAL")
    a.label("K2_OWAIT")
    stamp(a, 6, 2)
    lds_wait(a, "K2_OWAIT_L", 4)
    a("s_branch K2_OBACK")


def gen_ojob(a, half):
    L = f"K2_O{half}"
    a.label(L)
    if half == 0:
        tiles, s_list, s_lo = list(range(0, 6)), [0, 1, 2, 3], 0
        dens = [(0, 5, [0, 1, 2]), (4, 5, [1, 2, 3])]
    else:
        tiles, s_list, s_lo = list(range(6, 10)), [2, 3, 4], 2
        dens = [(6, 9, [2, 3, 4])]
    PQR = 8
    NUM = 24
    DEN = 48
    TMP = 64
    AF = 128
    pq = lambda s: PQR + 4 * (s - s_lo)
    a("s_mul_i32 s36, s29, 20")
    a("s_mul_i32 s37, s33, 5")
    a("s_add_u32 s36, s36, s37")
    a(f"s_add_u32 s36, s36, {s_lo}")
    a("s_lshl_b32 s36, s36, 1")
    a("s_add_u32 s36, s36, s32")
    a("s_lshl_b32 s36, s36, 10")
    a(f"s_add_u32 s36, s36, {PQ}")
    for s in s_list:
        k = s - s_lo
        if k < 2:
            a(f"buffer_load_dwordx4 {vr(pq(s), 4)}, v1, s[12:15], s36 offen offset:{2048*k} sc1")
        else:
            a(f"buffer_load_dwordx4 {vr(pq(s), 4)}, v2, s[12:15], s36 offen offset:{2048*(k-2)} sc1")
    a("s_waitcnt vmcnt(0)")
    a(f"v_mov_b32 v4, {LW}")
    a("v_mov_b32 v5, 1")
    a("ds_add_u32 v4, v5")
    a(f"s_mov_b32 s39, {SPIN_LDS}")
    a.label(L + "_W")
    a("ds_read_b32 v5, v4")
    a("s_waitcnt lgkmcnt(0)")
    a("v_readfirstlane_b32 s40, v5")
    a("s_sub_u32 s39, s39, 1")
    a("s_cmp_eq_u32 s39, 0")
    a(f"s_cbranch_scc1 {L}_G")
    a("s_cmp_ge_u32 s40, 256")
    a(f"s_cbranch_scc0 {L}_W")
    a.label(L + "_G")
    stamp(a, 2, 2)
    a("v_and_b32 v4, 15, v3")
    a("v_lshrrev_b32 v5, 4, v3")
    a("v_mul_u32_u24 v4, 80, v4")
    a("v_lshl_add_u32 v4, v5, 4, v4")
    a(f"v_add_u32 v4, {KV0}, v4")
    ZA = 56
    for s in s_list:
        for b in range(2):
            z = ZA + 2 * (s - s_lo) + b
            a(f"v_lshlrev_b32 v6, 2, v5")
            a(f"v_add_u32 v6, {32*s + 16*b}, v6")
            a(f"v_mul_u32_u24 v7, 3277, v6")
            a("v_lshrrev_b32 v7, 16, v7")
            a("v_mul_u32_u24 v7, 1600, v7")
            a(f"v_lshl_add_u32 v7, v6, 2, v7")
            a(f"v_add_u32 v{z}, {KV0 + 1600}, v7")
    frags = []
    from_s = {}
    for j in tiles:
        h_lo, h_hi = (16 * j) // 20, (16 * j + 15) // 20
        for s in range((20 * h_lo) // 32, (20 * h_hi + 19) // 32 + 1):
            frags.append(("n", j, s))
    for di, (jb, jmax, sl) in enumerate(dens):
        for s in sl:
            frags.append(("d", di, s))
    started = set()
    batches = [frags[i:i + 4] for i in range(0, len(frags), 4)]

    def issue(bi):
        for fi, (kind, x, s) in enumerate(batches[bi]):
            t = TMP + 32 * (bi & 1) + 8 * fi
            for b in range(2):
                if kind == "n":
                    a(f"ds_read_b128 {vr(t + 4*b, 4)}, v4 offset:{1280*x + 128*s + 64*b}")
                else:
                    a(f"ds_read_b128 {vr(t + 4*b, 4)}, v{ZA + 2*(s - s_lo) + b}")

    issue(0)
    for bi, batch in enumerate(batches):
        if bi + 1 < len(batches):
            issue(bi + 1)
            a(f"s_waitcnt lgkmcnt({2*len(batches[bi+1])})")
        else:
            a("s_waitcnt lgkmcnt(0)")
        for fi, (kind, x, s) in enumerate(batch):
            t = TMP + 32 * (bi & 1) + 8 * fi
            f = AF + 4 * fi
            for b in range(2):
                if kind == "n":
                    m = head_num_mask(x, s, b)
                else:
                    m = head_den_mask(dens[x][0], dens[x][1], s, b)
                if m == 0:
                    a(f"v_mov_b32 v{f + 2*b}, 0")
                    a(f"v_mov_b32 v{f + 2*b + 1}, 0")
                    continue
                a(f"v_cvt_pk_bf16_f32 v{f + 2*b}, v{t + 4*b}, v{t + 4*b + 1}")
                a(f"v_cvt_pk_bf16_f32 v{f + 2*b + 1}, v{t + 4*b + 2}, v{t + 4*b + 3}")
                if m != (1 << 64) - 1:
                    a(f"s_mov_b32 s40, 0x{m & 0xffffffff:x}")
                    a(f"s_mov_b32 s41, 0x{m >> 32:x}")
                    a(f"v_cndmask_b32 v{f + 2*b}, 0, v{f + 2*b}, s[40:41]")
                    a(f"v_cndmask_b32 v{f + 2*b + 1}, 0, v{f + 2*b + 1}, s[40:41]")
        for fi, (kind, x, s) in enumerate(batch):
            f = AF + 4 * fi
            dst = NUM + 4 * tiles.index(x) if kind == "n" else DEN + 4 * x
            c = vr(dst, 4) if (kind, x) in started else "0"
            started.add((kind, x))
            a(f"v_mfma_f32_16x16x32_bf16 {vr(dst, 4)}, {vr(f, 4)}, {vr(pq(s), 4)}, {c}")
    a("s_mov_b32 s40, 0x358637bd")
    for ti, j in enumerate(tiles):
        di = 0 if (half == 1 or j < 4) else 1
        dn = DEN + 4 * di + (j - dens[di][0])
        a(f"v_add_f32 v{TMP + ti}, s40, v{dn}")
    for ti, j in enumerate(tiles):
        a(f"v_rcp_f32 v{TMP + ti}, v{TMP + ti}")
    for ti, j in enumerate(tiles):
        for r in range(4):
            a(f"v_mul_f32 v{NUM + 4*ti + r}, v{NUM + 4*ti + r}, v{TMP + ti}")
    npair = len(tiles) // 2
    for p in range(npair):
        for hh in range(2):
            n = NUM + 4 * (2 * p + hh)
            a(f"v_cvt_pk_bf16_f32 v{AF + 4*p + 2*hh}, v{n}, v{n+1}")
            a(f"v_cvt_pk_bf16_f32 v{AF + 4*p + 2*hh + 1}, v{n+2}, v{n+3}")
    a("s_mul_i32 s36, s33, 5")
    a("s_mul_i32 s37, s33, 14")
    a("s_cmp_ge_u32 s33, 2")
    a("s_cselect_b32 s40, 1, 0")
    a("s_sub_u32 s37, s37, s40")
    a("s_cmp_ge_u32 s33, 3")
    a("s_cselect_b32 s40, 1, 0")
    a("s_sub_u32 s37, s37, s40")
    a("s_add_u32 s37, s37, 14")
    a("s_add_u32 s36, s36, s37")
    a(f"s_add_u32 s36, s36, {tiles[0] // 2}")
    a(f"s_mul_i32 s37, s25, {NSIG}")
    a("s_add_u32 s36, s36, s37")
    a("s_lshl_b32 s36, s36, 2")
    a("s_and_b32 s37, s26, 1")
    a("s_lshl_b32 s37, s37, 1")
    a("s_add_u32 s37, s37, s32")
    a("s_add_u32 s36, s36, s37")
    a("s_lshl_b32 s36, s36, 10")
    for p in range(npair):
        a(f"buffer_store_dwordx4 {vr(AF + 4*p, 4)}, v1, s[12:15], s36 offen sc1")
        if p + 1 < npair:
            a("s_add_u32 s36, s36, 4096")
    stamp(a, 3, 2)
    a("s_waitcnt vmcnt(0)")
    stamp(a, 4, 2)
    a("s_lshl_b32 s36, s25, 7")
    a(f"s_add_u32 s36, s36, {FLG}")
    a("s_lshl_b32 s37, s26, 2")
    a("s_add_u32 s37, s37, s24")
    a("s_sub_u32 s37, s37, 4")
    a("s_lshl_b32 s37, s37, 2")
    a("s_add_u32 s37, s37, s36")
    a("v_mov_b32 v6, 1")
    a("v_mov_b32 v7, 0")
    a("buffer_store_dword v6, v7, s[12:15], s37 offen sc1")
    if half == 0:
        a("s_cmp_eq_u32 s24, 4")
        a("s_cbranch_scc0 K2_FINAL")
        a("v_and_b32 v6, 31, v3")
        a("v_lshlrev_b32 v6, 2, v6")
        a(f"s_mov_b32 s39, {SPIN_MAX}")
        a.label("K2_POLL")
        a("buffer_load_dword v7, v6, s[12:15], s36 offen sc1")
        a("s_waitcnt vmcnt(0)")
        a("v_cmp_eq_u32 vcc, 1, v7")
        a("s_sub_u32 s39, s39, 1")
        a("s_cmp_eq_u32 s39, 0")
        a("s_cbranch_scc1 K2_POLL_D")
        a("s_cmp_eq_u64 vcc, -1")
        a("s_cbranch_scc1 K2_POLL_D")
        a("s_sleep 3")
        a("s_branch K2_POLL")
        a.label("K2_POLL_D")
        stamp(a, 6, 2)
        a(f"v_mov_b32 v4, {LW}")
        a("v_mov_b32 v5, 1")
        a("ds_write_b32 v4, v5 offset:4")
    a("s_branch K2_FINAL")


def poll_counts(a, label, vaddr, vtarget):
    a(f"s_mov_b32 s39, {SPIN_MAX}")
    a.label(label)
    a(f"buffer_load_dword v7, v{vaddr}, s[12:15], 0 offen sc1")
    a("s_waitcnt vmcnt(0)")
    a(f"v_cmp_eq_u32 vcc, v{vtarget}, v7")
    a("s_sub_u32 s39, s39, 1")
    a("s_cmp_eq_u32 s39, 0")
    a(f"s_cbranch_scc1 {label}_X")
    a("s_cmp_eq_u64 vcc, -1")
    a(f"s_cbranch_scc1 {label}_X")
    a("s_sleep 2")
    a(f"s_branch {label}")
    a.label(label + "_X")


def gen_phase2(a, S_WAVE, S_T, S_CG, S_OUT):
    a.label("PH2")
    stamp(a, 7, 1)
    stamp(a, 1, 6)
    a(f"s_mov_b32 s24, s{S_WAVE}")
    a("v_mov_b32 v3, v1")
    a("v_lshlrev_b32 v1, 4, v3")
    a("v_add_u32 v2, 4096, v1")
    a("s_and_b32 s27, s2, 7")
    a("s_lshr_b32 s28, s2, 3")
    a("s_lshr_b32 s25, s27, 1")
    a("s_lshl_b32 s25, s25, 3")
    a("s_and_b32 s29, s28, 7")
    a("s_add_u32 s25, s25, s29")
    a("s_and_b32 s26, s27, 1")
    a("s_lshl_b32 s26, s26, 2")
    a("s_lshr_b32 s28, s28, 3")
    a("s_add_u32 s26, s26, s28")
    srd(a, 12, 10, WS_USED)
    srd(a, 16, 4, S * D * 2)
    srd(a, 20, S_OUT, S * D * 2)
    a("v_mul_u32_u24 v5, 6554, v0")
    a("v_lshrrev_b32 v5, 16, v5")
    a("v_mul_u32_u24 v6, 10, v5")
    a("v_sub_u32 v6, v0, v6")
    a("v_add_u32 v7, 512, v0")
    a("v_mul_u32_u24 v8, 6554, v7")
    a("v_lshrrev_b32 v8, 16, v8")
    a("v_mul_u32_u24 v9, 10, v8")
    a("v_sub_u32 v9, v7, v9")
    a("s_mul_i32 s27, s25, 81920")
    a("s_mul_i32 s28, s26, 160")
    a("s_add_u32 s27, s27, s28")
    a(f"v_mul_u32_u24 v{V_G0}, 1280, v5")
    a(f"v_lshl_add_u32 v{V_G0}, v6, 4, v{V_G0}")
    a(f"v_add_u32 v{V_G0}, s27, v{V_G0}")
    a(f"v_mul_u32_u24 v{V_G1}, 1280, v8")
    a(f"v_lshl_add_u32 v{V_G1}, v9, 4, v{V_G1}")
    a(f"v_add_u32 v{V_G1}, s27, v{V_G1}")
    a("v_mov_b32 v10, 0x7ff00000")
    a("v_cmp_gt_u32 vcc, 128, v0")
    a(f"v_cndmask_b32 v{V_G1}, v10, v{V_G1}, vcc")
    a(f"v_mul_u32_u24 v{V_L0}, {RS}, v5")
    a(f"v_lshl_add_u32 v{V_L0}, v6, 5, v{V_L0}")
    a(f"v_mul_u32_u24 v{V_L1}, {RS}, v8")
    a(f"v_lshl_add_u32 v{V_L1}, v9, 5, v{V_L1}")
    a("v_mov_b32 v10, 0")
    a(f"v_cndmask_b32 v{V_L1}, v10, v{V_L1}, vcc")
    stamp(a, 2, 6)
    a(f"buffer_load_dwordx4 {vr(V_XR0, 4)}, v{V_G0}, s[16:19], 0 offen")
    a(f"buffer_load_dwordx4 {vr(V_XR1, 4)}, v{V_G1}, s[16:19], 0 offen")
    a("s_cmp_ge_u32 s24, 4")
    a("s_cbranch_scc1 K2_SIDE")
    gen_main(a)

    a.label("K2_SIDE")
    a("s_setprio 3")
    a("s_and_b32 s32, s24, 1")
    a("s_lshr_b32 s33, s26, 1")
    a("s_and_b32 s29, s26, 1")
    a("s_lshl_b32 s27, s25, 1")
    a("s_add_u32 s29, s29, s27")
    a("s_lshr_b32 s51, s25, 1")
    a("s_cmp_eq_u32 s24, 4")
    a("s_cbranch_scc0 K2_SRDY")
    a("s_lshl_b32 s40, s33, 10")
    a("s_and_b32 s41, s2, 3")
    a("s_lshl_b32 s41, s41, 7")
    a("s_add_u32 s40, s40, s41")
    a(f"s_add_u32 s40, s40, {CNT_KV}")
    a("v_and_b32 v8, 1, v3")
    a("v_lshlrev_b32 v8, 9, v8")
    a("v_add_u32 v8, s40, v8")
    a("s_lshl_b32 s40, s51, 7")
    a(f"s_add_u32 s40, s40, {CNT_Q}")
    a("v_mov_b32 v9, s40")
    a("v_and_b32 v10, 2, v3")
    a("v_cmp_eq_u32 vcc, 0, v10")
    a("v_cndmask_b32 v6, v9, v8, vcc")
    a("v_mov_b32 v9, 8")
    a("v_mov_b32 v10, 16")
    a("v_cndmask_b32 v8, v9, v10, vcc")
    stamp(a, 5, 6)
    poll_counts(a, "K2_PK", 6, 8)
    stamp(a, 6, 6)
    a(f"v_mov_b32 v4, {LW}")
    a("v_mov_b32 v5, 1")
    a("ds_write_b32 v4, v5 offset:12")
    a.label("K2_SRDY")
    lds_wait(a, "K2_KWAIT", 12)
    stamp(a, 1, 2)
    a("s_mul_i32 s36, s33, 13440")
    a(f"s_add_u32 s36, s36, {KVA}")
    a("s_sub_u32 s37, s24, 4")
    a("s_lshl_b32 s37, s37, 10")
    a("s_add_u32 s36, s36, s37")
    a(f"s_add_u32 s37, s37, {KV0}")
    for n in range(4):
        a(f"s_add_u32 m0, s37, {4096*n}")
        a(f"buffer_load_dwordx4 v1, s[12:15], s36 offen sc1 lds")
        if n < 3:
            a("s_add_u32 s36, s36, 4096")
    a("s_cmp_ge_u32 s24, 6")
    a("s_cbranch_scc1 K2_O1")
    gen_ojob(a, 0)
    gen_ojob(a, 1)

    a.label("K2_FINAL")
    a("s_setprio 0")
    a("s_waitcnt lgkmcnt(0)")
    a("s_barrier")
    stamp(a, 5, 2)
    for rnd, (vl, vg, xr) in enumerate(((V_L0, V_G0, V_XR0), (V_L1, V_G1, V_XR1))):
        if rnd == 1:
            a("s_cmp_ge_u32 s24, 2")
            a("s_cbranch_scc1 K2_DONE")
        T = 16
        for w in range(4):
            for hh in range(2):
                a(f"ds_read_b128 {vr(T + 8*w + 4*hh, 4)}, v{vl} offset:{w * REG + hh * 16}")
        a("s_waitcnt vmcnt(0)")
        for i in range(4):
            a(f"v_lshlrev_b32 v{64 + 2*i}, 16, v{xr + i}")
            a(f"v_and_b32 v{64 + 2*i + 1}, 0xffff0000, v{xr + i}")
        a("s_waitcnt lgkmcnt(0)")
        for i in range(8):
            a(f"v_add_f32 v{T + i}, v{T + i}, v{T + 8 + i}")
            a(f"v_add_f32 v{T + 16 + i}, v{T + 16 + i}, v{T + 24 + i}")
        for i in range(8):
            a(f"v_add_f32 v{T + i}, v{T + i}, v{T + 16 + i}")
        for i in range(8):
            a(f"v_add_f32 v{T + i}, v{T + i}, v{64 + i}")
        for i in range(4):
            a(f"v_cvt_pk_bf16_f32 v{72 + i}, v{T + 2*i}, v{T + 2*i + 1}")
        a(f"buffer_store_dwordx4 v[72:75], v{vg}, s[20:23], 0 offen")
    a.label("K2_DONE")
    a("s_waitcnt vmcnt(0)")
    stamp(a, 7, 2)
    stamp(a, 7, 9)
    stamp_flush(a, 0, 24, "s[12:15]", STAMPS)
```

```python
import asmlib
from asmlib import *
from layout import *
from km2 import srd, SPIN_MAX, gen_phase2, LW, KM_LDS

KM = "parallel_sum__linear_attn_block__dense_activation_relu__prompt_kernel"
SLOT = 16384
XB = 65536
PUBS = 110592
PUBC = PUBS + 1024
ST, CS = PUBS, PUBC
VB = 5120 + 16
HB = 10496
JB = 98304
KVR = 32768
NZERO = ZERO_BYTES // 4096

S_WAVE, S_T, S_IDX, S_A, S_B = 44, 45, 46, 47, 48
S_XO, S_WO, S_WSTEP, S_LX, S_WEND = 50, 51, 52, 55, 56
S_CG, S_STEP = 18, 19
S_HM, S_XM, S_MYN = 49, 47, 48
S_JST, S_JLN, S_JBK = 98, 99, 100
S_OUT = 96
S_LINE, S_ISQ, S_DUMMY, S_JOB = 57, 58, 59, 60
S_T64 = 61

V_LANE = 1
V_X = [2, 3, 4, 5]
V_W = [248, 249, 250, 251]
S_LW = [53, 54, 36, 37]
V_T0, V_T1 = 10, 11
V_T2, V_T3 = 8, 9
ONES = 12
V_ADR = 16
ACC = 32
GRAM = 240
RSUM = 244
V_PADR, V_POLL, V_INIT, V_ZERO = 28, 29, 30, 31
V_ALL = 220
V_PART = 200
CSX = 200

LOG2E = 0x3fb8aa3b
EPS6 = 0x358637bd
EPS5 = 0x3727c5ac

HQ_TABLE = [["H8", "H9", "Q0", "Q1"], ["H10", "H11", "Q2", "Q3"], ["H12", "H13", "Q4", "H14"],
            ["H15", "H16", "Q5", "H17"], ["H18", "H19", "Q6", "H20"], ["H21", "H22", "Q7", "D22"],
            ["H23", "H24", "Q8", "D24"], ["H25", "H26", "Q9", "D26"]]


def stfl():
    E = asmlib.EXP
    return "" if "stplain" in E else " sc1"


def hq_word(row):
    w = 0
    for i, c in enumerate(row):
        b = int(c[1:]) | (0x80 if c[0] == "Q" else 0) | (0x40 if c[0] == "D" else 0)
        w |= b << (8 * i)
    return w


def mfma(a, d, x, y, c=None):
    a(f"v_mfma_f32_16x16x32_bf16 {vr(d, 4)}, {vr(x, 4)}, {vr(y, 4)}, {c if c is not None else vr(d, 4)}")


def interleave(a, mf, fillers, per=2):
    fillers = list(fillers)
    E = asmlib.EXP
    if "nomfma" in E:
        mf = ["s_nop 0"] * len(mf)
    keep = lambda f: not (("nodma" in E and any(" lds" in i for i in f)) or ("noread" in E and f[0].startswith("ds_read"))
                          or ("nostats" in E and f[0].startswith("v_")))
    fillers = [f for f in fillers if keep(f)]
    n = len(mf)
    for i, m in enumerate(mf):
        a(m)
        left = n - i
        k = max(per if fillers else 0, -(-len(fillers) // left) if left else 0)
        for _ in range(min(k, len(fillers))):
            for ins in fillers.pop(0):
                a(ins)
    for f in fillers:
        for ins in f:
            a(ins)


def w_issue(slot, wrap):
    f = [[f"s_add_u32 m0, s{S_LW[q]}, {slot*SLOT}",
          f"buffer_load_dwordx4 v{V_W[q]}, s[24:27], s{S_WO} offen lds"] for q in range(4)]
    f[-1].append(f"s_add_u32 s{S_WO}, s{S_WO}, s{S_WSTEP}")
    if wrap:
        f.append([f"s_cmp_eq_u32 s{S_WO}, s{S_WEND}", f"s_cselect_b32 s{S_WO}, 0, s{S_WO}"])
    return f


def x_issue(xs):
    f = [[f"s_add_u32 m0, s{S_LX}, {xs*SLOT + 1024*q}",
          f"buffer_load_dwordx4 v{V_X[q]}, s[20:23], s{S_XO} offen lds"] for q in range(4)]
    f[-1].append(f"s_add_u32 s{S_XO}, s{S_XO}, 128")
    f.append([f"s_cmp_eq_u32 s{S_XO}, 1280", f"s_cselect_b32 s{S_XO}, 0, s{S_XO}"])
    return f


def dma_fillers(p):
    f = x_issue((p >> 1) & 1) if p % 2 == 0 else []
    return f + w_issue(p, p & 1)


def stats_mfma(xreg, first):
    x = vr(xreg, 4)
    return [f"v_mfma_f32_16x16x32_bf16 {vr(GRAM,4)}, {x}, {x}, {'0' if first else vr(GRAM,4)}",
            f"v_mfma_f32_16x16x32_bf16 {vr(RSUM,4)}, {vr(ONES,4)}, {x}, {'0' if first else vr(RSUM,4)}"]


def start_class(a):
    a(f"s_add_u32 s75, s{S_T}, s{S_CG}")
    for _ in range(3):
        a("s_cmp_ge_u32 s75, 10")
        a("s_cselect_b32 s74, 10, 0")
        a("s_sub_u32 s75, s75, s74")


def prologue_dma(a):
    a(f"s_mul_i32 s{S_WO}, s75, s{S_WSTEP}")
    a(f"s_lshl_b32 s{S_WO}, s{S_WO}, 1")
    a(f"s_mul_i32 s{S_WEND}, s{S_WSTEP}, 20")
    for f in w_issue(0, 0) + w_issue(1, 1):
        for ins in f:
            a(ins)


def prologue_dma2(a, L):
    a(f"s_cmp_ge_u32 s{S_WAVE}, 4")
    a(f"s_cbranch_scc1 {L}_NOP2")
    for f in x_issue(1) + w_issue(2, 0) + w_issue(3, 1):
        for ins in f:
            a(ins)
    a.label(f"{L}_NOP2")


def job_number(a):
    a(f"s_sub_u32 s64, s{S_WAVE}, 4")
    a(f"s_mul_i32 s{S_JOB}, s2, 3")
    a(f"s_add_u32 s{S_JOB}, s{S_JOB}, s64")
    a("s_cmp_lt_u32 s64, 3")
    a(f"s_cselect_b32 s{S_JOB}, s{S_JOB}, 1000")


def hook_masks(a):
    a(f"s_mov_b32 s{S_XM}, 6")
    a(f"s_mov_b32 s{S_HM}, 4")
    a(f"s_cmp_ge_u32 s{S_WAVE}, 4")
    a(f"s_cselect_b32 s63, {1 << 13}, 0")
    a(f"s_or_b32 s{S_HM}, s{S_HM}, s63")
    a(f"s_cmp_eq_u32 s{S_WAVE}, 7")
    a(f"s_cselect_b32 s63, {(1 << 3) | (1 << 6) | (1 << 7) | (1 << 9) | (1 << 12)}, 0")
    a(f"s_or_b32 s{S_HM}, s{S_HM}, s63")
    a(f"s_cmp_lt_u32 s{S_JOB}, 740")
    a(f"s_cselect_b32 s63, {1 << 6}, 0")
    a(f"s_or_b32 s{S_HM}, s{S_HM}, s63")
    if "nohk" in asmlib.EXP:
        a(f"s_mov_b32 s{S_HM}, 4")
    if "nojob" in asmlib.EXP:
        a(f"s_andn2_b32 s{S_HM}, s{S_HM}, {(1 << 6) | (1 << 10)}")
        a(f"s_mov_b32 s{S_JOB}, 1000")
    a(f"s_mov_b32 s{S_STEP}, 0")


def stage_stats(a, tok_s):
    a("s_mov_b32 s74, 0xaaaaaaaa")
    a("s_mov_b32 s75, 0xaaaaaaaa")
    a("s_mov_b32 s76, 0xcccccccc")
    a("s_mov_b32 s77, 0xcccccccc")
    a(f"v_cndmask_b32 v{V_T2}, v{GRAM}, v{GRAM+1}, s[74:75]")
    a(f"v_cndmask_b32 v{V_T3}, v{GRAM+2}, v{GRAM+3}, s[74:75]")
    a(f"v_and_b32 v{V_T0}, 15, v{V_LANE}")
    a(f"v_cndmask_b32 v{V_T3}, v{V_T2}, v{V_T3}, s[76:77]")
    a(f"v_mov_b32 v{V_T2}, v{RSUM}")
    a(f"s_lshl_b32 s62, s{tok_s}, 3")
    a(f"s_add_u32 s62, s62, {PUBS}")
    a(f"v_lshl_add_u32 v{V_T0}, v{V_T0}, 3, s62")
    set_exec(a, 0xF0000F0000F0000F)
    a(f"ds_write_b64 v{V_T0}, {vr(V_T2,2)}")
    a("s_mov_b64 exec, -1")


def emit_step(a, role, p, mode, loader):
    last = mode == "last"
    L = role.L + ("L" if loader else "S")
    if "nobar" not in asmlib.EXP:
        a("s_barrier")
    if not last:
        a(f"s_cbranch_vccnz {L}_HK{p}")
        a.label(f"{L}_HK{p}_B")
    if last and p == 0 and not loader:
        finish_stats(a, L)
    if last and p == 2 and not loader:
        check_all(a, L)
    if asmlib.DIAG and asmlib.STAMPSET == 4 and not last:
        for st_, slot_ in ((0, 1), (2, 2), (4, 3), (6, 4), (8, 5), (12, 6)):
            if st_ % 4 == p:
                a(f"s_cmp_eq_u32 s{S_STEP}, {st_}")
                a(f"s_cbranch_scc0 {L}_ST{st_}")
                stamp(a, slot_, 4)
                a.label(f"{L}_ST{st_}")
    if last and p == 0:
        stamp(a, 7, 4)
    f = []
    if not last and loader:
        f += dma_fillers(p)
    if not (last and p == 3):
        f += role.reads_w((p + 1) % 4, (p + 1) & 1)
    if p & 1 and not (last and p == 3):
        nx = ((p + 1) >> 1) & 1
        f += role.reads_x(nx, nx)
    if not last:
        f.append([f"s_add_u32 s{S_STEP}, s{S_STEP}, 1", f"s_lshr_b32 s62, s{S_HM}, s{S_STEP}"])
        f.append(["s_and_b32 vcc_lo, s62, 1", f"s_bitcmp1_b32 s{S_XM}, s{S_STEP}"])
    interleave(a, role.mfmas(p), f, per=1)
    if not last:
        a(f"s_cbranch_scc1 {L}_XT{p}")
        a.label(f"{L}_XT{p}_B")
        a("s_waitcnt vmcnt(12) lgkmcnt(0)" if loader else "s_waitcnt lgkmcnt(0)")
    elif loader:
        a(["s_waitcnt vmcnt(4) lgkmcnt(0)", "s_waitcnt vmcnt(0) lgkmcnt(0)", "s_waitcnt lgkmcnt(0)", "s_nop 0"][p])
    else:
        a(["s_waitcnt lgkmcnt(0)", "s_waitcnt lgkmcnt(0)", "s_waitcnt lgkmcnt(0)", "s_nop 0"][p])


def finish_stats(a, L):
    P = V_PART
    a("s_waitcnt vmcnt(0)")
    for i in range(5):
        a(f"v_add_f32 v{P + 2*i}, v{P + 2*i}, v{P + 10 + 2*i}")
        a(f"v_add_f32 v{P + 2*i + 1}, v{P + 2*i + 1}, v{P + 11 + 2*i}")
    for (d, x) in ((0, 2), (4, 6), (0, 8), (0, 4)):
        a(f"v_add_f32 v{P + d}, v{P + d}, v{P + x}")
        a(f"v_add_f32 v{P + d + 1}, v{P + d + 1}, v{P + x + 1}")
    a(f"s_and_b32 s62, s{S_WAVE}, 1")
    a("s_lshl_b32 s62, s62, 6")
    a(f"v_add_u32 v{V_T1}, s62, v{V_LANE}")
    a(f"s_cmp_ge_u32 s{S_WAVE}, 6")
    a(f"s_cbranch_scc1 {L}_FCS")
    A, B = V_T2, V_T3
    a(f"v_mul_f32 v{P}, 0x3acccccd, v{P}")
    a(f"v_mul_f32 v{B}, 0x3acccccd, v{P+1}")
    a(f"v_lshlrev_b32 v{V_T1}, 2, v{V_T1}")
    a(f"v_fma_f32 v{B}, -v{P}, v{P}, v{B}")
    a(f"v_add_u32 v{V_T1}, {ST}, v{V_T1}")
    a(f"v_max_f32 v{B}, 0, v{B}")
    a(f"v_cvt_pk_bf16_f32 v{V_T0}, v{P}, v{B}")
    a(f"v_lshlrev_b32 v{A}, 16, v{V_T0}")
    a(f"v_and_b32 v{B}, 0xffff0000, v{V_T0}")
    a(f"v_add_f32 v{B}, 0x{EPS5:x}, v{B}")
    a(f"v_sub_f32 v{A}, 0, v{A}")
    a(f"v_cvt_pk_bf16_f32 v{V_T0}, v{B}, v{B}")
    a(f"v_lshlrev_b32 v{B}, 16, v{V_T0}")
    a(f"v_sqrt_f32 v{B}, v{B}")
    a(f"v_cvt_pk_bf16_f32 v{V_T0}, v{B}, v{B}")
    a(f"v_lshlrev_b32 v{B}, 16, v{V_T0}")
    a(f"v_rcp_f32 v{B}, v{B}")
    a(f"ds_write_b32 v{V_T1}, v{A}")
    a(f"ds_write_b32 v{V_T1}, v{B} offset:512")
    a(f"s_branch {L}_FDONE")
    a.label(f"{L}_FCS")
    a(f"v_lshlrev_b32 v{V_T1}, 3, v{V_T1}")
    a(f"v_add_u32 v{V_T1}, {CS}, v{V_T1}")
    a(f"ds_write_b64 v{V_T1}, {vr(P, 2)}")
    a.label(f"{L}_FDONE")


def check_all(a, L):
    a(f"s_cmp_eq_u32 s{S_WAVE}, 7")
    a(f"s_cbranch_scc0 {L}_GDONE")
    a("s_waitcnt vmcnt(0)")
    a(f"s_mov_b32 s63, {SPIN_MAX}")
    a.label(f"{L}_GALL_W")
    a(f"v_cmp_eq_u32 vcc, 16, v{V_ALL}")
    a("s_sub_u32 s63, s63, 1")
    a("s_cmp_eq_u32 s63, 0")
    a(f"s_cbranch_scc1 {L}_GDONE")
    a("s_cmp_eq_u64 vcc, -1")
    a(f"s_cbranch_scc1 {L}_GDONE")
    a("s_sleep 4")
    a(f"v_and_b32 v{V_T0}, 15, v{V_LANE}")
    a(f"v_lshlrev_b32 v{V_T0}, 7, v{V_T0}")
    a(f"s_mov_b32 s62, {CNT_W}")
    a(f"buffer_load_dword v{V_ALL}, v{V_T0}, s[28:31], s62 offen sc1")
    a("s_waitcnt vmcnt(0)")
    a(f"s_branch {L}_GALL_W")
    a.label(f"{L}_GDONE")


def emit_main(a, role):
    hook_masks(a)
    a("s_mov_b64 vcc, 0")
    a(f"s_cmp_ge_u32 s{S_WAVE}, 4")
    a(f"s_cbranch_scc1 {role.L}S_LOOP")
    for loader in (True, False):
        L = role.L + ("L" if loader else "S")
        a.label(f"{L}_LOOP")
        for p in range(4):
            emit_step(a, role, p, "mid", loader)
        a(f"s_cmp_lt_u32 s{S_STEP}, 16")
        a(f"s_cbranch_scc1 {L}_LOOP")
        stamp(a, 2, 3)
        for p in range(4):
            emit_step(a, role, p, "last", loader)
        if loader:
            a(f"s_branch {role.L}_EPI")


def job_issue(a):
    a(f"s_mul_hi_u32 s{S_JST}, s{S_JOB}, 0x1999999a")
    a(f"s_mul_i32 s63, s{S_JST}, 10")
    a(f"s_sub_u32 s{S_JLN}, s{S_JOB}, s63")
    a(f"s_cmp_lt_u32 s{S_JST}, 54")
    a("s_cselect_b32 s36, s16, s14")
    a("s_cselect_b32 s37, s17, s15")
    a(f"s_mov_b32 s38, {DFF*D*2}")
    a(f"s_cselect_b32 s38, s38, {D*D*2}")
    a("s_mov_b32 s39, 0x20000")
    a("s_cselect_b32 s64, 0, 54")
    a(f"s_sub_u32 s{S_JBK}, s{S_JST}, s64")
    a(f"s_mul_i32 s65, s{S_JBK}, 40960")
    a(f"s_lshl_b32 s66, s{S_JLN}, 7")
    a("s_add_u32 s65, s65, s66")
    a(f"v_lshrrev_b32 v{V_T0}, 3, v{V_LANE}")
    a(f"v_mul_u32_u24 v{V_T0}, 1280, v{V_T0}")
    a(f"v_and_b32 v{V_T1}, 7, v{V_LANE}")
    a(f"v_lshl_add_u32 v{V_T0}, v{V_T1}, 4, v{V_T0}")
    a(f"s_lshl_b32 s66, s{S_WAVE}, 12")
    for q in range(4):
        a(f"s_add_u32 m0, s66, {JB - 16384 + 1024*q}")
        a(f"buffer_load_dwordx4 v{V_T0}, s[36:39], s65 offen lds")
        if q < 3:
            a("s_add_u32 s65, s65, 10240")


def job_finish(a, L):
    a("s_waitcnt vmcnt(0)")
    R = [228, 232, 236, 248]
    A, B = 252, 253
    a(f"v_lshrrev_b32 v{A}, 4, v{V_LANE}")
    a(f"v_bfe_u32 v{B}, v{V_LANE}, 2, 2")
    a(f"v_lshl_add_u32 v{A}, v{A}, 2, v{B}")
    a(f"v_lshlrev_b32 v{A}, 7, v{A}")
    a(f"v_and_b32 v{B}, 3, v{V_LANE}")
    a(f"v_lshl_add_u32 v{A}, v{B}, 3, v{A}")
    a(f"s_lshl_b32 s66, s{S_WAVE}, 12")
    a(f"s_add_u32 s66, s66, {JB - 16384}")
    a(f"v_add_u32 v{A}, s66, v{A}")
    for jl in range(4):
        for b in range(2):
            a(f"ds_read_b64_tr_b16 {vr(R[jl] + 2*b, 2)}, v{A} offset:{2048*b + 32*jl}")
    a(f"s_cmp_lt_u32 s{S_JST}, 54")
    a(f"s_cbranch_scc0 {L}_JO")
    a(f"s_mov_b32 s66, s{S_JST}")
    for th in (14, 28, 41):
        a(f"s_cmp_ge_u32 s{S_JST}, {th}")
        a("s_cselect_b32 s67, 5, 0")
        a("s_add_u32 s66, s66, s67")
    a(f"s_branch {L}_JS")
    a.label(f"{L}_JO")
    a(f"s_add_u32 s66, s{S_JBK}, 14")
    for th, inc in ((5, 14), (10, 13), (15, 13)):
        a(f"s_cmp_ge_u32 s{S_JBK}, {th}")
        a(f"s_cselect_b32 s67, {inc}, 0")
        a("s_add_u32 s66, s66, s67")
    a.label(f"{L}_JS")
    a("s_mul_i32 s66, s66, 40")
    a(f"s_lshl_b32 s67, s{S_JLN}, 2")
    a("s_add_u32 s66, s66, s67")
    a("s_lshl_b32 s66, s66, 10")
    a(f"s_add_u32 s66, s66, {WF}")
    a(f"v_lshlrev_b32 v{B}, 4, v{V_LANE}")
    a("s_waitcnt lgkmcnt(0)")
    for jl in range(4):
        a(f"buffer_store_dwordx4 {vr(R[jl], 4)}, v{B}, s[28:31], s66 offen offset:{1024*jl} sc1")


def emit_hooks(a, role):
    for loader in (True, False):
        emit_hooks_of(a, role, loader)


def emit_hooks_of(a, role, loader):
    L = role.L + ("L" if loader else "S")
    for p in range(4):
        a.label(f"{L}_XT{p}")
        if p < 2:
            for m in role.extras(p):
                a(m)
        a(f"s_branch {L}_XT{p}_B")

    def at_step(X, n, tag, body, wave7=False):
        a(f"s_cmp_eq_u32 s{S_STEP}, {n}")
        a(f"s_cbranch_scc0 {X}_{tag}")
        body()
        a.label(f"{X}_{tag}")

    def store_partials():
        a(f"v_lshlrev_b32 v{V_T0}, 4, v{V_LANE}")
        a(f"v_add_u32 v{V_T1}, {PUBS}, v{V_T0}")
        a(f"ds_read_b128 v[228:231], v{V_T1}")
        a(f"ds_read_b128 v[232:235], v{V_T1} offset:1024")
        a(f"s_lshl_b32 s62, s{S_T}, 4")
        a(f"s_add_u32 s62, s62, s{S_CG}")
        a("s_lshl_b32 s62, s62, 10")
        a(f"s_add_u32 s62, s62, {SP}")
        a(f"s_lshl_b32 s63, s{S_CG}, 4")
        a(f"s_add_u32 s63, s63, s{S_T}")
        a("s_lshl_b32 s63, s63, 10")
        a(f"s_add_u32 s63, s63, {CP}")
        a("s_waitcnt lgkmcnt(0)")
        a(f"buffer_store_dwordx4 v[228:231], v{V_T0}, s[28:31], s62 offen sc1")
        a(f"buffer_store_dwordx4 v[232:235], v{V_T0}, s[28:31], s63 offen sc1")

    def flag(X):
        a("s_waitcnt vmcnt(0)")
        a(f"s_mov_b32 s63, {SPIN_MAX}")
        a.label(f"{X}_W")
        a(f"v_readfirstlane_b32 s62, v{V_INIT}")
        a("s_sub_u32 s63, s63, 1")
        a("s_cmp_eq_u32 s63, 0")
        a(f"s_cbranch_scc1 {X}_G")
        a(f"s_cmp_ge_u32 s62, {NZERO}")
        a(f"s_cbranch_scc1 {X}_G")
        a("s_sleep 4")
        a(f"buffer_load_dword v{V_INIT}, v{V_ZERO}, s[32:35], 0 offen sc1")
        a("s_waitcnt vmcnt(0)")
        a(f"s_branch {X}_W")
        a.label(f"{X}_G")
        stamp(a, 3, 3)
        a(f"v_mov_b32 v{V_T0}, 1")
        a("s_mov_b64 exec, 3")
        a(f"buffer_atomic_add v{V_T0}, v{V_PADR}, s[28:31], 0 offen")
        a("s_mov_b64 exec, -1")

    def check(X):
        stamp(a, 4, 3)
        a("s_waitcnt vmcnt(0)")
        a(f"s_mov_b32 s63, {SPIN_MAX}")
        a.label(f"{X}_CW")
        a(f"v_cmp_eq_u32 vcc, 16, v{V_POLL}")
        a("s_sub_u32 s63, s63, 1")
        a("s_cmp_eq_u32 s63, 0")
        a(f"s_cbranch_scc1 {X}_CG")
        a("s_cmp_eq_u64 vcc, -1")
        a(f"s_cbranch_scc1 {X}_CG")
        a("s_sleep 4")
        a(f"buffer_load_dword v{V_POLL}, v{V_PADR}, s[28:31], 0 offen sc1")
        a("s_waitcnt vmcnt(0)")
        a(f"s_branch {X}_CW")
        a.label(f"{X}_CG")
        stamp(a, 5, 3)

    def load_partials():
        a(f"s_and_b32 s62, s{S_WAVE}, 1")
        a("s_lshl_b32 s62, s62, 6")
        a(f"v_add_u32 v{V_T1}, s62, v{V_LANE}")
        a(f"v_lshlrev_b32 v{V_T1}, 3, v{V_T1}")
        a(f"s_lshl_b32 s62, s{S_T}, 14")
        a(f"s_add_u32 s62, s62, {SP}")
        a(f"s_lshl_b32 s63, s{S_CG}, 14")
        a(f"s_add_u32 s63, s63, {CP}")
        a(f"s_cmp_lt_u32 s{S_WAVE}, 6")
        a("s_cselect_b32 s62, s62, s63")
        for n in range(10):
            a(f"buffer_load_dwordx2 {vr(V_PART + 2*n, 2)}, v{V_T1}, s[28:31], s62 offen offset:{1024*(n & 3)} sc1")
            if n & 3 == 3:
                a("s_add_u32 s62, s62, 4096")
        a(f"v_and_b32 v{V_T0}, 15, v{V_LANE}")
        a(f"v_lshlrev_b32 v{V_T0}, 7, v{V_T0}")
        a(f"s_mov_b32 s62, {CNT_W}")
        a(f"buffer_load_dword v{V_ALL}, v{V_T0}, s[28:31], s62 offen sc1")

    def flag_w():
        a(f"s_lshl_b32 s62, s{S_T}, 7")
        a(f"s_add_u32 s62, s62, {CNT_W}")
        a(f"v_mov_b32 v{V_T0}, 1")
        a("s_mov_b64 exec, 1")
        a(f"buffer_atomic_add v{V_T0}, v{V_ZERO}, s[28:31], s62 offen")
        a("s_mov_b64 exec, -1")

    for p in range(4):
        X = f"{L}_HK{p}"
        a.label(X)
        if p == 2:
            at_step(X, 2, "a", lambda: role.stage(a))
        if not loader:
            if p == 0:
                at_step(X, 12, "b", lambda: check(X))
            if p == 1:
                w7 = f"{X}_w7"
                at_step(X, 13, "b", load_partials)
                a(f"s_cmp_eq_u32 s{S_WAVE}, 7")
                a(f"s_cbranch_scc0 {w7}")
                at_step(X, 9, "g", lambda: a(f"buffer_load_dword v{V_POLL}, v{V_PADR}, s[28:31], 0 offen sc1"))
                a.label(w7)
            if p == 2:
                w7 = f"{X}_w7"
                a(f"s_cmp_eq_u32 s{S_WAVE}, 7")
                a(f"s_cbranch_scc0 {w7}")
                at_step(X, 6, "f", lambda: flag(X))
                a.label(w7)
                a(f"s_cmp_lt_u32 s{S_JOB}, 740")
                a(f"s_cbranch_scc0 {X}_B")
                at_step(X, 2, "d", lambda: job_finish(a, X))
                at_step(X, 6, "e", lambda: a("s_waitcnt vmcnt(0)"))
            if p == 3:
                def store_and_init():
                    store_partials()
                    a(f"buffer_load_dword v{V_INIT}, v{V_ZERO}, s[32:35], 0 offen sc1")
                at_step(X, 3, "b", store_and_init)
                at_step(X, 7, "c", flag_w)
        a(f"s_branch {X}_B")


def poll_address(a):
    a(f"v_mov_b32 v{V_ZERO}, 0")
    a(f"s_lshl_b32 s74, s{S_T}, 7")
    a(f"s_add_u32 s74, s74, {CNT_S}")
    a(f"s_lshl_b32 s75, s{S_CG}, 7")
    a(f"s_add_u32 s75, s75, {CNT_C}")
    a(f"v_mov_b32 v{V_T1}, s74")
    a(f"v_mov_b32 v{V_T2}, s75")
    a(f"v_and_b32 v{V_T3}, 1, v{V_LANE}")
    a(f"v_cmp_eq_u32 vcc, 1, v{V_T3}")
    a(f"v_cndmask_b32 v{V_PADR}, v{V_T1}, v{V_T2}, vcc")


def line_dma_voffsets(a, stride_s, coloff_s):
    a(f"v_bfe_u32 v22, v{V_LANE}, 4, 1")
    a("v_lshlrev_b32 v22, 1, v22")
    a("v_xor_b32 v22, v22, v21")
    a(f"v_mul_lo_u32 v24, v20, s{stride_s}")
    a("v_lshl_add_u32 v24, v22, 4, v24")
    a(f"v_add_u32 v{V_W[0]}, s{coloff_s}, v24")
    a(f"s_lshl_b32 s{S_A}, s{stride_s}, 3")
    a(f"s_lshl_b32 s{S_B}, s{stride_s}, 4")
    a(f"v_xor_b32 v24, 64, v{V_W[0]}")
    a(f"v_add_u32 v{V_W[1]}, s{S_A}, v24")
    a(f"v_add_u32 v{V_W[2]}, s{S_B}, v{V_W[0]}")
    a(f"v_add_u32 v{V_W[3]}, s{S_B}, v{V_W[1]}")


def x_dma_voffsets(a):
    a(f"v_lshrrev_b32 v20, 3, v{V_LANE}")
    a(f"v_and_b32 v21, 7, v{V_LANE}")
    a(f"v_lshrrev_b32 v22, 4, v{V_LANE}")
    a(f"s_lshl_b32 s{S_A}, s{S_T}, 7")
    a(f"s_lshl_b32 s{S_B}, s{S_WAVE}, 5")
    a(f"s_add_u32 s{S_A}, s{S_A}, s{S_B}")
    a(f"v_add_u32 v24, s{S_A}, v20")
    a("v_mul_u32_u24 v24, 1280, v24")
    a("v_xor_b32 v23, v22, v21")
    a(f"v_lshl_add_u32 v{V_X[0]}, v23, 4, v24")
    a(f"v_xor_b32 v23, 64, v{V_X[0]}")
    a(f"v_add_u32 v{V_X[1]}, 10240, v23")
    a(f"v_add_u32 v{V_X[2]}, 20480, v{V_X[0]}")
    a(f"v_add_u32 v{V_X[3]}, 20480, v{V_X[1]}")
    a(f"s_lshl_b32 s{S_LX}, s{S_WAVE}, 12")
    a(f"s_add_u32 s{S_LX}, s{S_LX}, {XB}")
    a(f"s_lshl_b32 s{S_XO}, s75, 7")


def hq_line_code(a, dst, lreg):
    a(f"s_mov_b32 s{dst}, 0x{hq_word(HQ_TABLE[0]):x}")
    for hq in range(1, 8):
        a(f"s_cmp_eq_u32 s{S_IDX}, {hq}")
        a(f"s_cselect_b32 s{dst}, 0x{hq_word(HQ_TABLE[hq]):x}, s{dst}")
    a(f"s_lshl_b32 s65, s{lreg}, 3")
    a(f"s_lshr_b32 s{dst}, s{dst}, s65")


def line_read_addr(a, dst, u_s, u_add, base_s, base_add):
    a(f"v_lshrrev_b32 v56, 4, v{V_LANE}")
    a(f"v_bfe_u32 v57, v{V_LANE}, 2, 2")
    a(f"v_bfe_u32 v58, v{V_LANE}, 1, 1")
    a("v_lshrrev_b32 v59, 1, v57")
    a("v_and_b32 v60, 1, v56")
    a("v_lshl_or_b32 v59, v60, 1, v59")
    a("v_lshlrev_b32 v59, 1, v59")
    if u_s is None:
        a(f"v_or_b32 v60, {2*u_add}, v58")
    else:
        a(f"s_xor_b32 s{S_B}, s{u_s}, {u_add}")
        a(f"s_lshl_b32 s{S_B}, s{S_B}, 1")
        a(f"v_or_b32 v60, s{S_B}, v58")
    a("v_xor_b32 v60, v60, v59")
    a("v_lshl_add_u32 v61, v56, 3, v57")
    a("v_lshlrev_b32 v61, 7, v61")
    a("v_lshl_add_u32 v61, v60, 4, v61")
    a(f"v_and_b32 v60, 1, v{V_LANE}")
    a("v_lshl_add_u32 v61, v60, 3, v61")
    a(f"v_add_u32 v61, s{base_s}, v61")
    if base_add:
        a(f"v_add_u32 v{dst}, {base_add}, v61")
    else:
        a(f"v_mov_b32 v{dst}, v61")


def set_exec(a, m):
    a(f"s_mov_b32 exec_lo, 0x{m & 0xffffffff:x}")
    a(f"s_mov_b32 exec_hi, 0x{m >> 32:x}")


def signal(a, tag, lds_off, expected, action):
    a("s_waitcnt vmcnt(0)")
    a(f"v_mov_b32 v{V_T0}, {LW}")
    a(f"v_mov_b32 v{V_T1}, 1")
    a("s_mov_b64 exec, 1")
    a(f"ds_add_rtn_u32 v{V_T2}, v{V_T0}, v{V_T1} offset:{lds_off}")
    a("s_mov_b64 exec, -1")
    a("s_waitcnt lgkmcnt(0)")
    a(f"v_readfirstlane_b32 s62, v{V_T2}")
    a("s_add_u32 s62, s62, 1")
    a(f"s_cmp_eq_u32 s62, {expected}")
    a(f"s_cbranch_scc0 {tag}")
    action()
    a.label(tag)


def add_counter(a, base, index_s):
    a(f"s_lshl_b32 s62, s{index_s}, 7")
    a(f"s_add_u32 s62, s62, {base}")
    a("s_mov_b64 exec, 1")
    a(f"buffer_atomic_add v{V_T1}, v{V_ZERO}, s[28:31], s62 offen")
    a("s_mov_b64 exec, -1")


def sigma_h_scalar(a, dst, src):
    a(f"s_mov_b32 s{dst}, s{src}")
    for th in (14, 28, 41):
        a(f"s_cmp_ge_u32 s{src}, {th}")
        a("s_cselect_b32 s67, 5, 0")
        a(f"s_add_u32 s{dst}, s{dst}, s67")


def relu_batch(a, items):
    el = [e for (dst, pair) in items for e in pair]
    for (ac, cs, nm, rsh) in el:
        a(f"v_fma_f32 v{ac}, v{cs}, v{nm}, v{ac}")
    for (ac, cs, nm, rsh) in el:
        a(f"v_add_f32_e64 v{ac}, v{ac}, |v{ac}|")
    for (ac, cs, nm, rsh) in el:
        a(f"v_mul_f32 v{ac}, v{ac}, v{rsh}")
    for (dst, pair) in items:
        a(f"v_cvt_pk_bf16_f32 v{dst}, v{pair[0][0]}, v{pair[1][0]}")


def phi_batch(a, items, TP, keep=None):
    el = [e for (dst, pair) in items for e in pair]
    n = len(el)
    for (ac, cs, nm, rsh, rl, rs) in el:
        a(f"v_fma_f32 v{ac}, v{cs}, v{nm}, v{ac}")
    for i, (ac, cs, nm, rsh, rl, rs) in enumerate(el):
        a(f"v_mul_f32 v{TP+i}, v{ac}, v{rl}")
    if keep:
        for i, (ac, cs, nm, rsh, rl, rs) in enumerate(el):
            a(f"v_mul_f32 v{TP+n+i}, v{ac}, v{rs}")
    for i, (ac, cs, nm, rsh, rl, rs) in enumerate(el):
        a(f"v_exp_f32_e64 v{TP+i}, v{TP+i} clamp")
        a(f"v_add_f32_e64 v{ac}, v{ac}, |v{ac}|")
    for i, (ac, cs, nm, rsh, rl, rs) in enumerate(el):
        a(f"v_add_f32 v{TP+i}, s76, v{TP+i}")
    for i, (ac, cs, nm, rsh, rl, rs) in enumerate(el):
        a(f"v_fma_f32 v{ac}, v{ac}, v{rsh}, v{TP+i}")
    if keep:
        for i, (ac, cs, nm, rsh, rl, rs) in enumerate(el):
            a(f"v_cndmask_b32 v{ac}, v{TP+n+i}, v{ac}, {keep}")
    for (dst, pair) in items:
        a(f"v_cvt_pk_bf16_f32 v{dst}, v{pair[0][0]}, v{pair[1][0]}")


HQ_ACC = ACC
HQ_CS = ACC + 64
HQ_W = ACC + 72
HQ_X = HQ_W + 32
V_AW, V_AX = V_ADR, V_ADR + 4


def hq_acc(u, tt):
    return HQ_ACC + (u * 4 + tt) * 4


def hq_w(st, u):
    return HQ_W + 16 * st + 4 * u


def hq_x(st, kh, tt):
    return HQ_X + 32 * st + 16 * kh + 4 * tt


def hq_reads_w(slot, st):
    return [[f"ds_read_b64_tr_b16 {vr(hq_w(st, u) + 2*s, 2)}, v{V_AW + u} offset:{slot*SLOT + 512*s}"]
            for u in range(4) for s in range(2)]


def hq_reads_x(xs, st):
    return [[f"ds_read_b128 {vr(hq_x(st, kh, tt), 4)}, v{V_AX + 4*kh + tt} offset:{xs*SLOT}"]
            for kh in range(2) for tt in range(4)]


class HQ:
    L = "K1_HQ"
    reads_w = staticmethod(hq_reads_w)
    reads_x = staticmethod(hq_reads_x)

    @staticmethod
    def mfmas(p):
        ws, xs, kh = p & 1, (p >> 1) & 1, p & 1
        return [f"v_mfma_f32_16x16x32_bf16 {vr(hq_acc(u,tt),4)}, {vr(hq_w(ws,u),4)}, {vr(hq_x(xs,kh,tt),4)}, {vr(hq_acc(u,tt),4)}"
                for u in range(4) for tt in range(4)]

    @staticmethod
    def extras(p):
        ws, xs, kh = p & 1, (p >> 1) & 1, p & 1
        return [f"v_mfma_f32_16x16x32_bf16 {vr(HQ_CS+4*u,4)}, {vr(hq_w(ws,u),4)}, {vr(ONES,4)}, {vr(HQ_CS+4*u,4)}"
                for u in range(2)] + stats_mfma(hq_x(xs, kh, 0), False)

    @staticmethod
    def stage(a):
        a(f"s_and_b32 s70, s{S_WAVE}, 1")
        a(f"s_lshr_b32 s71, s{S_WAVE}, 1")
        a("s_lshl_b32 s72, s70, 6")
        a("s_lshl_b32 s73, s71, 4")
        a("s_add_u32 s73, s73, s72")
        stage_stats(a, 73)
        a("s_lshl_b32 s62, s71, 8")
        a(f"s_add_u32 s62, s62, {PUBC}")
        a(f"v_lshrrev_b32 v{V_T0}, 4, v{V_LANE}")
        a(f"v_lshlrev_b32 v{V_T0}, 4, v{V_T0}")
        a("s_lshl_b32 s74, s70, 1")
        for u in range(2):
            a(f"s_xor_b32 s75, s74, {u}")
            a("s_lshl_b32 s75, s75, 6")
            a("s_add_u32 s75, s75, s62")
            a(f"v_add_u32 v{V_T1}, s75, v{V_T0}")
            set_exec(a, 0x0001000100010001)
            a(f"ds_write_b128 v{V_T1}, {vr(HQ_CS + 4*u, 4)}")
            a("s_mov_b64 exec, -1")


def gen_hq(a):
    a.label("K1_HQ")
    a(f"s_and_b32 s62, s{S_WAVE}, 1")
    a(f"s_lshr_b32 s63, s{S_WAVE}, 1")
    a(f"s_cmp_ge_u32 s{S_WAVE}, 4")
    a("s_cbranch_scc1 K1_HQ_NODMA")
    hq_line_code(a, 64, S_WAVE)
    a("s_bitcmp1_b32 s64, 7")
    a("s_cselect_b32 s24, s6, s8")
    a("s_cselect_b32 s25, s7, s9")
    a(f"s_mov_b32 s26, {D*3*D*2}")
    a(f"s_cselect_b32 s26, s26, {D*DFF*2}")
    a("s_mov_b32 s27, 0x20000")
    a("s_mov_b32 s65, 3840")
    a("s_cselect_b32 s65, s65, 3456")
    a(f"s_lshl_b32 s{S_WSTEP}, s65, 5")
    a("s_and_b32 s66, s64, 63")
    a("s_lshl_b32 s66, s66, 7")
    line_dma_voffsets(a, 65, 66)
    a(f"s_lshl_b32 s66, s{S_WAVE}, 12")
    for q in range(4):
        a(f"s_add_u32 s{S_LW[q]}, s66, {1024*q}")
    prologue_dma(a)
    a.label("K1_HQ_NODMA")
    hq_line_code(a, 64, 63)
    a(f"s_and_b32 s{S_LINE}, s64, 63")
    a(f"s_bfe_u32 s{S_ISQ}, s64, 0x10007")
    a(f"s_bfe_u32 s{S_DUMMY}, s64, 0x10006")
    a(f"s_cmp_ge_u32 s{S_IDX}, 5")
    a("s_cselect_b32 s68, 1, 0")
    a(f"s_cmp_lt_u32 s{S_T}, 7")
    a("s_cselect_b32 s68, s68, 0")
    a(f"s_cmp_eq_u32 s{S_WAVE}, 6")
    a("s_cselect_b32 s68, s68, 0")
    a(f"s_sub_u32 s69, s{S_IDX}, 5")
    a("s_mul_i32 s69, s69, 7")
    a(f"s_add_u32 s69, s69, s{S_T}")
    a(f"s_cmp_lt_u32 s69, {NZERO}")
    a("s_cselect_b32 s68, s68, 0")
    a("s_cmp_eq_u32 s68, 1")
    a("s_cbranch_scc0 K1_NOZERO")
    a("s_lshl_b32 s69, s69, 12")
    a(f"s_add_u32 s69, s69, {KVA}")
    for r in range(4):
        a(f"v_mov_b32 v{32+r}, 0")
    a(f"v_lshlrev_b32 v36, 4, v{V_LANE}")
    for q in range(4):
        a(f"buffer_store_dwordx4 v[32:35], v36, s[28:31], s69 offen offset:{1024*q} sc1")
    a.label("K1_NOZERO")
    a(f"s_lshl_b32 s64, s62, 1")
    a("s_lshl_b32 s66, s63, 12")
    for u in range(4):
        line_read_addr(a, V_AW + u, 64, u, 66, 0)
    a(f"v_and_b32 v56, 15, v{V_LANE}")
    a(f"v_lshrrev_b32 v57, 4, v{V_LANE}")
    a("v_lshrrev_b32 v58, 1, v56")
    a("s_lshl_b32 s66, s62, 6")
    a("v_add_u32 v56, s66, v56")
    a("v_lshlrev_b32 v56, 7, v56")
    for kh in range(2):
        a(f"v_or_b32 v59, {4*kh}, v57")
        a("v_xor_b32 v59, v59, v58")
        a("v_lshl_add_u32 v59, v59, 4, v56")
        for tt in range(4):
            a(f"s_xor_b32 s66, s63, {tt}")
            a("s_lshl_b32 s66, s66, 11")
            a(f"s_add_u32 s66, s66, {XB}")
            a(f"v_add_u32 v{V_AX + 4*kh + tt}, s66, v59")
    init_common(a, list(range(HQ_ACC, HQ_ACC + 72)))
    stamp(a, 2, 1)
    a("s_waitcnt vmcnt(4)")
    a("s_barrier")
    stamp(a, 3, 1)
    stamp(a, 1, 3)
    for f in hq_reads_w(0, 0) + hq_reads_x(0, 0):
        a(f[0])
    prologue_dma2(a, "K1_HQ")
    a("s_waitcnt vmcnt(12) lgkmcnt(0)")
    a("s_cmp_eq_u32 s68, 1")
    a("s_cbranch_scc0 K1_NOZSIG")
    a("s_waitcnt vmcnt(0)")
    a("v_mov_b32 v10, 1")
    a("v_mov_b32 v11, 0")
    a("s_mov_b64 exec, 1")
    a("buffer_atomic_add v10, v11, s[32:35], 0 offen")
    a("s_mov_b64 exec, -1")
    a.label("K1_NOZSIG")
    emit_main(a, HQ)

    a.label("K1_HQ_EPI")
    a("s_barrier")
    stamp(a, 4, 1)
    stamp(a, 6, 3)
    stamp(a, 1, 5)
    a(f"s_and_b32 s70, s{S_WAVE}, 1")
    a(f"s_lshr_b32 s71, s{S_WAVE}, 1")
    a("s_lshl_b32 s72, s70, 6")
    a(f"v_lshrrev_b32 v16, 4, v{V_LANE}")
    a("v_lshlrev_b32 v17, 4, v16")
    a("s_lshl_b32 s73, s71, 8")
    a(f"s_add_u32 s73, s73, {CS}")
    a("s_lshl_b32 s74, s70, 1")
    for u in range(4):
        a(f"s_xor_b32 s75, s74, {u}")
        a("s_lshl_b32 s75, s75, 6")
        a("s_add_u32 s75, s75, s73")
        a(f"v_add_u32 v{18+u}, s75, v17")
    stamp(a, 5, 1)
    stamp(a, 7, 3)
    CSR, STR = HQ_W, HQ_W + 16
    for u in range(4):
        a(f"ds_read_b128 {vr(CSR + 4*u, 4)}, v{18+u}")
    a(f"v_and_b32 v16, 15, v{V_LANE}")
    a("v_add_u32 v16, s72, v16")
    a("v_lshlrev_b32 v16, 2, v16")
    for tt in range(4):
        a(f"s_xor_b32 s75, s71, {tt}")
        a("s_lshl_b32 s75, s75, 6")
        a(f"s_add_u32 s75, s75, {ST}")
        a("v_add_u32 v17, s75, v16")
        a(f"ds_read2_b32 {vr(STR + 2*tt, 2)}, v17 offset1:128")
    a(f"s_lshl_b32 s{S_T64}, s{S_T}, 1")
    a(f"s_add_u32 s{S_T64}, s{S_T64}, s70")
    a(f"v_lshlrev_b32 v16, 4, v{V_LANE}")
    a("s_waitcnt lgkmcnt(0)")
    a(f"s_cmp_eq_u32 s{S_DUMMY}, 1")
    a("s_cbranch_scc1 K1_HQ_END")
    PK = HQ_X
    RL = HQ_W + 24
    for tt in range(4):
        a(f"v_mul_f32 v{RL + 2*tt}, 0x{LOG2E:x}, v{STR + 2*tt + 1}")
        a(f"v_mul_f32 v{RL + 2*tt + 1}, 0.5, v{STR + 2*tt + 1}")
    a(f"s_cmp_eq_u32 s{S_ISQ}, 1")
    a("s_cbranch_scc1 K1_HQ_Q")
    for pr in range(2):
        a(f"s_xor_b32 s72, s70, {pr}")
        a(f"s_lshl_b32 s73, s{S_LINE}, 1")
        a("s_add_u32 s72, s72, s73")
        sigma_h_scalar(a, 73, 72)
        a(f"s_mul_i32 s74, s{S_T64}, {NSIG}")
        a("s_add_u32 s73, s73, s74")
        a("s_lshl_b32 s73, s73, 12")
        for tt in range(4):
            f = PK + 4 * (pr * 4 + tt)
            relu_batch(a, [(f + 2*uu + hh, [(hq_acc(2*pr + uu, tt) + 2*hh + z, CSR + 4*(2*pr + uu) + 2*hh + z, STR + 2*tt, RL + 2*tt + 1)
                                            for z in range(2)]) for uu in range(2) for hh in range(2)])
            a(f"s_xor_b32 s75, s71, {tt}")
            a("s_lshl_b32 s75, s75, 10")
            a("s_add_u32 s75, s75, s73")
            a(f"buffer_store_dwordx4 {vr(f, 4)}, v16, s[28:31], s75 offen{stfl()}")
    a(f"s_cmp_ge_u32 s{S_IDX}, 2")
    a("s_cselect_b32 s63, 6, 4")
    a(f"s_cmp_ge_u32 s{S_IDX}, 5")
    a("s_cselect_b32 s63, 4, s63")
    signal(a, "K1_HQ_SH", 16, "s63", lambda: add_counter(a, CNT_H, S_T))
    a("s_branch K1_HQ_FIN")
    a.label("K1_HQ_Q")
    a(f"s_mov_b32 s76, 0x{EPS6:x}")
    a(f"s_mov_b32 s77, 0x{EPS6:x}")
    TP = HQ_X + 32
    for pr in range(2):
        a(f"s_xor_b32 s72, s70, {pr}")
        a(f"s_lshl_b32 s73, s{S_LINE}, 1")
        a("s_add_u32 s72, s72, s73")
        a(f"s_mul_i32 s73, s{S_T64}, 40")
        a("s_add_u32 s73, s73, s72")
        a("s_lshl_b32 s73, s73, 11")
        a(f"s_add_u32 s73, s73, {PQ}")
        for tt in range(4):
            f = PK + 4 * (pr * 4 + tt)
            st = STR + 2 * tt
            items = [(f + 2*uu + hh, [(hq_acc(2*pr + uu, tt) + 2*hh + z, CSR + 4*(2*pr + uu) + 2*hh + z, st,
                                       RL + 2*tt + 1, RL + 2*tt, st + 1) for z in range(2)])
                     for uu in range(2) for hh in range(2)]
            phi_batch(a, items, TP)
            a(f"s_xor_b32 s75, s71, {tt}")
            a("s_lshr_b32 s74, s75, 1")
            a("s_mul_i32 s74, s74, 40960")
            a("s_and_b32 s75, s75, 1")
            a("s_lshl_b32 s75, s75, 10")
            a("s_add_u32 s75, s75, s74")
            a("s_add_u32 s75, s75, s73")
            a(f"buffer_store_dwordx4 {vr(f, 4)}, v16, s[28:31], s75 offen{stfl()}")
    a(f"s_cmp_ge_u32 s{S_IDX}, 2")
    a("s_cselect_b32 s63, 2, 4")
    signal(a, "K1_HQ_SQ", 20, "s63", lambda: add_counter(a, CNT_Q, S_T))
    a.label("K1_HQ_FIN")
    stamp(a, 6, 1)
    stamp(a, 7, 5)
    a.label("K1_HQ_END")
    a("s_branch PH2")
    emit_hooks(a, HQ)


def init_common(a, regs):
    poll_address(a)
    for r in list(range(GRAM, GRAM + 8)) + regs:
        a(f"v_mov_b32 v{r}, 0")
    for r in range(4):
        a(f"v_mov_b32 v{ONES + r}, 0x3f803f80")


KV_ACC = ACC
KV_CS = ACC + 56
KV_W = ACC + 64
KV_X = KV_W + 56
V_A01, V_A2, V_A34, V_AH = V_ADR, V_ADR + 1, V_ADR + 2, V_ADR + 3
V_AXK = V_ADR + 5
V_KVW = V_ADR + 9
ONES_UNITS = [(0, 1), (2, 3), (4, 5), (6,)]


def kv_acc(u, tt):
    return KV_ACC + (u * 2 + tt) * 4


def kv_w(st, u):
    return KV_W + 28 * st + 4 * u


def kv_x(st, kh, tt):
    return KV_X + 16 * st + 8 * kh + 4 * tt


def kv_reads_w(slot, st):
    f = []
    for u in range(7):
        for s in range(2):
            if u < 2:
                adr, off = V_A01, 32 * u + 1280 * s
            elif u == 2:
                adr, off = V_A2, 1280 * s
            elif u < 5:
                adr, off = V_A34, 32 * (u - 3) + 1280 * s
            else:
                adr, off = V_AH + (u - 5), 512 * s
            f.append([f"ds_read_b64_tr_b16 {vr(kv_w(st, u) + 2*s, 2)}, v{adr} offset:{slot*SLOT + off}"])
    return f


def kv_reads_x(xs, st):
    return [[f"ds_read_b128 {vr(kv_x(st, kh, tt), 4)}, v{V_AXK + 2*kh + tt} offset:{xs*SLOT}"]
            for kh in range(2) for tt in range(2)]


class KV:
    L = "K1_KV"
    reads_w = staticmethod(kv_reads_w)
    reads_x = staticmethod(kv_reads_x)

    @staticmethod
    def mfmas(p):
        ws, xs, kh = p & 1, (p >> 1) & 1, p & 1
        mf = []
        for u in range(7):
            w = vr(kv_w(ws, u), 4)
            for tt in range(2):
                x, d = vr(kv_x(xs, kh, tt), 4), vr(kv_acc(u, tt), 4)
                mf.append(f"v_mfma_f32_16x16x32_bf16 {d}, {x}, {w}, {d}" if u < 5 else
                          f"v_mfma_f32_16x16x32_bf16 {d}, {w}, {x}, {d}")
        return mf

    @staticmethod
    def extras(p):
        ws, xs, kh = p & 1, (p >> 1) & 1, p & 1
        mf = []
        for u in range(7):
            w, d = vr(kv_w(ws, u), 4), vr(CSX + 4 * u, 4)
            mf.append(f"v_mfma_f32_16x16x32_bf16 {d}, {vr(ONES,4)}, {w}, {d}" if u < 5 else
                      f"v_mfma_f32_16x16x32_bf16 {d}, {w}, {vr(ONES,4)}, {d}")
        return mf + stats_mfma(kv_x(xs, kh, 0), False)

    @staticmethod
    def stage(a):
        a(f"s_and_b32 s70, s{S_WAVE}, 1")
        a(f"s_lshr_b32 s71, s{S_WAVE}, 1")
        a("s_lshl_b32 s72, s71, 5")
        a("s_lshl_b32 s73, s70, 4")
        a("s_add_u32 s73, s73, s72")
        stage_stats(a, 73)
        a("s_lshl_b32 s62, s70, 9")
        a(f"s_add_u32 s62, s62, {PUBC}")
        a(f"v_and_b32 v{V_T0}, 15, v{V_LANE}")
        a(f"v_lshl_add_u32 v{V_T0}, v{V_T0}, 2, s62")
        a(f"v_lshrrev_b32 v{V_T1}, 4, v{V_LANE}")
        a(f"v_lshl_add_u32 v{V_T1}, v{V_T1}, 4, s62")
        set_exec(a, 0xFFFF)
        for u in range(5):
            a(f"ds_write_b32 v{V_T0}, v{CSX + 4*u} offset:{64*u}")
        set_exec(a, 0x0001000100010001)
        for u in range(5, 7):
            a(f"ds_write_b128 v{V_T1}, {vr(CSX + 4*u, 4)} offset:{320 + 64*(u-5)}")
        a("s_mov_b64 exec, -1")


def kv_tile_mask(ua, ub):
    m = 0
    for l in range(64):
        e16, g = l & 15, l >> 4
        d0 = 16 * ua + 4 * g
        e = {2: e16 - 8, 3: 8 + e16, 4: 24 + e16}[ub]
        if d0 < 40 and e >= 0 and (d0 >= 20) == (e >= 20):
            m |= 1 << l
    return m


def gen_kv(a):
    a.label("K1_KV")
    a(f"s_and_b32 s62, s{S_WAVE}, 1")
    a(f"s_lshr_b32 s63, s{S_WAVE}, 1")
    a(f"s_cmp_ge_u32 s{S_WAVE}, 4")
    a("s_cbranch_scc1 K1_KV_NODMA")
    a(f"s_cmp_lt_u32 s{S_WAVE}, 3")
    a("s_cbranch_scc0 K1_KV_HD")
    a("s_mov_b32 s24, s6")
    a("s_mov_b32 s25, s7")
    a(f"s_mov_b32 s26, {D*3*D*2}")
    a("s_mov_b32 s27, 0x20000")
    a(f"s_mov_b32 s{S_WSTEP}, {3840*32}")
    a(f"s_mul_i32 s67, s{S_IDX}, 160")
    a("s_add_u32 s67, s67, 1280")
    for h in range(2):
        a(f"s_lshl_b32 s64, s{S_WAVE}, 1")
        if h:
            a("s_add_u32 s64, s64, 1")
        a("s_lshl_b32 s70, s64, 6")
        a(f"v_add_u32 v22, s70, v{V_LANE}")
        a("v_mul_u32_u24 v23, 6554, v22")
        a("v_lshrrev_b32 v23, 16, v23")
        a("v_mul_u32_u24 v24, 10, v23")
        a("v_sub_u32 v22, v22, v24")
        a("v_and_b32 v24, 0x13, v23")
        a("v_bfe_u32 v25, v23, 2, 1")
        a("v_lshl_or_b32 v24, v25, 3, v24")
        a("v_bfe_u32 v25, v23, 3, 1")
        a("v_lshl_or_b32 v24, v25, 2, v24")
        a("v_mul_u32_u24 v24, 3840, v24")
        a("v_lshl_add_u32 v24, v22, 4, v24")
        a(f"s_lshl_b32 s{S_LW[2*h]}, s64, 10")
        a(f"s_add_u32 s{S_LW[2*h+1]}, s{S_LW[2*h]}, {VB}")
        if h:
            a("s_cmp_ge_u32 s64, 5")
            a(f"s_cselect_b32 s67, {OOB}, s67")
            a(f"s_cselect_b32 s{S_LW[2]}, {SLOT - 1024}, s{S_LW[2]}")
            a(f"s_cselect_b32 s{S_LW[3]}, {SLOT - 1024}, s{S_LW[3]}")
        a(f"v_add_u32 v{V_W[2*h]}, s67, v24")
        a(f"v_add_u32 v{V_W[2*h+1]}, 1280, v{V_W[2*h]}")
    a("s_branch K1_KV_D1")
    a.label("K1_KV_HD")
    a("s_mov_b32 s24, s8")
    a("s_mov_b32 s25, s9")
    a(f"s_mov_b32 s26, {D*DFF*2}")
    a("s_mov_b32 s27, 0x20000")
    a(f"s_mov_b32 s{S_WSTEP}, {3456*32}")
    a("s_mov_b32 s65, 3456")
    a(f"s_lshl_b32 s66, s{S_IDX}, 7")
    for q in range(4):
        a(f"s_mov_b32 s{S_LW[q]}, {HB + 1024*q}")
    line_dma_voffsets(a, 65, 66)
    a.label("K1_KV_D1")
    prologue_dma(a)
    a.label("K1_KV_NODMA")
    a(f"v_lshrrev_b32 v56, 4, v{V_LANE}")
    a(f"v_bfe_u32 v57, v{V_LANE}, 2, 2")
    a(f"v_and_b32 v58, 3, v{V_LANE}")
    a("v_lshrrev_b32 v59, 1, v56")
    a("v_lshlrev_b32 v59, 4, v59")
    a("v_and_b32 v60, 1, v56")
    a("v_lshl_add_u32 v59, v60, 2, v59")
    a("v_add_u32 v59, v59, v57")
    a("v_mul_u32_u24 v59, 160, v59")
    a("s_mul_i32 s64, s62, 80")
    a("v_add_u32 v59, s64, v59")
    a(f"v_lshl_add_u32 v{V_A01}, v58, 3, v59")
    a(f"v_add_u32 v{V_A34}, {VB + 16}, v{V_A01}")
    a(f"v_add_u32 v60, 64, v{V_A01}")
    a(f"v_add_u32 v61, {VB - 16}, v{V_A01}")
    a("v_cmp_gt_u32 vcc, 2, v58")
    a(f"v_cndmask_b32 v{V_A2}, v61, v60, vcc")
    a("s_lshl_b32 s64, s62, 1")
    a(f"s_mov_b32 s66, {HB}")
    for uu in range(2):
        line_read_addr(a, V_AH + uu, 64, uu, 66, 0)
    a(f"v_and_b32 v56, 15, v{V_LANE}")
    a(f"v_lshrrev_b32 v57, 4, v{V_LANE}")
    a("v_lshrrev_b32 v58, 1, v56")
    for tt in range(2):
        a(f"s_xor_b32 s64, s62, {tt}")
        a("s_lshl_b32 s64, s64, 4")
        a("s_lshl_b32 s65, s63, 5")
        a("s_add_u32 s64, s64, s65")
        a("v_add_u32 v60, s64, v56")
        a("v_lshlrev_b32 v60, 7, v60")
        for kh in range(2):
            a(f"v_or_b32 v59, {4*kh}, v57")
            a("v_xor_b32 v59, v59, v58")
            a("v_lshl_add_u32 v59, v59, 4, v60")
            a(f"v_add_u32 v{V_AXK + 2*kh + tt}, {XB}, v59")
    a("v_mul_u32_u24 v59, 80, v56")
    a("v_lshl_add_u32 v59, v57, 4, v59")
    a("s_mul_i32 s64, s63, 6720")
    a("s_mul_i32 s65, s62, 3360")
    a("s_add_u32 s64, s64, s65")
    a(f"s_add_u32 s64, s64, {KVR - 640}")
    a(f"v_add_u32 v{V_KVW}, s64, v59")
    init_common(a, list(range(KV_ACC, KV_ACC + 56)) + list(range(CSX, CSX + 28)))
    stamp(a, 2, 1)
    a("s_waitcnt vmcnt(4)")
    a("s_barrier")
    stamp(a, 3, 1)
    stamp(a, 1, 3)
    for f in kv_reads_w(0, 0) + kv_reads_x(0, 0):
        a(f[0])
    prologue_dma2(a, "K1_KV")
    a("s_waitcnt vmcnt(12) lgkmcnt(0)")
    emit_main(a, KV)

    a.label("K1_KV_EPI")
    a("s_barrier")
    stamp(a, 4, 1)
    stamp(a, 6, 3)
    stamp(a, 1, 5)
    a(f"s_and_b32 s70, s{S_WAVE}, 1")
    a(f"s_lshr_b32 s71, s{S_WAVE}, 1")
    a("s_lshl_b32 s72, s71, 5")
    stamp(a, 5, 1)
    stamp(a, 7, 3)
    NM, RSV, RL = KV_W, KV_W + 8, KV_W + 16
    CSK = KV_W + 24
    CSH = KV_W + 32
    STH = KV_W + 40
    TP = KV_X + 32
    FR = KV_X
    a(f"v_lshrrev_b32 v16, 4, v{V_LANE}")
    a(f"v_and_b32 v17, 15, v{V_LANE}")
    for tt in range(2):
        a(f"s_xor_b32 s73, s70, {tt}")
        a("s_lshl_b32 s73, s73, 4")
        a("s_add_u32 s73, s73, s72")
        a("s_lshl_b32 s73, s73, 2")
        a(f"s_add_u32 s73, s73, {ST}")
        a("v_lshl_add_u32 v18, v16, 4, s73")
        a(f"ds_read_b128 {vr(NM + 4*tt, 4)}, v18")
        a(f"ds_read_b128 {vr(RSV + 4*tt, 4)}, v18 offset:512")
        a("v_lshl_add_u32 v19, v17, 2, s73")
        a(f"ds_read2_b32 {vr(STH + 2*tt, 2)}, v19 offset1:128")
    a("s_lshl_b32 s73, s70, 9")
    a(f"s_add_u32 s73, s73, {CS}")
    a("v_lshl_add_u32 v18, v17, 2, s73")
    for u in range(5):
        a(f"ds_read_b32 v{CSK + u}, v18 offset:{64*u}")
    a("v_lshl_add_u32 v18, v16, 4, s73")
    for uu in range(2):
        a(f"ds_read_b128 {vr(CSH + 4*uu, 4)}, v18 offset:{320 + 64*uu}")
    a(f"s_mov_b32 s76, 0x{EPS6:x}")
    a(f"s_mov_b32 s77, 0x{EPS6:x}")
    a("s_mov_b32 s78, 0x00ff00ff")
    a("s_mov_b32 s79, 0x00ff00ff")
    a("s_waitcnt lgkmcnt(0)")
    stamp(a, 2, 5)
    RSH, RSHH = KV_W + 44, KV_W + 52
    for i in range(8):
        a(f"v_mul_f32 v{RL + i}, 0x{LOG2E:x}, v{RSV + i}")
        a(f"v_mul_f32 v{RSH + i}, 0.5, v{RSV + i}")
    for tt in range(2):
        a(f"v_mul_f32 v{RSHH + tt}, 0.5, v{STH + 2*tt + 1}")
    a(f"s_lshl_b32 s72, s{S_IDX}, 1")
    a("s_add_u32 s72, s72, s70")
    sigma_h_scalar(a, 73, 72)
    a(f"s_lshl_b32 s{S_T64}, s{S_T}, 1")
    a("s_lshr_b32 s74, s71, 1")
    a(f"s_add_u32 s{S_T64}, s{S_T64}, s74")
    a(f"s_mul_i32 s74, s{S_T64}, {NSIG}")
    a("s_add_u32 s73, s73, s74")
    a("s_lshl_b32 s73, s73, 2")
    a("s_and_b32 s74, s71, 1")
    a("s_lshl_b32 s74, s74, 1")
    a("s_add_u32 s73, s73, s74")
    a(f"v_lshlrev_b32 v16, 4, v{V_LANE}")
    for tt in range(2):
        f = FR + 20 + 4 * tt
        relu_batch(a, [(f + 2*uu + hh, [(kv_acc(5 + uu, tt) + 2*hh + z, CSH + 4*uu + 2*hh + z, STH + 2*tt, RSHH + tt)
                                        for z in range(2)]) for uu in range(2) for hh in range(2)])
        a(f"s_xor_b32 s74, s70, {tt}")
        a("s_add_u32 s74, s74, s73")
        a("s_lshl_b32 s74, s74, 10")
        a(f"buffer_store_dwordx4 {vr(f, 4)}, v16, s[28:31], s74 offen{stfl()}")
    stamp(a, 3, 5)
    for u in range(5):
        cs = CSK + u
        items = []
        for tt in range(2):
            for hh in range(2):
                pair = []
                for z in range(2):
                    r = 4 * tt + 2 * hh + z
                    pair.append((kv_acc(u, tt) + 2 * hh + z, cs, NM + r, RSH + r, RL + r, RSV + r))
                items.append((FR + 4 * u + 2 * tt + hh, pair))
        if u < 3:
            phi_batch(a, items, TP, keep="s[78:79]" if u == 2 else None)
        else:
            el = [e for (dst, pair) in items for e in pair]
            for (ac, c, nm, rsh, rl, rs) in el:
                a(f"v_fma_f32 v{ac}, v{c}, v{nm}, v{ac}")
            for (ac, c, nm, rsh, rl, rs) in el:
                a(f"v_mul_f32 v{ac}, v{ac}, v{rs}")
            for (dst, pair) in items:
                a(f"v_cvt_pk_bf16_f32 v{dst}, v{pair[0][0]}, v{pair[1][0]}")
    stamp(a, 4, 5)
    tiles = [(0, 2), (0, 3), (1, 2), (1, 3), (1, 4), (2, 3), (2, 4)]
    KT = KV_ACC
    for i, (ua, ub) in enumerate(tiles):
        mfma(a, KT + 4 * i, FR + 4 * ua, FR + 4 * ub, "0")
    for ua in range(3):
        mfma(a, KT + 28 + 4 * ua, FR + 4 * ua, ONES, "0")
    for i, (ua, ub) in enumerate(tiles):
        eoff = {2: -8, 3: 8, 4: 24}[ub]
        set_exec(a, kv_tile_mask(ua, ub))
        a(f"ds_write_b128 v{V_KVW}, {vr(KT + 4*i, 4)} offset:{80*(eoff + 8) + 64*ua}")
    for ua in range(3):
        for hd in range(2):
            m = 0
            for g in range(4):
                d0 = 16 * ua + 4 * g
                if d0 < 40 and (d0 >= 20) == (hd == 1):
                    m |= 1 << (16 * g)
            if m:
                set_exec(a, m)
                a(f"ds_write_b128 v{V_KVW}, {vr(KT + 28 + 4*ua, 4)} offset:{640 + 1600*(hd+1) + 64*ua}")
    a("s_mov_b64 exec, -1")
    signal(a, "K1_KV_SH", 16, 8, lambda: add_counter(a, CNT_H, S_T))
    a("s_waitcnt lgkmcnt(0)")
    stamp(a, 5, 5)
    a("s_barrier")
    stamp(a, 6, 5)
    a(f"s_mul_i32 s72, s{S_IDX}, 6720")
    a(f"s_add_u32 s72, s72, {KVA}")
    a("s_add_u32 s40, s10, s72")
    a("s_addc_u32 s41, s11, 0")
    a("s_mov_b32 s42, 6720")
    a("s_mov_b32 s43, 0x20000")
    SM = KV_ACC

    def kv_replicas():
        a(f"s_lshl_b32 s62, s{S_IDX}, 9")
        a(f"s_add_u32 s62, s62, {CNT_KV}")
        a(f"v_lshlrev_b32 v{V_T0}, 7, v{V_LANE}")
        a(f"v_mov_b32 v{V_T1}, 1")
        a("s_mov_b64 exec, 15")
        a(f"buffer_atomic_add v{V_T1}, v{V_T0}, s[28:31], s62 offen")
        a("s_mov_b64 exec, -1")

    side_only = "kvside" in asmlib.EXP
    nthr = 256 if side_only else 512
    if side_only:
        a(f"s_cmp_lt_u32 s{S_WAVE}, 4")
        a("s_cbranch_scc1 K1_KV_MAINX")
        a("s_setprio 3")
    a(f"v_and_b32 v17, {nthr - 1}, v0")
    a("v_lshlrev_b32 v17, 2, v17")
    a(f"v_add_u32 v18, {KVR}, v17")
    a("v_add_u32 v19, 4096, v17")
    step = nthr * 4
    nr = -(-6720 // step)
    for n0 in range(0, nr, 3):
        ns = range(n0, min(n0 + 3, nr))
        for n in ns:
            for r in range(4):
                a(f"ds_read_b32 v{SM + 4*n + r}, v18 offset:{step*n + 6720*r}")
        a("s_waitcnt lgkmcnt(0)")
        for n in ns:
            a(f"v_add_f32 v{SM + 4*n}, v{SM + 4*n}, v{SM + 4*n + 1}")
            a(f"v_add_f32 v{SM + 4*n + 2}, v{SM + 4*n + 2}, v{SM + 4*n + 3}")
        for n in ns:
            a(f"v_add_f32 v{SM + 4*n}, v{SM + 4*n}, v{SM + 4*n + 2}")
        for n in ns:
            if step * n < 4096:
                a(f"buffer_atomic_add_f32 v{SM + 4*n}, v17, s[40:43], 0 offen offset:{step*n}")
            else:
                a(f"buffer_atomic_add_f32 v{SM + 4*n}, v19, s[40:43], 0 offen offset:{step*n - 4096}")
    stamp(a, 6, 1)
    stamp(a, 7, 5)
    if side_only:
        a("s_barrier")
    signal(a, "K1_KV_SK", 24, nthr // 64, kv_replicas)
    a("s_branch PH2")
    if side_only:
        a.label("K1_KV_MAINX")
        a("s_barrier")
        a("s_branch PH2")
    emit_hooks(a, KV)


def gen_km():
    a = Asm()
    a("s_cmp_ge_u32 s2, 256")
    a("s_cbranch_scc1 KM_END")
    if asmlib.DIAG:
        for i in range(80, 96):
            a(f"s_mov_b32 s{i}, 0")
    stamp(a, 0)
    a("s_load_dwordx4 s[4:7], s[0:1], 0")
    a("s_load_dwordx2 s[14:15], s[0:1], 16")
    a("s_load_dwordx2 s[8:9], s[0:1], 32")
    a("s_load_dwordx2 s[16:17], s[0:1], 40")
    a(f"s_load_dwordx2 s[{S_OUT}:{S_OUT+1}], s[0:1], 48")
    a("s_load_dwordx2 s[12:13], s[0:1], 56")
    a("s_load_dwordx2 s[10:11], s[0:1], 64")
    a(f"v_and_b32 v{V_LANE}, 63, v0")
    a("v_lshrrev_b32 v2, 6, v0")
    a("s_and_b32 s62, s2, 7")
    a(f"v_readfirstlane_b32 s{S_WAVE}, v2")
    a("s_lshr_b32 s63, s2, 3")
    a("s_and_b32 s64, s62, 1")
    a("s_lshl_b32 s64, s64, 3")
    a("s_and_b32 s65, s63, 7")
    a(f"s_add_u32 s{S_T}, s64, s65")
    a("s_lshr_b32 s64, s62, 1")
    a("s_lshr_b32 s65, s63, 3")
    a("s_lshl_b32 s64, s64, 1")
    a("s_and_b32 s66, s65, 1")
    a(f"s_add_u32 s{S_IDX}, s64, s66")
    a("s_lshr_b32 s66, s65, 1")
    a("s_lshl_b32 s66, s66, 3")
    a(f"s_add_u32 s{S_CG}, s{S_IDX}, s66")
    start_class(a)
    a(f"s_cmp_ge_u32 s{S_WAVE}, 4")
    a("s_cbranch_scc1 KM_SERVICE")
    x_dma_voffsets(a)
    a("s_waitcnt lgkmcnt(0)")
    srd(a, 20, 4, S * D * 2)
    for f in x_issue(0):
        for ins in f:
            a(ins)
    a("s_branch KM_COMMON")
    a.label("KM_SERVICE")
    if "nopf" not in asmlib.EXP:
        a.comment("pull this XCD's copy of the code into L2: one 8-KB part per workgroup")
        a("s_getpc_b64 s[70:71]")
        a.label("KM_PC")
        a("s_sub_u32 s70, s70, KM_PC-" + KM)
        a("s_subb_u32 s71, s71, 0")
        a("s_mul_hi_u32 s72, s63, 0x33333334")
        a("s_mul_i32 s72, s72, 5")
        a("s_sub_u32 s72, s63, s72")
        a("s_lshl_b32 s72, s72, 13")
        a(f"v_lshlrev_b32 v8, 7, v{V_LANE}")
        a("v_add_u32 v8, s72, v8")
        a("v_min_u32 v8, KM_CODE_END-" + KM + "-4, v8")
        a("v_mov_b32 v9, s71")
        a("v_add_co_u32 v8, vcc, s70, v8")
        a("v_addc_co_u32 v9, vcc, 0, v9, vcc")
        a(f"s_cmp_eq_u32 s{S_WAVE}, 7")
        a("s_cbranch_scc0 KM_NOPF")
        a("global_load_dword v255, v[8:9], off")
        a.label("KM_NOPF")
    for r in V_X:
        a(f"v_mov_b32 v{r}, 0")
    a(f"v_mov_b32 v6, {LW}")
    for o in (0, 8, 16, 24, 32):
        a(f"ds_write_b64 v6, v[4:5] offset:{o}")
    a("s_waitcnt lgkmcnt(0)")
    srd(a, 20, 4, S * D * 2)
    a(f"s_mov_b32 s{S_XO}, 0")
    a(f"s_mov_b32 s{S_LX}, 0")
    job_number(a)
    a(f"s_cmp_lt_u32 s{S_JOB}, 740")
    a("s_cbranch_scc0 KM_NOJOB")
    a("s_mov_b32 s73, s65")
    job_issue(a)
    a("s_mov_b32 s65, s73")
    a.label("KM_NOJOB")
    a("s_branch KM_COMMON2")
    a.label("KM_COMMON")
    a(f"s_mov_b32 s{S_JOB}, 1000")
    a.label("KM_COMMON2")
    for r in V_W:
        a(f"v_mov_b32 v{r}, 0")
    srd(a, 24, 4, S * D * 2)
    srd(a, 28, 10, WS_USED)
    srd(a, 32, 12, 256)
    a("s_cmp_ge_u32 s65, 2")
    a("s_cbranch_scc1 K1_HQ")
    gen_kv(a)
    gen_hq(a)
    gen_phase2(a, S_WAVE, S_T, S_CG, S_OUT)
    a.label("KM_END")
    a("s_endpgm")
    a.label("KM_CODE_END")
    a("s_endpgm")
    return a


if __name__ == "__main__":
    print(gen_km().text())
```

```python
import asmlib
from asmlib import *
from layout import *

RS = 336
REG = 64 * RS
IMGN = 65536
IMGD = IMGN + 10 * 2304
IMG_END = IMGD + 3 * 3328
TRASH = IMG_END
LW = 112640
KM_LDS = LW + 64
SPIN_MAX = 1 << 20

ACC = 16
SET0 = 96
V_XR0, V_XR1 = 240, 244
V_G0, V_G1, V_L0, V_L1 = 248, 249, 250, 251


def acc(j, tt):
    return ACC + (j * 4 + tt) * 4


def wfr(d, j):
    return SET0 + 36 * d + 4 * j


def afr(d, tt):
    return SET0 + 36 * d + 20 + 4 * tt


def srd(a, r, lo, size):
    a(f"s_mov_b32 s{r}, s{lo}")
    a(f"s_mov_b32 s{r+1}, s{lo+1}")
    a(f"s_mov_b32 s{r+2}, {size}")
    a(f"s_mov_b32 s{r+3}, 0x20000")


def head_num_mask(j, s, b):
    m = 0
    for l in range(64):
        e, g = 16 * j + (l & 15), l >> 4
        if e // 20 == (32 * s + 16 * b + 4 * g) // 20:
            m |= 1 << l
    return m


def head_den_mask(jb, jmax, s, b):
    m = 0
    for l in range(64):
        row, g = l & 15, l >> 4
        gp, rp = row >> 2, row & 3
        j = jb + rp
        if j <= jmax and (16 * j + 4 * gp) // 20 == (32 * s + 16 * b + 4 * g) // 20:
            m |= 1 << l
    return m


def load_group(a, d, which, first=False):
    kind, i = which
    if kind == "w":
        if i < 4:
            a(f"buffer_load_dwordx4 {vr(wfr(d, i), 4)}, v1, s[12:15], s31 offen offset:{1024*i}")
        else:
            a(f"buffer_load_dwordx4 {vr(wfr(d, i), 4)}, v2, s[12:15], s31 offen")
    else:
        fl = "" if "k2plain" in asmlib.EXP else " sc1"
        a(f"buffer_load_dwordx4 {vr(afr(d, i), 4)}, v1, s[12:15], s30 offen offset:{1024*i}{fl}")


def slot(a, d, wait, loads):
    a(f"s_waitcnt vmcnt({wait})")
    for j in range(5):
        for tt in range(4):
            if "k2nomfma" not in asmlib.EXP:
                a(f"v_mfma_f32_16x16x32_bf16 {vr(acc(j, tt), 4)}, {vr(wfr(d, j), 4)}, {vr(afr(d, tt), 4)}, {vr(acc(j, tt), 4)}")
            if "a" in loads and j == 4 and tt >= 1:
                load_group(a, d, ("a", tt - 1))
        if "w" in loads and j < 4:
            load_group(a, d, ("w", j))
    if "w" in loads:
        load_group(a, d, ("w", 4))
        a("s_add_u32 s31, s31, 40960")
    if "a" in loads:
        load_group(a, d, ("a", 3))
        a("s_add_u32 s30, s30, 4096")


def lds_wait(a, label, off, back=None):
    a(f"v_mov_b32 v4, {LW}")
    a(f"s_mov_b32 s39, {SPIN_LDS}")
    a.label(label)
    a(f"ds_read_b32 v5, v4 offset:{off}")
    a("s_waitcnt lgkmcnt(0)")
    a("v_readfirstlane_b32 s40, v5")
    a("s_sub_u32 s39, s39, 1")
    a("s_cmp_eq_u32 s39, 0")
    a(f"s_cbranch_scc1 {label}_X")
    a("s_cmp_eq_u32 s40, 0")
    a(f"s_cbranch_scc0 {label}_X")
    a("s_sleep 1")
    a(f"s_branch {label}")
    a.label(label + "_X")


def main_offsets(a):
    a("s_mul_i32 s27, s24, 19")
    a("s_cmp_eq_u32 s24, 3")
    a("s_cselect_b32 s27, 56, s27")
    a("s_lshr_b32 s28, s24, 1")
    a("s_add_u32 s28, s28, 1")
    a(f"s_mul_i32 s34, s25, {NSIG}")
    a("s_add_u32 s34, s34, s27")
    if "k2sameact" in asmlib.EXP:
        a("s_mov_b32 s34, s27")
    a("s_lshl_b32 s34, s34, 12")
    a("s_mul_i32 s35, s27, 40")
    a("s_mul_i32 s33, s26, 5")
    if "k2samew" in asmlib.EXP:
        a("s_mov_b32 s33, 0")
    a("s_add_u32 s35, s35, s33")
    a("s_lshl_b32 s35, s35, 10")
    a(f"s_add_u32 s35, s35, {WF}")
    for d in range(4):
        if d < 2:
            a(f"s_cmp_gt_u32 s28, {d}")
            a(f"s_cselect_b32 s{42+d}, {OOB}, s34")
            a(f"s_cselect_b32 s{46+d}, {OOB}, s35")
            a("s_cselect_b32 s36, 0, 4096")
            a("s_cselect_b32 s37, 0, 40960")
            a("s_add_u32 s34, s34, s36")
            a("s_add_u32 s35, s35, s37")
        else:
            a(f"s_mov_b32 s{42+d}, s34")
            a(f"s_mov_b32 s{46+d}, s35")
            a("s_add_u32 s34, s34, 4096")
            a("s_add_u32 s35, s35, 40960")


def gen_main(a):
    a.comment("main waves: stream the K quarter of this wave")
    main_offsets(a)
    for d in range(4):
        a(f"s_mov_b32 s31, s{46+d}")
        for j in range(5):
            load_group(a, d, ("w", j))
    if "wwarm" in asmlib.EXP:
        a.comment("warm this XCD's L2 with 1/8 of the rest of this wave's weight stream (slots 4 + 2r, 5 + 2r)")
        a("s_and_b32 s36, s25, 7")
        a("s_mul_i32 s36, s36, 81920")
        a("s_add_u32 s36, s36, s35")
        a("v_min_u32 v8, 39, v3")
        a("v_lshlrev_b32 v8, 7, v8")
        a("buffer_load_dword v254, v8, s[12:15], s36 offen")
        a("s_add_u32 s36, s36, 40960")
        a("buffer_load_dword v255, v8, s[12:15], s36 offen")
    for r in range(ACC, ACC + 80):
        a(f"v_mov_b32 v{r}, 0")
    stamp(a, 5, 6)
    a("s_cmp_eq_u32 s24, 0")
    a("s_cbranch_scc0 K2_HOTHER")
    a("s_lshr_b32 s40, s25, 1")
    a("s_lshl_b32 s40, s40, 7")
    a(f"s_add_u32 s40, s40, {CNT_H}")
    a("v_mov_b32 v6, s40")
    a("v_mov_b32 v8, 16")
    poll_counts(a, "K2_PH", 6, 8)
    a(f"v_mov_b32 v4, {LW}")
    a("v_mov_b32 v5, 1")
    a("ds_write_b32 v4, v5 offset:8")
    a.label("K2_HOTHER")
    lds_wait(a, "K2_HWAIT", 8)
    stamp(a, 1, 2)
    stamp(a, 6, 6)
    for d in range(4):
        a(f"s_mov_b32 s30, s{42+d}")
        for tt in range(4):
            load_group(a, d, ("a", tt))
    a("s_mov_b32 s30, s34")
    a("s_mov_b32 s31, s35")
    for d in range(4):
        slot(a, d, [12, 17, 22, 27][d], "wa")
    stamp(a, 2, 2)
    for i in range(4, 11):
        slot(a, i & 3, 27, "wa")
        if i == TRIG:
            a.comment("wave 0 asks the side wave to look at the o flags now")
            a("s_cmp_eq_u32 s24, 0")
            a("s_cbranch_scc0 K2_NOTRIG")
            a(f"v_mov_b32 v4, {LW}")
            a("v_mov_b32 v5, 1")
            a("ds_write_b32 v4, v5 offset:32")
            a.label("K2_NOTRIG")
    for i, w in ((11, 27), (12, 23), (13, 19), (14, 15)):
        slot(a, i & 3, w, "w")
    stamp(a, 6, 2)
    lds_wait(a, "K2_OWAIT", 4)
    stamp(a, 3, 2)
    for i in range(15, 19):
        for tt in range(4):
            load_group(a, i & 3, ("a", tt))
        a("s_add_u32 s30, s30, 4096")
    slot(a, 3, 12, "wa")
    for i, w in ((16, 17), (17, 13), (18, 9), (19, 0)):
        slot(a, i & 3, w, "")
    stamp(a, 4, 2)
    a("v_and_b32 v4, 15, v3")
    a("v_lshrrev_b32 v5, 4, v3")
    a(f"v_mul_u32_u24 v4, {RS}, v4")
    a("v_lshl_add_u32 v4, v5, 4, v4")
    a(f"s_mul_i32 s27, s24, {REG}")
    a("v_add_u32 v4, s27, v4")
    for tt in range(4):
        for j in range(5):
            a(f"ds_write_b128 v4, {vr(acc(j, tt), 4)} offset:{tt*16*RS + j*64}")
    a("s_branch K2_FINAL")


def side_sync(a, label, off):
    a("s_waitcnt lgkmcnt(0)")
    a(f"v_mov_b32 v4, {LW}")
    a("v_mov_b32 v5, 1")
    a(f"ds_add_u32 v4, v5 offset:{off}")
    a(f"s_mov_b32 s39, {SPIN_LDS}")
    a.label(label)
    a(f"ds_read_b32 v5, v4 offset:{off}")
    a("s_waitcnt lgkmcnt(0)")
    a("v_readfirstlane_b32 s40, v5")
    a("s_sub_u32 s39, s39, 1")
    a("s_cmp_eq_u32 s39, 0")
    a(f"s_cbranch_scc1 {label}_X")
    a("s_cmp_ge_u32 s40, 256")
    a(f"s_cbranch_scc0 {label}")
    a.label(label + "_X")


OA = 56
OZ = 61
KVR_ = 64


def side_prepare(a):
    a.comment("zero the fragment images: 33 KB, nine 1-KB rows per wave")
    for r in range(64, 68):
        a(f"v_mov_b32 v{r}, 0")
    a("s_sub_u32 s36, s24, 4")
    a("s_mul_i32 s36, s36, 9216")
    a(f"s_add_u32 s36, s36, {IMGN}")
    a("v_add_u32 v4, s36, v1")
    for n in range(9):
        a(f"ds_write_b128 v4, v[64:67] offset:{1024*n}")
    a("v_and_b32 v8, 255, v0")
    for n in range(4):
        d = OA + n
        a(f"v_add_u32 v9, {256*n}, v8")
        a("v_mul_u32_u24 v10, 9987, v9")
        a("v_lshrrev_b32 v10, 20, v10")
        a("v_mul_u32_u24 v11, 105, v10")
        a("v_sub_u32 v11, v9, v11")
        a("v_mul_u32_u24 v12, 52429, v11")
        a("v_lshrrev_b32 v12, 18, v12")
        a("v_mul_u32_u24 v13, 5, v12")
        a("v_sub_u32 v13, v11, v13")
        a("v_mul_u32_u24 v10, 20, v10")
        a("v_add_u32 v12, v10, v12")
        a("v_lshl_add_u32 v13, v13, 2, v10")
        a("v_lshrrev_b32 v14, 4, v12")
        a("v_and_b32 v12, 15, v12")
        a("v_max_u32 v15, 1, v14")
        a("v_subrev_u32 v15, 1, v15")
        a("v_lshrrev_b32 v15, 1, v15")
        a("v_lshlrev_b32 v15, 5, v15")
        a("v_sub_u32 v13, v13, v15")
        a("v_mul_u32_u24 v14, 2304, v14")
        a("v_mul_u32_u24 v12, 144, v12")
        a("v_add_u32 v14, v14, v12")
        a("v_lshl_add_u32 v14, v13, 1, v14")
        a(f"v_add_u32 v14, {IMGN}, v14")
        a("v_cmp_gt_u32 vcc, 100, v11")
        a(f"v_mov_b32 v15, {TRASH}")
        a(f"v_cndmask_b32 v{d}, v15, v14, vcc")
        if n == 3:
            a("v_cmp_gt_u32 vcc, 840, v9")
            a(f"v_cndmask_b32 v{d}, v15, v{d}, vcc")
    a("v_mul_u32_u24 v10, 41944, v8")
    a("v_lshrrev_b32 v10, 20, v10")
    a("v_mul_u32_u24 v11, 25, v10")
    a("v_sub_u32 v11, v8, v11")
    a("v_mul_u32_u24 v12, 52429, v11")
    a("v_lshrrev_b32 v12, 18, v12")
    a("v_mul_u32_u24 v13, 5, v12")
    a("v_sub_u32 v13, v11, v13")
    a("v_mul_u32_u24 v14, 1680, v10")
    a("v_lshl_add_u32 v14, v13, 4, v14")
    a(f"v_add_u32 v{OZ}, 1600, v14")
    a("v_mul_u32_u24 v10, 20, v10")
    a("v_lshl_add_u32 v12, v12, 2, v10")
    a("v_lshl_add_u32 v13, v13, 2, v10")
    a("v_lshrrev_b32 v14, 4, v12")
    a("v_bfe_u32 v12, v12, 2, 2")
    a("v_cmp_le_u32 vcc, 4, v14")
    a("v_cndmask_b32 v9, 0, 1, vcc")
    a("v_cmp_le_u32 vcc, 6, v14")
    a("v_cndmask_b32 v10, 0, 1, vcc")
    a("v_add_u32 v9, v9, v10")
    a("v_lshlrev_b32 v11, 2, v9")
    a("v_sub_u32 v11, v11, v10")
    a("v_sub_u32 v11, v11, v10")
    a("v_sub_u32 v14, v14, v11")
    a("v_lshl_add_u32 v14, v12, 2, v14")
    a("v_mul_u32_u24 v14, 208, v14")
    a("v_lshlrev_b32 v11, 5, v9")
    a("v_sub_u32 v13, v13, v11")
    a("v_lshl_add_u32 v14, v13, 1, v14")
    a("v_mul_u32_u24 v9, 3328, v9")
    a("v_add_u32 v14, v14, v9")
    a(f"v_add_u32 v14, {IMGD}, v14")
    a("v_cmp_gt_u32 vcc, 200, v8")
    a(f"v_mov_b32 v15, {TRASH}")
    a(f"v_cndmask_b32 v{OA + 4}, v15, v14, vcc")
    a(f"v_min_u32 v{OZ}, 13424, v{OZ}")
    a("v_lshlrev_b32 v62, 4, v8")
    side_sync(a, "K2_ZW", 0)


def side_fill(a):
    a("s_mul_i32 s36, s33, 13440")
    a(f"s_add_u32 s36, s36, {KVA}")
    for n in range(4):
        if n == 0:
            a(f"buffer_load_dwordx4 {vr(KVR_ + 4*n, 4)}, v62, s[12:15], s36 offen sc1")
        else:
            a(f"s_add_u32 s37, s36, {4096*n}")
            a(f"buffer_load_dwordx4 {vr(KVR_ + 4*n, 4)}, v62, s[12:15], s37 offen sc1")
    a(f"buffer_load_dwordx4 {vr(KVR_ + 16, 4)}, v{OZ}, s[12:15], s36 offen sc1")


def gen_ojob(a, half):
    L = f"K2_O{half}"
    a.label(L)
    if half == 0:
        tiles, s_list, s_lo = list(range(0, 6)), [0, 1, 2, 3], 0
        dens = [(0, 5, [0, 1, 2]), (4, 5, [1, 2, 3])]
        dts = [0, 1]
    else:
        tiles, s_list, s_lo = list(range(6, 10)), [2, 3, 4], 2
        dens = [(6, 9, [2, 3, 4])]
        dts = [2]
    PQR = 8
    NUM = 24
    DEN = 48
    TMP = 64
    AF = 96
    pq = lambda s: PQR + 4 * (s - s_lo)
    a("s_mul_i32 s36, s29, 20")
    a("s_mul_i32 s37, s33, 5")
    a("s_add_u32 s36, s36, s37")
    a(f"s_add_u32 s36, s36, {s_lo}")
    a("s_lshl_b32 s36, s36, 1")
    a("s_add_u32 s36, s36, s32")
    a("s_lshl_b32 s36, s36, 10")
    a(f"s_add_u32 s36, s36, {PQ}")
    for s in s_list:
        k = s - s_lo
        if k < 2:
            a(f"buffer_load_dwordx4 {vr(pq(s), 4)}, v1, s[12:15], s36 offen offset:{2048*k} sc1")
        else:
            a(f"buffer_load_dwordx4 {vr(pq(s), 4)}, v2, s[12:15], s36 offen offset:{2048*(k-2)} sc1")
    a("s_setprio 0")
    a(f"s_waitcnt vmcnt({len(s_list)})")
    for n in range(5):
        t = KVR_ + 4 * n
        a(f"v_cvt_pk_bf16_f32 v{t}, v{t}, v{t+1}")
        a(f"v_cvt_pk_bf16_f32 v{t+1}, v{t+2}, v{t+3}")
        a(f"ds_write_b64 v{OA + n}, {vr(t, 2)}")
    side_sync(a, L + "_W", 28)
    stamp(a, 2, 2)
    a("v_and_b32 v4, 15, v3")
    a("v_lshrrev_b32 v5, 4, v3")
    a("v_mul_u32_u24 v6, 144, v4")
    a("v_lshl_add_u32 v6, v5, 3, v6")
    a("v_mul_u32_u24 v7, 208, v4")
    a("v_lshl_add_u32 v7, v5, 3, v7")
    slo = lambda j: (max(j, 1) - 1) >> 1
    frags = []
    for j in tiles:
        h_lo, h_hi = (16 * j) // 20, (16 * j + 15) // 20
        a(f"v_add_u32 v{TMP + j - tiles[0]}, {IMGN + 2304*j}, v6")
        for s in range((20 * h_lo) // 32, (20 * h_hi + 19) // 32 + 1):
            frags.append(("n", j, s))
    for di, (jb, jmax, sl) in enumerate(dens):
        a(f"v_add_u32 v{TMP + 8 + di}, {IMGD + 3328*dts[di]}, v7")
        for s in sl:
            frags.append(("d", di, s))
    for fi, (kind, x, s) in enumerate(frags):
        if kind == "n":
            adr, o = TMP + x - tiles[0], 8 * (s - slo(x))
        else:
            adr, o = TMP + 8 + x, 8 * (s - dens[x][2][0])
        a(f"ds_read2_b64 {vr(AF + 4*fi, 4)}, v{adr} offset0:{o} offset1:{o + 4}")
        if fi == 11:
            a("s_waitcnt lgkmcnt(4)")
    a("s_waitcnt vmcnt(0) lgkmcnt(0)")
    started = set()
    for fi, (kind, x, s) in enumerate(frags):
        dst = NUM + 4 * tiles.index(x) if kind == "n" else DEN + 4 * x
        c = vr(dst, 4) if (kind, x) in started else "0"
        started.add((kind, x))
        a(f"v_mfma_f32_16x16x32_bf16 {vr(dst, 4)}, {vr(AF + 4*fi, 4)}, {vr(pq(s), 4)}, {c}")
    a("s_mov_b32 s40, 0x358637bd")
    for ti, j in enumerate(tiles):
        di = 0 if (half == 1 or j < 4) else 1
        dn = DEN + 4 * di + (j - dens[di][0])
        a(f"v_add_f32 v{TMP + ti}, s40, v{dn}")
    for ti, j in enumerate(tiles):
        a(f"v_rcp_f32 v{TMP + ti}, v{TMP + ti}")
    for ti, j in enumerate(tiles):
        for r in range(4):
            a(f"v_mul_f32 v{NUM + 4*ti + r}, v{NUM + 4*ti + r}, v{TMP + ti}")
    npair = len(tiles) // 2
    for p in range(npair):
        for hh in range(2):
            n = NUM + 4 * (2 * p + hh)
            a(f"v_cvt_pk_bf16_f32 v{AF + 4*p + 2*hh}, v{n}, v{n+1}")
            a(f"v_cvt_pk_bf16_f32 v{AF + 4*p + 2*hh + 1}, v{n+2}, v{n+3}")
    a("s_mul_i32 s36, s33, 5")
    a("s_mul_i32 s37, s33, 14")
    a("s_cmp_ge_u32 s33, 2")
    a("s_cselect_b32 s40, 1, 0")
    a("s_sub_u32 s37, s37, s40")
    a("s_cmp_ge_u32 s33, 3")
    a("s_cselect_b32 s40, 1, 0")
    a("s_sub_u32 s37, s37, s40")
    a("s_add_u32 s37, s37, 14")
    a("s_add_u32 s36, s36, s37")
    a(f"s_add_u32 s36, s36, {tiles[0] // 2}")
    a(f"s_mul_i32 s37, s25, {NSIG}")
    a("s_add_u32 s36, s36, s37")
    a("s_lshl_b32 s36, s36, 2")
    a("s_and_b32 s37, s26, 1")
    a("s_lshl_b32 s37, s37, 1")
    a("s_add_u32 s37, s37, s32")
    a("s_add_u32 s36, s36, s37")
    a("s_lshl_b32 s36, s36, 10")
    a("s_setprio 3")
    for p in range(npair):
        a(f"buffer_store_dwordx4 {vr(AF + 4*p, 4)}, v1, s[12:15], s36 offen sc1")
        if p + 1 < npair:
            a("s_add_u32 s36, s36, 4096")
    stamp(a, 3, 2)
    a("s_waitcnt vmcnt(0)")
    stamp(a, 4, 2)
    a("s_lshl_b32 s36, s25, 7")
    a(f"s_add_u32 s36, s36, {FLG}")
    a("s_lshl_b32 s37, s26, 2")
    a("s_add_u32 s37, s37, s24")
    a("s_sub_u32 s37, s37, 4")
    a("s_lshl_b32 s37, s37, 2")
    a("s_add_u32 s37, s37, s36")
    a("v_mov_b32 v6, 1")
    a("v_mov_b32 v7, 0")
    a("buffer_store_dword v6, v7, s[12:15], s37 offen sc1")
    if half == 0:
        a("s_cmp_eq_u32 s24, 4")
        a("s_cbranch_scc0 K2_FINAL")
        a("v_and_b32 v6, 31, v3")
        a("v_lshlrev_b32 v6, 2, v6")
        if "nopoll" in asmlib.EXP:
            a("s_branch K2_POLL_D")
        a("s_setprio 0")
        lds_wait(a, "K2_TWAIT", 32)
        a(f"s_mov_b32 s39, {SPIN_MAX}")
        a.label("K2_POLL")
        a("buffer_load_dword v7, v6, s[12:15], s36 offen sc1")
        a("s_waitcnt vmcnt(0)")
        a("v_cmp_eq_u32 vcc, 1, v7")
        a("s_sub_u32 s39, s39, 1")
        a("s_cmp_eq_u32 s39, 0")
        a("s_cbranch_scc1 K2_POLL_D")
        a("s_cmp_eq_u64 vcc, -1")
        a("s_cbranch_scc1 K2_POLL_D")
        a("s_sleep 3")
        a("s_branch K2_POLL")
        a.label("K2_POLL_D")
        stamp(a, 6, 2)
        a(f"v_mov_b32 v4, {LW}")
        a("v_mov_b32 v5, 1")
        a("ds_write_b32 v4, v5 offset:4")
    a("s_branch K2_FINAL")


def poll_counts(a, label, vaddr, vtarget, sleep=2):
    a(f"s_mov_b32 s39, {SPIN_MAX}")
    a.label(label)
    a(f"buffer_load_dword v7, v{vaddr}, s[12:15], 0 offen sc1")
    a("s_waitcnt vmcnt(0)")
    a(f"v_cmp_eq_u32 vcc, v{vtarget}, v7")
    a("s_sub_u32 s39, s39, 1")
    a("s_cmp_eq_u32 s39, 0")
    a(f"s_cbranch_scc1 {label}_X")
    a("s_cmp_eq_u64 vcc, -1")
    a(f"s_cbranch_scc1 {label}_X")
    a(f"s_sleep {sleep}")
    a(f"s_branch {label}")
    a.label(label + "_X")


def gen_phase2(a, S_WAVE, S_T, S_CG, S_OUT):
    a.label("PH2")
    stamp(a, 7, 1)
    stamp(a, 1, 6)
    a(f"s_mov_b32 s24, s{S_WAVE}")
    a("v_mov_b32 v3, v1")
    a("v_lshlrev_b32 v1, 4, v3")
    a("v_add_u32 v2, 4096, v1")
    a("s_and_b32 s27, s2, 7")
    a("s_lshr_b32 s28, s2, 3")
    a("s_lshr_b32 s25, s27, 1")
    a("s_lshl_b32 s25, s25, 3")
    a("s_and_b32 s29, s28, 7")
    a("s_add_u32 s25, s25, s29")
    a("s_and_b32 s26, s27, 1")
    a("s_lshl_b32 s26, s26, 2")
    a("s_lshr_b32 s28, s28, 3")
    a("s_add_u32 s26, s26, s28")
    srd(a, 12, 10, WS_USED)
    srd(a, 16, 4, S * D * 2)
    srd(a, 20, S_OUT, S * D * 2)
    a("v_mul_u32_u24 v5, 6554, v0")
    a("v_lshrrev_b32 v5, 16, v5")
    a("v_mul_u32_u24 v6, 10, v5")
    a("v_sub_u32 v6, v0, v6")
    a("v_add_u32 v7, 512, v0")
    a("v_mul_u32_u24 v8, 6554, v7")
    a("v_lshrrev_b32 v8, 16, v8")
    a("v_mul_u32_u24 v9, 10, v8")
    a("v_sub_u32 v9, v7, v9")
    a("s_mul_i32 s27, s25, 81920")
    a("s_mul_i32 s28, s26, 160")
    a("s_add_u32 s27, s27, s28")
    a(f"v_mul_u32_u24 v{V_G0}, 1280, v5")
    a(f"v_lshl_add_u32 v{V_G0}, v6, 4, v{V_G0}")
    a(f"v_add_u32 v{V_G0}, s27, v{V_G0}")
    a(f"v_mul_u32_u24 v{V_G1}, 1280, v8")
    a(f"v_lshl_add_u32 v{V_G1}, v9, 4, v{V_G1}")
    a(f"v_add_u32 v{V_G1}, s27, v{V_G1}")
    a("v_mov_b32 v10, 0x7ff00000")
    a("v_cmp_gt_u32 vcc, 128, v0")
    a(f"v_cndmask_b32 v{V_G1}, v10, v{V_G1}, vcc")
    a(f"v_mul_u32_u24 v{V_L0}, {RS}, v5")
    a(f"v_lshl_add_u32 v{V_L0}, v6, 5, v{V_L0}")
    a(f"v_mul_u32_u24 v{V_L1}, {RS}, v8")
    a(f"v_lshl_add_u32 v{V_L1}, v9, 5, v{V_L1}")
    a("v_mov_b32 v10, 0")
    a(f"v_cndmask_b32 v{V_L1}, v10, v{V_L1}, vcc")
    stamp(a, 2, 6)
    a(f"buffer_load_dwordx4 {vr(V_XR0, 4)}, v{V_G0}, s[16:19], 0 offen")
    a(f"buffer_load_dwordx4 {vr(V_XR1, 4)}, v{V_G1}, s[16:19], 0 offen")
    a("s_cmp_ge_u32 s24, 4")
    a("s_cbranch_scc1 K2_SIDE")
    gen_main(a)

    a.label("K2_SIDE")
    if "noside" in asmlib.EXP:
        a(f"v_mov_b32 v4, {LW}")
        a("v_mov_b32 v5, 1")
        a("ds_write_b32 v4, v5 offset:4")
        a("s_branch K2_FINAL")
    a("s_and_b32 s32, s24, 1")
    a("s_lshr_b32 s33, s26, 1")
    a("s_and_b32 s29, s26, 1")
    a("s_lshl_b32 s27, s25, 1")
    a("s_add_u32 s29, s29, s27")
    a("s_lshr_b32 s51, s25, 1")
    if "noprep" in asmlib.EXP:
        a(f"v_mov_b32 v4, {LW}")
        a("v_mov_b32 v5, 1")
        a("ds_write_b32 v4, v5 offset:4")
        a("s_branch K2_FINAL")
    side_prepare(a)
    if "nokvwait" in asmlib.EXP:
        a(f"v_mov_b32 v4, {LW}")
        a("v_mov_b32 v5, 1")
        a("ds_write_b32 v4, v5 offset:4")
        a("s_branch K2_FINAL")
    a("s_cmp_eq_u32 s24, 4")
    a("s_cbranch_scc0 K2_SRDY")
    a("s_lshl_b32 s40, s33, 10")
    a("s_and_b32 s41, s2, 3")
    a("s_lshl_b32 s41, s41, 7")
    a("s_add_u32 s40, s40, s41")
    a(f"s_add_u32 s40, s40, {CNT_KV}")
    a("v_and_b32 v8, 1, v3")
    a("v_lshlrev_b32 v8, 9, v8")
    a("v_add_u32 v8, s40, v8")
    a("s_lshl_b32 s40, s51, 7")
    a(f"s_add_u32 s40, s40, {CNT_Q}")
    a("v_mov_b32 v9, s40")
    a("v_and_b32 v10, 2, v3")
    a("v_cmp_eq_u32 vcc, 0, v10")
    a("v_cndmask_b32 v6, v9, v8, vcc")
    a("v_mov_b32 v9, 8")
    a("v_mov_b32 v10, 16")
    a("v_cndmask_b32 v8, v9, v10, vcc")
    stamp(a, 5, 6)
    poll_counts(a, "K2_PK", 6, 8, 6 if "pk6" in asmlib.EXP else 12 if "pk12" in asmlib.EXP else 2)
    stamp(a, 6, 6)
    a(f"v_mov_b32 v4, {LW}")
    a("v_mov_b32 v5, 1")
    a("ds_write_b32 v4, v5 offset:12")
    a.label("K2_SRDY")
    if "nokvwait" in asmlib.EXP:
        a("s_branch K2_FINAL")
    lds_wait(a, "K2_KWAIT", 12)
    a("s_setprio 3")
    stamp(a, 1, 2)
    side_fill(a)
    a("s_cmp_ge_u32 s24, 6")
    a("s_cbranch_scc1 K2_O1")
    gen_ojob(a, 0)
    gen_ojob(a, 1)

    a.label("K2_FINAL")
    a("s_setprio 0")
    a("s_waitcnt lgkmcnt(0)")
    a("s_barrier")
    stamp(a, 5, 2)
    for rnd, (vl, vg, xr) in enumerate(((V_L0, V_G0, V_XR0), (V_L1, V_G1, V_XR1))):
        if rnd == 1:
            a("s_cmp_ge_u32 s24, 2")
            a("s_cbranch_scc1 K2_DONE")
        T = 16
        for w in range(4):
            for hh in range(2):
                a(f"ds_read_b128 {vr(T + 8*w + 4*hh, 4)}, v{vl} offset:{w * REG + hh * 16}")
        a("s_waitcnt vmcnt(0)")
        for i in range(4):
            a(f"v_lshlrev_b32 v{64 + 2*i}, 16, v{xr + i}")
            a(f"v_and_b32 v{64 + 2*i + 1}, 0xffff0000, v{xr + i}")
        a("s_waitcnt lgkmcnt(0)")
        for i in range(8):
            a(f"v_add_f32 v{T + i}, v{T + i}, v{T + 8 + i}")
            a(f"v_add_f32 v{T + 16 + i}, v{T + 16 + i}, v{T + 24 + i}")
        for i in range(8):
            a(f"v_add_f32 v{T + i}, v{T + i}, v{T + 16 + i}")
        for i in range(8):
            a(f"v_add_f32 v{T + i}, v{T + i}, v{64 + i}")
        for i in range(4):
            a(f"v_cvt_pk_bf16_f32 v{72 + i}, v{T + 2*i}, v{T + 2*i + 1}")
        a(f"buffer_store_dwordx4 v[72:75], v{vg}, s[20:23], 0 offen")
    a.label("K2_DONE")
    a("s_waitcnt vmcnt(0)")
    stamp(a, 7, 2)
    stamp(a, 7, 9)
    stamp_flush(a, 0, 24, "s[12:15]", STAMPS)
```

```python
import sys
sys.path.insert(0, "gen")
import km, km2
from asmlib import *
HEAD = """; Kernarg layout (72 bytes, pointers only, base s[0:1]):
"""
def build(sgpr=102, mod=None):
    m = mod or km
    t = HEAD + f"; @launch grid=(256,1,1) block=(512,1,1) lds={km2.KM_LDS}\n"
    t += '.amdgcn_target "amdgcn-amd-amdhsa--gfx950"\n.text\n' + kernel_header(km.KM) + m.gen_km().text()
    t += '.section .rodata,"a"\n.p2align 6\n' + kernel_desc(km.KM, 256, sgpr, 256)
    return t
if __name__ == "__main__":
    out = sys.argv[1] if len(sys.argv) > 1 else "parallel_sum__linear_attn_block__dense_activation_relu__prompt.s"
    asm = build()
    open(out, "w").write(asm)
    print(out, len(asm), "bytes")
```
